```python
import torch

def _softmax(x, axis=-1):
    return torch.softmax(x, dim=axis)
def _gelu(x):
    return torch.nn.functional.gelu(x, approximate="tanh")
def _silu(x):
    return torch.nn.functional.silu(x)
def _sigmoid(x):
    return torch.sigmoid(x)
def _layernorm(x, axis=-1, eps=1e-5):
    m = x.mean(dim=axis, keepdim=True)
    v = x.var(dim=axis, keepdim=True, unbiased=False)
    return (x - m) / torch.sqrt(v + eps)
def _scatter_add(tgt, idx, src, axis=0):
    return tgt.clone().index_add_(axis, idx, src)
def _segment_sum(src, seg, n):
    out = torch.zeros((n,) + src.shape[1:], dtype=src.dtype)
    return out.index_add_(0, seg, src)
def _pad(x, pw):
    flat = tuple(v for pair in reversed(pw) for v in pair)
    return torch.nn.functional.pad(x, flat)

kernel_name = 'gated_mix__ssm_conv_s4__ssm_conv_h3__prompt'

def setup_inputs():

    _w = (lambda a: (lambda t: t.to(torch.bfloat16) if t.is_floating_point() else t)(torch.as_tensor(a)))
    def _A_setup():
        B, L, D, N = 1, 2048, 448, 256
        A_re = -(lambda _x: torch.exp(torch.as_tensor(_x)))((lambda *s: torch.randn(*s, dtype=torch.bfloat16) * 6.4)(D, N))
        A_im = torch.pi * (lambda *s: torch.randn(*s, dtype=torch.bfloat16) * 0.05)(D, N)
        B_re = (lambda *s: torch.randn(*s, dtype=torch.bfloat16) * 0.1)(D, N)
        B_im = (lambda *s: torch.randn(*s, dtype=torch.bfloat16) * 0.1)(D, N)
        C_re = (lambda *s: torch.randn(*s, dtype=torch.bfloat16) * 0.1)(D, N)
        C_im = (lambda *s: torch.randn(*s, dtype=torch.bfloat16) * 0.1)(D, N)
        log_dt = (lambda *s: torch.randn(*s, dtype=torch.bfloat16) * 0.05)(D) * 0.5 - 4.0
        Dskip = (lambda *s: torch.randn(*s, dtype=torch.bfloat16) * 0.05)(D)
        return {
            "u": _w((lambda *s: torch.randn(*s, dtype=torch.bfloat16) * 0.05)(B, L, D)),
            "A_re": _w(A_re),
            "A_im": _w(A_im),
            "B_re": _w(B_re),
            "B_im": _w(B_im),
            "C_re": _w(C_re),
            "C_im": _w(C_im),
            "log_dt": _w(log_dt),
            "Dskip": _w(Dskip),
        }
    _A_in = _A_setup()

    def _B_setup():
        B, S, D = 1, 2048, 448
        ks = 4
        return {
            "q": _w((lambda *s: torch.randn(*s, dtype=torch.bfloat16) * 0.05)(B, S, D)),
            "k": _w((lambda *s: torch.randn(*s, dtype=torch.bfloat16) * 0.4)(B, S, D)),
            "v": _w((lambda *s: torch.randn(*s, dtype=torch.bfloat16) * 0.4)(B, S, D)),
            "shift_k": _w((lambda *s: torch.randn(*s, dtype=torch.bfloat16) * 0.4)(D, ks) * 0.5),
            "ssm_k": _w((lambda *s: torch.randn(*s, dtype=torch.bfloat16) * 0.4)(D, S) * (1.0 / S ** 0.5)),
            "ssm_D": _w((lambda *s: torch.randn(*s, dtype=torch.bfloat16) * 0.4)(D)),
        }
    _B_in = _B_setup()

    return {
        "A_u": _A_in["u"],
        "A_A_re": _A_in["A_re"],
        "A_A_im": _A_in["A_im"],
        "A_B_re": _A_in["B_re"],
        "A_B_im": _A_in["B_im"],
        "A_C_re": _A_in["C_re"],
        "A_C_im": _A_in["C_im"],
        "A_log_dt": _A_in["log_dt"],
        "A_Dskip": _A_in["Dskip"],
        "B_q": _B_in["q"],
        "B_k": _B_in["k"],
        "B_v": _B_in["v"],
        "B_shift_k": _B_in["shift_k"],
        "B_ssm_k": _B_in["ssm_k"],
        "B_ssm_D": _B_in["ssm_D"],
        "gate_w": _w((lambda *s: torch.randn(*s, dtype=torch.bfloat16) * 0.05)(448) * 16.0),
    }

def reference(A_u, A_A_re, A_A_im, A_B_re, A_B_im, A_C_re, A_C_im, A_log_dt, A_Dskip, B_q, B_k, B_v, B_shift_k, B_ssm_k, B_ssm_D, gate_w):
    def _A_ref(u, A_re, A_im, B_re, B_im, C_re, C_im, log_dt, Dskip):
        Bsz, L, D = u.shape
        dt = torch.exp(log_dt)[:, None]
        A = A_re + 1j * A_im
        Bc = B_re + 1j * B_im
        Cc = C_re + 1j * C_im
        logdA = dt * A
        dB = dt * Bc
        l = (lambda x, dt: x.to(dt))(torch.arange(L), A_re.dtype)
        P = torch.exp(logdA[:, :, None] * l[None, None, :])
        K = torch.einsum("dn,dnl,dn->dl", Cc, P, dB).real
        L2 = 2 * L
        Kp = _pad(K, ((0, 0), (0, L)))
        up = (lambda x, *d: x.permute(*d))(u, 0, 2, 1)
        up = _pad(up, ((0, 0), (0, 0), (0, L)))
        Kf = (lambda x, axes=(-2,-1): torch.fft.rfft2(x.float(), dim=axes))(Kp[:, None, :], axes=(-2, -1))
        Uf = (lambda x, axes=(-2,-1): torch.fft.rfft2(x.float(), dim=axes))(up[:, :, None, :], axes=(-2, -1))
        Yf = Uf * Kf[None, :, :, :]
        y = (lambda x, s, axes=(-2,-1): torch.fft.irfft2(x, s=s, dim=axes).to(torch.bfloat16))(Yf, (1, L2), axes=(-2, -1))[:, :, 0, :L]
        y = (lambda x, *d: x.permute(*d))(y, 0, 2, 1) + u * Dskip[None, None, :]
        return y

    def _B_ref(q, k, v, shift_k, ssm_k, ssm_D):
        B, S, D = q.shape
        ks = shift_k.shape[-1]
        k_pad = _pad(k, ((0, 0), (ks - 1, 0), (0, 0)))
        k_shift = torch.zeros_like(k)
        for t in range(ks):
            k_shift = k_shift + k_pad[:, t:t + S, :] * shift_k[:, ks - 1 - t][None, None, :]
        kv = k_shift * v
        L = 2 * S
        kv_pad = _pad(kv, ((0, 0), (0, S), (0, 0)))
        kf_pad = _pad(ssm_k, ((0, 0), (0, S)))
        kv_f = (lambda x, axes=(-2,-1): torch.fft.rfft2(x.float(), dim=axes))(kv_pad[:, None, :, :], axes=(1, 2))
        kf_f = (lambda x, axes=(-2,-1): torch.fft.rfft2(x.float(), dim=axes))(kf_pad[:, None, :], axes=(1, 2))
        kf_f = (lambda x, *d: x.permute(*d))(kf_f, 1, 2, 0)
        y_f = kv_f * kf_f[None, :, :, :]
        y = (lambda x, s, axes=(-2,-1): torch.fft.irfft2(x, s=s, dim=axes).to(torch.bfloat16))(y_f, (1, L), axes=(1, 2))[:, 0, :S, :]
        y = y + kv * ssm_D[None, None, :]
        return q * y

    x = A_u
    g = _sigmoid((x * gate_w).sum(-1, keepdims=True))
    a = _A_ref(x, A_A_re, A_A_im, A_B_re, A_B_im, A_C_re, A_C_im, A_log_dt, A_Dskip)
    b = _B_ref(x, B_k, B_v, B_shift_k, B_ssm_k, B_ssm_D)
    return g * a + (1 - g) * b
```

```python
import re

TRANS = ("v_exp_f32", "v_log_f32", "v_rcp_f32", "v_rsq_f32", "v_sqrt_f32", "v_sin_f32", "v_cos_f32")
REG = re.compile(r"^-?\|?(v|s|a)(\d+)\|?$")
RNG = re.compile(r"^-?(v|s|a)\[(\d+):(\d+)\]$")

def regs_of(tok):
    tok = tok.strip()
    m = REG.match(tok)
    if m: return {(m.group(1), int(m.group(2)))}
    m = RNG.match(tok)
    if m: return {(m.group(1), i) for i in range(int(m.group(2)), int(m.group(3)) + 1)}
    if tok in ("vcc", "vcc_lo", "vcc_hi"): return {("s", "vcc")}
    if tok == "exec": return {("s", "exec")}
    if tok == "m0": return {("s", "m0")}
    return set()

class Ins:
    def __init__(self, text):
        self.text = text
        t = text.split(";")[0].strip()
        self.label = t.endswith(":") and " " not in t
        self.directive = t.startswith(".")
        self.op = "" if (self.label or self.directive or not t) else t.split()[0]
        rest = t[len(self.op):].strip() if self.op else ""
        parts = [p.strip() for p in rest.split(",")] if rest else []
        ops = []
        depth = 0; cur = ""
        for ch in rest:
            if ch == "[": depth += 1
            if ch == "]": depth -= 1
            if ch == "," and depth == 0: ops.append(cur.strip()); cur = ""
            else: cur += ch
        if cur.strip(): ops.append(cur.strip())
        self.mods = ""
        if ops:
            last = ops[-1].split(None, 1)
            ops[-1] = last[0]
            self.mods = last[1] if len(last) > 1 else ""
        self.ops = ops
        op = self.op
        self.is_mfma = op.startswith("v_mfma")
        self.is_valu = op.startswith("v_") and not self.is_mfma
        self.is_ds = op.startswith("ds_")
        self.is_vmem = op.startswith(("global_", "buffer_"))
        self.is_salu = op.startswith("s_")
        self.is_smem = op.startswith(("s_load", "s_memtime", "s_memrealtime"))
        self.is_dpp = "_dpp" in op
        self.is_trans = op.replace("_e32", "") in TRANS
        self.is_dot = op.startswith("v_dot")
        self.is_perml = op.startswith("v_permlane")
        self.is_rdl = op.startswith(("v_readlane", "v_readfirstlane"))
        self.passes = 8 if "32x32x16" in op else 4
        R = [regs_of(o) for o in ops]
        d = set(); s = set()
        self.load_dst = set(); self.store_data = set(); self.srcC = set(); self.srcAB = set()
        if self.is_mfma:
            d = R[0]; self.srcAB = R[1] | R[2]; self.srcC = R[3]; s = self.srcAB | self.srcC
        elif self.is_perml:
            d = R[0] | R[1]; s = R[0] | R[1]
        elif self.is_valu:
            d = set(R[0]); k = 1
            if op.startswith(("v_add_co", "v_sub_co", "v_addc_co")): d |= R[1]; k = 2
            for r in R[k:]: s |= r
            if op.startswith(("v_fmac", "v_dot2c")) or self.is_dpp or "d16" in op: s |= R[0]
            if op.startswith("v_cndmask") and len(ops) == 3: s |= {("s", "vcc")}
            if op.startswith("v_writelane"): s |= R[0]
        elif self.is_ds:
            if op.startswith("ds_read") or "_rtn" in op or "permute" in op or "swizzle" in op:
                d = R[0]; self.load_dst = set(R[0])
                for r in R[1:]: s |= r
                if "d16" in op: s |= R[0]
            else:
                for r in R: s |= r
        elif self.is_vmem:
            load = "_load" in op or ("atomic" in op and "sc0" in self.mods)
            if load and " lds" not in (" " + self.mods):
                d = R[0]; self.load_dst = set(R[0])
                for r in R[1:]: s |= r
            else:
                for r in R: s |= r
                if "_store" in op and ("x4" in op or "x3" in op):
                    self.store_data = R[1] if op.startswith("global") else R[0]
        elif self.is_salu:
            if op.startswith(("s_cmp", "s_cbranch", "s_branch", "s_waitcnt", "s_nop", "s_barrier", "s_sleep", "s_setprio", "s_endpgm", "s_bitcmp")):
                for r in R: s |= r
            elif R:
                d = R[0]
                for r in R[1:]: s |= r
                if "saveexec" in op: d = d | {("s", "exec")}; s |= {("s", "exec")}
        self.d = d; self.s = s
    def states(self):
        if self.op == "s_nop": return int(self.ops[0]) + 1
        return 1 if self.op else 0

def need(p, c):
    n = 0
    pv = {r for r in p.d if r[0] in "va"}
    ps = {r for r in p.d if r[0] == "s"}
    if p.is_valu:
        if c.is_mfma and pv & c.s: n = max(n, 2)
        if c.is_dpp and c.is_valu and pv & regs_of(c.ops[1]): n = max(n, 2)
        if c.is_perml and pv & c.s: n = max(n, 2)
        if c.is_rdl and pv & c.s: n = max(n, 1)
        if p.is_trans and c.is_valu and not c.is_trans and pv & c.s: n = max(n, 1)
        if p.is_trans and c.is_trans and pv & c.s: n = max(n, 1)
        if p.is_dot and (pv & (c.s | c.d)) and not (c.op == p.op and not (pv & (c.s - set(regs_of(c.ops[-1]))))): n = max(n, 3)
        if ps:
            if c.is_valu and ps & c.s: n = max(n, 4 if c.is_rdl or c.op.startswith("v_writelane") else 2)
            if c.is_vmem and ps & c.s: n = max(n, 5)
            if c.is_salu and ps & c.s: n = max(n, 1)
    if p.is_mfma:
        big = p.passes == 8
        if c.is_mfma:
            if p.d & c.srcAB: n = max(n, 12 if big else 8)
            if p.d & c.srcC and not (p.d == c.srcC and p.passes == c.passes): n = max(n, 10 if big else 6)
            if p.d & c.d and not (p.d & c.srcC): n = max(n, 12 if big else 8)
        elif (c.is_valu or c.is_ds or c.is_vmem):
            if p.d & (c.s | c.d): n = max(n, 12 if big else 8)
            if c.is_valu and p.srcC & c.d: n = max(n, 7 if big else 3)
    if p.store_data and (p.store_data & c.d): n = max(n, 2)
    return n

class Asm:
    def __init__(self): self.lines = []; self.nops = 0
    def __call__(self, text):
        for l in text.split("\n"):
            l = l.strip()
            if l: self.lines.append(l)
    def finish(self):
        ins = [Ins(l) for l in self.lines]
        out = []
        vm = []; lg = []
        smem = set()
        def emit(i): out.append(i)
        for c in ins:
            if c.label or c.directive or not c.op:
                emit(c); continue
            touch = c.s | c.d
            if c.op == "s_waitcnt":
                t = c.text
                m = re.search(r"vmcnt\((\d+)\)", t)
                if m: vm = vm[len(vm) - int(m.group(1)):] if int(m.group(1)) < len(vm) and int(m.group(1)) > 0 else ([] if int(m.group(1)) == 0 else vm)
                m = re.search(r"lgkmcnt\((\d+)\)", t)
                if m:
                    k = int(m.group(1))
                    lg = lg[len(lg) - k:] if 0 < k < len(lg) else ([] if k == 0 else lg)
                    if k == 0: smem = set()
            else:
                w = []
                idx = [n for n, r in enumerate(vm) if r & touch]
                if idx:
                    k = len(vm) - 1 - idx[-1]
                    k = min(k, 63)
                    w.append(f"vmcnt({k})"); vm = vm[len(vm) - k:] if k else []
                if smem & touch:
                    w.append("lgkmcnt(0)"); lg = []; smem = set()
                else:
                    idx = [n for n, r in enumerate(lg) if r & touch]
                    if idx:
                        k = len(lg) - 1 - idx[-1]
                        if smem: k = 0; smem = set()
                        k = min(k, 15)
                        w.append(f"lgkmcnt({k})"); lg = lg[len(lg) - k:] if k else []
                if w: emit(Ins("s_waitcnt " + " ".join(w)))
            req = 0; dist = 0
            for p in reversed(out):
                if dist >= 20: break
                if p.op:
                    n = need(p, c)
                    if n - dist > req: req = n - dist
                    dist += p.states()
            if req > 0:
                self.nops += req
                while req > 0:
                    k = min(req, 16); emit(Ins(f"s_nop {k-1}")); req -= k
            emit(c)
            if c.is_vmem: vm.append(set(c.load_dst))
            if c.is_ds: lg.append(set(c.load_dst))
            if c.is_smem: smem |= c.d
            if c.op in ("s_endpgm", "s_branch"):
                vm = []; lg = []; smem = set()
        txt = []
        for i in out:
            txt.append(i.text if (i.label or i.directive) else "    " + i.text)
        return "\n".join(txt) + "\n"
```

```python
import sys, struct, math
from asmlib import Asm

NAME = "gated_mix__ssm_conv_s4__ssm_conv_h3__prompt"
DEFAULT = dict(xcdmap=1, stamps=0, sleep=8, prio=1)

KSTR = 4160; K0 = 0
USTR_PH = 1088; USTR = 4 * USTR_PH; U0 = 4 * KSTR
G0 = U0 + 4 * USTR
P0 = G0 + 8192; PSTR = 3072
FL0 = P0 + 2 * PSTR
C_SIG, C_POLL, C_U, C_P, C_K, C_G = (FL0 + 4 * i for i in range(6))
PR0 = FL0 + 256
Y0 = PR0 + 1024
SC0 = Y0 + 32768; SROW = 272; SSTR = 53 * SROW
LDS_BYTES = SC0 + 4 * SSTR
WS_G = 224 * 16384
WS_STAMP = 64 << 20

def f2u(x): return struct.unpack("<I", struct.pack("<f", x))[0]
def hx(x): return "0x%08x" % (x & 0xffffffff)
def vr(a, n=1): return f"v{a}" if n == 1 else f"v[{a}:{a+n-1}]"

sG, sJ, sW, sP = "s4", "s5", "s6", "s7"
pU, pAre, pAim, pBre, pBim, pCre, pCim, pLdt = (f"s[{16+2*i}:{17+2*i}]" for i in range(8))
pDs, pQ, pK, pV, pSh, pSk, pSd, pGw = (f"s[{32+2*i}:{33+2*i}]" for i in range(8))
pOut, pDbg, pWs = "s[48:49]", "s[50:51]", "s[52:53]"
srdK = "s[56:59]"
sHI, sSel0, sSel1 = "s62", "s63", "s64"

def gen(**kw):
    o = dict(DEFAULT); o.update(kw)
    a = Asm()
    nst = [0]
    def stamp(i):
        if o["stamps"]: a(f"s_memrealtime s[{72+2*i}:{73+2*i}]")
    def dump_stamps(n):
        if not o["stamps"]: return
        a("s_waitcnt lgkmcnt(0)")
        a(f"s_lshl_b32 s8, s2, 3\ns_add_u32 s8, s8, {sW}\ns_lshl_b32 s8, s8, 6\ns_add_u32 s8, s8, {WS_STAMP}")
        a("s_mov_b64 exec, 1\nv_mov_b32 v2, s8")
        for i in range(n):
            a(f"v_mov_b32 v3, s{72+2*i}\nglobal_store_dword v2, v3, {pWs} offset:{4*i}")
        a("s_waitcnt vmcnt(0)")
    def lds_arrive(addr_const, vtmp, vone):
        a(f"s_mov_b64 exec, 1\nv_mov_b32 v{vtmp}, {addr_const}\nv_mov_b32 v{vone}, 1\nds_add_u32 v{vtmp}, v{vone}\ns_mov_b64 exec, -1")
    lab = [0]
    def lds_wait(addr_const, target, vtmp, vval, slp=1):
        lab[0] += 1
        L = f"L_w{lab[0]}"
        a(f"v_mov_b32 v{vtmp}, {addr_const}\ns_mov_b32 s65, 0")
        a(f"{L}:\nds_read_b32 v{vval}, v{vtmp}\ns_waitcnt lgkmcnt(0)\nv_cmp_le_u32 vcc, {target}, v{vval}\ns_cbranch_vccnz {L}_ok")
        a(f"s_sleep {slp}\ns_add_u32 s65, s65, 1\ns_bitcmp0_b32 s65, 19\ns_cbranch_scc1 {L}\n{L}_ok:")

    a("s_cmp_ge_u32 s2, 256\ns_cbranch_scc1 L_end")
    stamp(0)
    a("s_load_dwordx16 s[16:31], s[0:1], 0\ns_load_dwordx16 s[32:47], s[0:1], 64")
    a("s_load_dwordx4 s[48:51], s[0:1], 128\ns_load_dwordx2 s[52:53], s[0:1], 144")
    a("v_lshrrev_b32 v2, 6, v0\nv_and_b32 v1, 63, v0")
    if o["xcdmap"]: a(f"s_and_b32 {sG}, s2, 7\ns_lshr_b32 {sJ}, s2, 3")
    else: a(f"s_lshr_b32 {sG}, s2, 5\ns_and_b32 {sJ}, s2, 31")
    a(f"v_readfirstlane_b32 {sW}, v2")
    a(f"s_lshl_b32 {sP}, {sG}, 5\ns_add_u32 {sP}, {sP}, {sJ}")
    a(f"s_cmp_ge_u32 {sW}, 4\ns_cbranch_scc1 L_kwave")

    vB, vB2, vKA = 10, 11, 12
    U_, V_, K_, SH = 16, 24, 32, 44
    GU, GW = 48, 56
    a(f"""s_lshr_b32 s8, {sW}, 1
s_lshl_b32 s8, s8, 5
s_lshl_b32 s9, {sJ}, 6
s_add_u32 s8, s8, s9
s_mul_i32 s8, s8, 896
s_and_b32 s9, {sW}, 1
s_lshl_b32 s10, s9, 6
s_lshl_b32 s11, {sG}, 7
s_add_u32 s10, s10, s11
s_add_u32 s8, s8, s10
v_lshrrev_b32 v2, 4, v1
v_and_b32 v3, 15, v1
v_mul_u32_u24 v4, {8*896}, v2
v_lshl_add_u32 v4, v3, 2, v4
v_add_u32 v{vB}, s8, v4
v_add_u32 v{vB2}, {4*896}, v{vB}
v_subrev_u32 v{vKA}, {3*896}, v{vB}
s_lshl_b32 s12, s2, 3
s_lshl_b32 s13, {sW}, 1
s_add_u32 s12, s12, s13
v_lshrrev_b32 v5, 5, v1
v_add_u32 v5, s12, v5
v_and_b32 v6, 31, v1
v_mul_u32_u24 v6, 28, v6
v_mul_u32_u24 v7, 896, v5
v_add_u32 v7, v7, v6
s_lshl_b32 s10, s10, 2
v_lshl_add_u32 v8, v3, 4, s10
s_cmp_eq_u32 {sG}, 7
s_waitcnt lgkmcnt(0)
s_cbranch_scc1 L_gonly_ld""")
    a(f"s_mov_b32 s56, s36\ns_mov_b32 s57, s37\ns_mov_b32 s58, 1835008\ns_mov_b32 s59, 0x20000")
    for i in range(3): a(f"buffer_load_dword v{K_+i}, v{vKA}, {srdK}, 0 offen offset:{896*i}")
    for i in range(8):
        b, off = (vB, 896*i) if i < 4 else (vB2, 896*(i-4))
        a(f"buffer_load_dword v{K_+3+i}, v{b}, {srdK}, 0 offen offset:{off}")
    a(f"global_load_dwordx4 v[{SH}:{SH+3}], v8, {pSh}")
    for i in range(8):
        b, off = (vB, 896*i) if i < 4 else (vB2, 896*(i-4))
        a(f"global_load_dword v{V_+i}, v{b}, {pV} offset:{off}")
    for i in range(8):
        b, off = (vB, 896*i) if i < 4 else (vB2, 896*(i-4))
        a(f"global_load_dword v{U_+i}, v{b}, {pU} offset:{off}")
    a("L_gonly_ld:")
    a(f"global_load_dwordx4 v[{GU}:{GU+3}], v7, {pU}\nglobal_load_dwordx3 v[{GU+4}:{GU+6}], v7, {pU} offset:16")
    a(f"global_load_dwordx4 v[{GW}:{GW+3}], v6, {pGw}\nglobal_load_dwordx3 v[{GW+4}:{GW+6}], v6, {pGw} offset:16")
    a(f"s_mov_b32 {sHI}, 0xffff0000\ns_mov_b32 {sSel0}, 0x05040100\ns_mov_b32 {sSel1}, 0x07060302")
    if o["prio"]: a("s_setprio 1")
    a(f"""s_lshl_b32 s8, {sG}, 5
s_and_b32 s9, {sW}, 1
s_lshl_b32 s9, s9, 4
s_add_u32 s8, s8, s9
s_lshl_b32 s8, s8, 14
s_lshl_b32 s9, {sJ}, 9
s_add_u32 s8, s8, s9
s_lshr_b32 s9, {sW}, 1
s_lshl_b32 s9, s9, 6
s_add_u32 s8, s8, s9
v_lshlrev_b32 v9, 14, v3
v_lshl_add_u32 v9, v2, 4, v9
v_add_u32 v9, s8, v9
v_lshlrev_b32 v5, 2, v5
v_add_u32 v5, {WS_G}, v5
s_barrier
s_cmp_eq_u32 {sG}, 7
s_cbranch_scc1 L_g7""")
    KU, WT, AC, VT, PC = 64, 86, 96, 112, 120
    for i in range(3):
        a(f"v_lshlrev_b32 v{KU+2*i}, 16, v{K_+i}\nv_and_b32 v{KU+2*i+1}, {sHI}, v{K_+i}")
    for ch in range(2):
        for t in range(4):
            src = SH + 2*ch + t//2
            a(f"v_lshlrev_b32 v{WT+2*t+ch}, 16, v{src}" if t % 2 == 0 else f"v_and_b32 v{WT+2*t+ch}, {sHI}, v{src}")
    for i in range(3, 11):
        a(f"v_lshlrev_b32 v{KU+2*i}, 16, v{K_+i}\nv_and_b32 v{KU+2*i+1}, {sHI}, v{K_+i}")
    stamp(1)
    for t in range(4):
        for r in range(8):
            k = KU + 2*(r + 3 - t)
            if t == 0: a(f"v_pk_mul_f32 {vr(AC+2*r,2)}, {vr(k,2)}, {vr(WT,2)}")
            else: a(f"v_pk_fma_f32 {vr(AC+2*r,2)}, {vr(k,2)}, {vr(WT+2*t,2)}, {vr(AC+2*r,2)}")
    for r in range(8):
        t = VT + 2*(r % 4)
        a(f"v_lshlrev_b32 v{t}, 16, v{V_+r}\nv_and_b32 v{t+1}, {sHI}, v{V_+r}")
        a(f"v_pk_mul_f32 {vr(AC+2*r,2)}, {vr(AC+2*r,2)}, {vr(t,2)}")
    def transpose(base):
        X = [base + 3 - r for r in range(4)]
        a(f"v_permlane32_swap_b32 v{X[0]}, v{X[2]}\nv_permlane32_swap_b32 v{X[1]}, v{X[3]}")
        a(f"v_permlane16_swap_b32 v{X[0]}, v{X[1]}\nv_permlane16_swap_b32 v{X[2]}, v{X[3]}")
    for ch in range(2):
        base = PC + 8 + 4*ch
        for rho in range(4):
            a(f"v_cvt_pk_bf16_f32 v{base+3-rho}, v{AC+2*(rho+4)+ch}, v{AC+2*rho+ch}")
    for ch in range(2): transpose(PC + 8 + 4*ch)
    for ch in range(2):
        a(f"global_store_dwordx4 v9, {vr(PC+8+4*ch,4)}, {pWs} offset:{(2+ch)*128} sc1")
    for ch in range(2):
        base = PC + 4*ch
        for rho in range(4):
            a(f"v_perm_b32 v{base+3-rho}, v{U_+rho}, v{U_+rho+4}, {sSel0 if ch == 0 else sSel1}")
    for ch in range(2): transpose(PC + 4*ch)
    for ch in range(2):
        a(f"global_store_dwordx4 v9, {vr(PC+4*ch,4)}, {pWs} offset:{ch*128} sc1")
    a("L_gate:")
    a("s_waitcnt vmcnt(4)")
    a("v_mov_b32 v2, 0")
    for i in range(7): a(f"v_dot2_f32_bf16 v2, v{GU+i}, v{GW+i}, v2")
    for sh in (1, 2, 4, 8): a(f"v_add_f32_dpp v2, v2, v2 row_shr:{sh} row_mask:0xf bank_mask:0xf bound_ctrl:0")
    a("v_add_f32_dpp v2, v2, v2 row_bcast:15 row_mask:0xa bank_mask:0xf")
    a(f"v_cvt_pk_bf16_f32 v2, 0, v2\nv_mul_f32 v2, {hx(f2u(-math.log2(math.e)))}, v2\nv_exp_f32 v2, v2\nv_add_f32 v2, 1.0, v2\nv_rcp_f32 v2, v2\nv_cvt_pk_bf16_f32 v2, 0, v2")
    a("s_mov_b32 exec_lo, 0x80000000\ns_mov_b32 exec_hi, 0x80000000")
    a(f"global_store_dword v5, v2, {pWs} sc1")
    a("s_mov_b64 exec, -1")
    stamp(2)
    a("s_waitcnt vmcnt(0)")
    stamp(3)
    a(f"s_mov_b64 exec, 1\nv_mov_b32 v2, {C_SIG}\nv_mov_b32 v3, 1\nds_add_rtn_u32 v4, v2, v3\ns_waitcnt lgkmcnt(0)")
    a(f"v_readfirstlane_b32 s8, v4\ns_cmp_lg_u32 s8, 3\ns_cbranch_scc1 L_nosig")
    a(f"s_lshl_b32 s8, {sG}, 5\nv_mov_b32 v2, s8\nglobal_atomic_add v2, v3, {pDbg} sc1")
    a("L_nosig:\ns_mov_b64 exec, -1")
    a(f"s_cmp_eq_u32 {sG}, 7\ns_cbranch_scc1 L_tend")
    PL, GL = 136, 152
    a(f"""s_lshl_b32 s8, {sP}, 14
v_lshlrev_b32 v10, 4, v0
v_add_u32 v11, {WS_G}, v10
v_add_u32 v10, s8, v10
v_add_u32 v12, 4096, v10
v_add_u32 v13, 8192, v10
v_add_u32 v14, 12288, v10
v_add_u32 v15, 4096, v11
v_and_b32 v2, 3, v0
v_mul_u32_u24 v16, {USTR_PH}, v2
v_bfe_u32 v2, v0, 3, 2
v_mul_u32_u24 v3, {USTR}, v2
v_add_u32 v16, v16, v3
v_bfe_u32 v2, v0, 2, 1
v_lshlrev_b32 v2, 4, v2
v_lshrrev_b32 v3, 5, v0
v_lshl_add_u32 v2, v3, 5, v2
v_sub_u32 v16, v16, v2
v_add_u32 v16, {U0 + 1008 - 768}, v16
v_lshlrev_b32 v17, 4, v0
v_add_u32 v17, {G0}, v17""")
    a(f"s_cmp_lg_u32 {sW}, 0\ns_cbranch_scc1 L_nopoll")
    a("v_and_b32 v2, 7, v1\nv_lshlrev_b32 v2, 5, v2")
    a(f"s_mov_b32 s65, 0\nL_poll:\nglobal_load_dword v3, v2, {pDbg} sc1\ns_waitcnt vmcnt(0)\nv_cmp_gt_u32 vcc, 32, v3\ns_cbranch_vccz L_polled\ns_sleep {o['sleep']}\ns_add_u32 s65, s65, 1\ns_bitcmp0_b32 s65, 16\ns_cbranch_scc1 L_poll")
    a("L_polled:")
    lds_arrive(C_POLL, 2, 3)
    a("s_branch L_go\nL_nopoll:")
    lds_wait(C_POLL, 1, 2, 3)
    a("L_go:")
    stamp(4)
    for i, v in enumerate((10, 12, 13, 14)): a(f"global_load_dwordx4 {vr(PL+4*i,4)}, v{v}, {pWs} sc1")
    for i, v in enumerate((11, 15)): a(f"global_load_dwordx4 {vr(GL+4*i,4)}, v{v}, {pWs} sc1")
    hY, hU, hG, hO, hP = 20, 21, 22, 23, 24
    a(f"""s_lshl_b32 s8, {sW}, 8
v_lshlrev_b32 v2, 2, v1
v_add_u32 v2, s8, v2
v_add_u32 v{hY}, {Y0}, v2
v_add_u32 v{hG}, {G0}, v2
v_and_b32 v2, 3, v1
v_mul_u32_u24 v3, {USTR_PH}, v2
v_lshlrev_b32 v{hP}, 8, v2
v_add_u32 v{hP}, {PR0}, v{hP}
v_lshrrev_b32 v2, 2, v1
v_lshlrev_b32 v2, 1, v2
v_sub_u32 v3, v3, v2
s_lshl_b32 s9, {sW}, 5
s_sub_u32 s9, {U0 + 1022}, s9
v_add_u32 v{hU}, s9, v3
s_lshl_b32 s9, {sW}, 6
v_add_u32 v2, s9, v1
v_mul_u32_u24 v{hO}, 896, v2
s_lshl_b32 s9, {sP}, 2
v_add_u32 v{hO}, s9, v{hO}
v_mov_b32 v30, 0
v_mov_b32 v31, 0""")
    for i in range(4): a(f"ds_write_b128 v16, {vr(PL+4*i,4)} offset:{256*(3-i)}")
    stamp(5)
    lds_arrive(C_U, 2, 3)
    for i in range(2): a(f"ds_write_b128 v17, {vr(GL+4*i,4)} offset:{4096*i}")
    lds_arrive(C_G, 2, 3)
    lds_wait(C_G, 4, 2, 3)
    lds_wait(C_U, 4, 2, 3)
    if o["prio"]: a("s_setprio 0")
    a(f"s_add_u32 s9, {sW}, 1\ns_mov_b32 s10, 0")
    a(f"L_help:\ns_mov_b32 s65, 0\nL_hwait:\nds_read_b32 v3, v{hP}\ns_waitcnt lgkmcnt(0)\nv_cmp_gt_u32 vcc, s9, v3\ns_cbranch_vccz L_hgo\ns_sleep 1\ns_add_u32 s65, s65, 1\ns_bitcmp0_b32 s65, 19\ns_cbranch_scc1 L_hwait\nL_hgo:")
    a(f"""ds_read_b32 v26, v{hY}
ds_read_b32 v27, v{hY} offset:8192
ds_read_b32 v28, v{hY} offset:16384
ds_read_b32 v29, v{hY} offset:24576
ds_read_u16_d16_hi v30, v{hU}
ds_read_u16_d16_hi v31, v{hU} offset:{USTR}
ds_read_b32 v25, v{hG}
v_add_u32 v{hY}, 1024, v{hY}
v_add_u32 v{hG}, 1024, v{hG}
v_subrev_u32 v{hU}, 128, v{hU}
s_add_u32 s9, s9, 4
s_add_u32 s10, s10, 1
s_waitcnt lgkmcnt(0)
v_pk_mul_f32 v[28:29], v[28:29], v[30:31]
v_pk_add_f32 v[26:27], v[26:27], v[28:29] neg_lo:[0,1] neg_hi:[0,1]
v_fma_f32 v26, v25, v26, v28
v_fma_f32 v27, v25, v27, v29
v_cvt_pk_bf16_f32 v32, v26, v27
global_store_dword v{hO}, v32, {pOut}
v_add_u32 v{hO}, {256*896}, v{hO}
s_cmp_lt_u32 s10, 8
s_cbranch_scc1 L_help""")
    stamp(6)
    if o["stamps"]:
        a("s_waitcnt vmcnt(0)"); stamp(7)
    a("L_tend:")
    dump_stamps(8)
    a("s_endpgm\nL_g7:\ns_waitcnt vmcnt(0)\ns_branch L_gate")

    a("L_kwave:")
    sW4, sCh, sHf = "s8", "s9", "s10"
    RAW, SK, EX = 16, 24, 32
    vPa, vSw, vRa, vRb, vFold, vFoldB = 48, 52, 53, 54, 55, 56
    a(f"""s_getpc_b64 s[12:13]
L_pc:
s_sub_u32 s12, s12, L_pc-{NAME}_kernel
s_subb_u32 s13, s13, 0
v_and_b32 v2, 127, v0
v_lshlrev_b32 v2, 7, v2
v_min_u32 v2, L_codeend-{NAME}_kernel-4, v2
global_load_dword v255, v2, s[12:13]
s_sub_u32 {sW4}, {sW}, 4
s_lshr_b32 {sCh}, {sW4}, 1
s_and_b32 {sHf}, {sW4}, 1
s_lshl_b32 s11, {sP}, 1
s_add_u32 s11, s11, {sCh}
s_lshl_b32 s14, s11, 9
s_lshl_b32 s15, {sHf}, 8
s_add_u32 s14, s14, s15
v_lshl_add_u32 v3, v1, 2, s14
s_lshl_b32 s14, s11, 12
s_lshl_b32 s15, {sHf}, 11
s_add_u32 s14, s14, s15
v_lshl_add_u32 v4, v1, 4, s14
s_lshl_b32 s14, {sP}, 2
s_waitcnt lgkmcnt(0)
s_cmp_eq_u32 {sG}, 7
s_cbranch_scc1 L_kinit""")
    for i, p in enumerate((pAre, pAim, pBre, pBim, pCre, pCim)): a(f"global_load_dword v{RAW+i}, v3, {p}")
    a(f"global_load_dwordx4 {vr(SK,4)}, v4, {pSk}\nglobal_load_dwordx4 {vr(SK+4,4)}, v4, {pSk} offset:1024")
    a(f"s_load_dword s66, {pLdt}, s14\ns_load_dword s67, {pDs}, s14\ns_load_dword s68, {pSd}, s14")
    a("L_kinit:")
    a(f"""v_mov_b32 v8, 0
v_mov_b32 v9, 0
v_mov_b32 v10, 0
v_mov_b32 v11, 0
v_subrev_u32 v5, 256, v0
v_lshlrev_b32 v5, 4, v5
ds_write_b128 v5, v[8:11] offset:{P0}
ds_write_b128 v5, v[8:11] offset:{P0 + 4096}
v_lshrrev_b32 v5, 2, v1
v_mul_u32_u24 v5, {USTR_PH}, v5
v_and_b32 v6, 3, v1
v_lshl_add_u32 v5, v6, 4, v5
ds_write_b128 v5, v[8:11] offset:{U0 + 1024}
v_bfe_u32 v5, v1, 1, 2
v_mul_u32_u24 v5, {KSTR}, v5
v_and_b32 v6, 1, v1
v_lshl_add_u32 v5, v6, 4, v5
ds_write_b128 v5, v[8:11] offset:{K0}
s_waitcnt lgkmcnt(0)
s_barrier
s_cmp_eq_u32 {sG}, 7
s_cbranch_scc1 L_end""")
    a(f"""s_mul_i32 s11, {sCh}, {PSTR}
s_add_u32 s11, s11, {P0}
s_sub_u32 s15, s11, {4 * 0x4280}
s_lshl_b32 s14, {sHf}, 10
v_lshl_add_u32 v2, v1, 3, s14
v_cvt_f32_u32 v5, v2
v_cmp_gt_u32 vcc, 128, v2
v_lshl_add_u32 v2, v2, 2, s11""")
    for ps in range(2):
        for i in range(4):
            c0 = 512*ps + 2*i
            d0, d1 = EX + 8*ps + 2*i, EX + 8*ps + 2*i + 1
            a(f"v_add_f32 v6, {hx(f2u(float(c0)))}, v5\nv_add_f32 v7, {hx(f2u(float(c0+1)))}, v5\nv_cvt_pk_bf16_f32 v6, v6, v7")
            a(f"v_and_b32 v{d0}, 0xffff, v6\nv_lshrrev_b32 v{d1}, 16, v6")
            a(f"v_lshl_add_u32 v{d0}, v{d0}, 2, s15\nv_lshl_add_u32 v{d1}, v{d1}, 2, s15")
            if ps == 0:
                a(f"v_add_u32 v6, {8*i}, v2\nv_add_u32 v7, {8*i+4}, v2\nv_cndmask_b32 v{d0}, v{d0}, v6, vcc\nv_cndmask_b32 v{d1}, v{d1}, v7, vcc")
    a(f"""v_and_b32 v5, 31, v1
v_lshrrev_b32 v6, 5, v1
v_lshlrev_b32 v7, 5, v5
v_lshl_add_u32 v7, v6, 4, v7
v_add_u32 v{vPa}, s11, v7
v_cmp_eq_u32 vcc, 0, v6
v_lshlrev_b32 v7, 4, v5
v_add_u32 v7, {4*256}, v7
v_lshlrev_b32 v8, 3, v5
v_add_u32 v8, {4*384}, v8
v_cndmask_b32 v9, v8, v7, vcc
v_add_u32 v{vPa+1}, s11, v9
v_add_u32 v7, 8, v7
v_add_u32 v8, 256, v8
v_cndmask_b32 v9, v8, v7, vcc
v_add_u32 v{vPa+2}, s11, v9
v_lshlrev_b32 v7, 2, v5
v_lshl_add_u32 v7, v6, 9, v7
v_add_u32 v7, {4*512}, v7
v_add_u32 v{vPa+3}, s11, v7
s_mul_i32 s14, {sW4}, {SSTR}
s_add_u32 s14, s14, {SC0}
v_lshl_add_u32 v{vSw}, v1, 2, s14
v_mul_u32_u24 v7, {SROW}, v5
v_lshl_add_u32 v7, v6, 4, v7
v_add_u32 v{vRa}, s14, v7
v_add_u32 v{vRb}, {21*SROW}, v{vRa}
s_mov_b32 {sHI}, 0xffff0000
s_waitcnt lgkmcnt(0)
s_lshl_b32 s14, {sCh}, 4
s_sub_u32 s14, 16, s14
s_lshl_b32 s66, s66, s14
s_and_b32 s66, s66, {sHI}
s_lshl_b32 s67, s67, s14
s_and_b32 s67, s67, {sHI}
s_lshl_b32 s68, s68, s14
s_and_b32 s68, s68, {sHI}
s_cmp_eq_u32 {sHf}, 0
s_cselect_b32 s67, s67, 0
s_cselect_b32 s68, s68, 0
v_cmp_eq_u32 vcc, 0, v1
v_mov_b32 v7, s67
v_mov_b32 v8, s68
v_cndmask_b32 v{vFold}, 0, v7, vcc
v_cndmask_b32 v{vFoldB}, 0, v8, vcc""")
    L2E = math.log2(math.e); L2Eh = struct.unpack("<f", struct.pack("<f", L2E))[0]; L2El = L2E - L2Eh
    a(f"""v_mov_b32 v5, s66
v_mul_f32 v6, {hx(f2u(L2Eh))}, v5
v_mov_b32 v8, {hx(f2u(L2Eh))}
v_fma_f32 v7, v5, v8, -v6
v_fmac_f32 v7, {hx(f2u(L2El))}, v5
v_exp_f32 v6, v6
v_mul_f32 v7, {hx(f2u(math.log(2.0)))}, v7
v_fma_f32 v6, v6, v7, v6
v_cvt_pk_bf16_f32 v6, 0, v6
v_readfirstlane_b32 s66, v6""")
    I2P = 1.0 / (2.0 * math.pi); I2Ph = struct.unpack("<f", struct.pack("<f", I2P))[0]; I2Pl = I2P - I2Ph
    a(f"s_mov_b32 s69, {hx(f2u(I2Ph))}\ns_mov_b32 s70, 0")
    a(f"""s_mul_i32 s14, {sCh}, {KSTR}
s_lshl_b32 s15, {sHf}, 11
s_add_u32 s14, s14, s15
v_lshl_add_u32 v5, v1, 4, s14
v_lshlrev_b32 v6, 16, v{SK}
v_add_f32 v6, v6, v{vFoldB}
v_cvt_pk_bf16_f32 v6, v6, v6
v_mov_b32 v7, 0xffff
v_bfi_b32 v{SK}, v7, v6, v{SK}
ds_write_b128 v5, {vr(SK,4)} offset:{K0 + 2*KSTR + 32}
ds_write_b128 v5, {vr(SK+4,4)} offset:{K0 + 2*KSTR + 32 + 1024}""")
    stamp(1)
    D = 96; OA = 112; OB = 128
    for i in range(16): a(f"v_mov_b32 v{D+i}, 0")
    A2, TH, TL, M, PH = 58, 59, 60, 62, 63
    Z1, Z2, Z4, Z8, Z256, W, X, Yc, Fc = 64, 66, 68, 70, 72, 74, 76, 78, 80
    PK = 84
    a("L_round:")
    a(f"s_cmp_eq_u32 s70, 0\ns_cbranch_scc0 L_hi")
    for i in range(6): a(f"v_lshlrev_b32 v{8+i}, 16, v{RAW+i}")
    a("s_branch L_unp\nL_hi:")
    for i in range(6): a(f"v_and_b32 v{8+i}, {sHI}, v{RAW+i}")
    a("L_unp:")
    a(f"""v_mul_f32 v8, s66, v8
v_mul_f32 v9, s66, v9
v_mul_f32 v{A2}, {hx(f2u(L2Eh))}, v8
v_mul_f32 v{TH}, s69, v9
v_fma_f32 v{TL}, v9, s69, -v{TH}
v_fmac_f32 v{TL}, {hx(f2u(I2Pl))}, v9""")
    def cmul(d, x, z):
        a(f"v_pk_mul_f32 {vr(d,2)}, {vr(x,2)}, {vr(z,2)} op_sel_hi:[0,1]" if d != x else f"v_pk_mul_f32 v[14:15], {vr(x,2)}, {vr(z,2)} op_sel_hi:[0,1]")
        t = d if d != x else 14
        a(f"v_pk_fma_f32 {vr(d,2)}, {vr(x,2)}, {vr(z,2)}, {vr(t,2)} op_sel:[1,1,0] op_sel_hi:[1,0,1] neg_lo:[1,0,0]")
    for e, Z in ((1, Z1), (8, Z8), (256, Z256)):
        if e == 1:
            a(f"v_exp_f32 v{M}, v{A2}\nv_fract_f32 v{PH}, v{TH}\nv_add_f32 v{PH}, v{PH}, v{TL}")
        else:
            c = hx(f2u(float(e)))
            a(f"v_mul_f32 v{M}, {c}, v{A2}\nv_mul_f32 v{PH}, {c}, v{TH}\nv_exp_f32 v{M}, v{M}\nv_fract_f32 v{PH}, v{PH}\nv_fmac_f32 v{PH}, {c}, v{TL}")
        a(f"v_cos_f32 v{Z}, v{PH}\nv_sin_f32 v{Z+1}, v{PH}")
        a(f"v_pk_mul_f32 {vr(Z,2)}, {vr(Z,2)}, {vr(M,2)} op_sel_hi:[1,0]")
    pk = [0]
    def put(row, src, neg):
        r = PK + (pk[0] % 8); pk[0] += 1
        a(f"v_cvt_pk_bf16_f32 v{r}, v{src}, {'-' if neg else ''}v{src+1}\nds_write_b32 v{vSw}, v{r} offset:{row*SROW}")
    cmul(W, 12, 10)
    a(f"v_mul_f32 v{W}, s66, v{W}\nv_mul_f32 v{W+1}, s66, v{W+1}")
    cmul(Z2, Z1, Z1); cmul(Z4, Z2, Z2)
    gch = []
    cur, oth = W, X
    def seq(rows_src):
        pass
    steps = []
    A_, B_ = X, Yc
    steps.append((None, W, None, 0))
    prev = W
    for r in range(1, 8):
        d = A_ if prev != A_ else B_
        steps.append((d, prev, Z1, r)); prev = d
    steps.append((W, W, Z256, 8)); prev = W
    for r in range(9, 12):
        d = A_ if prev != A_ else B_
        steps.append((d, prev, Z2, r)); prev = d
    steps += [(W, W, Z256, 12), (A_, W, Z4, 13), (W, W, Z256, 14), (A_, W, Z4, 15)]
    steps += [(W, W, Z256, 16 + i) for i in range(5)]
    fsteps = []
    F0, F1 = Fc, Fc + 2
    a(f"v_mov_b32 v{PK+7}, 0x3f80\nds_write_b32 v{vSw}, v{PK+7} offset:{21*SROW}")
    fsteps.append((None, Z8, None, 22))
    prev = Z8
    for jx in range(2, 32):
        d = F0 if prev != F0 else F1
        fsteps.append((d, prev, Z8, 21 + jx)); prev = d
    gi = fi = 0
    while gi < len(steps) or fi < len(fsteps):
        for lst, idx, neg in ((fsteps, fi, False), (steps, gi, True)):
            if idx < len(lst):
                d, x, z, row = lst[idx]
                if d is None: put(row, x, neg)
                else:
                    cmul(d, x, z); put(row, d, neg)
        gi += 1; fi += 1
    for s in range(8):
        ra, rb = OA + 4*(s % 4), OB + 4*(s % 4)
        a(f"ds_read_b128 {vr(ra,4)}, v{vRa} offset:{32*s}\nds_read_b128 {vr(rb,4)}, v{vRb} offset:{32*s}")
        if s >= 2:
            q = s - 2
            a(f"v_mfma_f32_32x32x16_bf16 {vr(D,16)}, {vr(OA+4*(q%4),4)}, {vr(OB+4*(q%4),4)}, {vr(D,16)}")
    for q in (6, 7):
        a(f"v_mfma_f32_32x32x16_bf16 {vr(D,16)}, {vr(OA+4*(q%4),4)}, {vr(OB+4*(q%4),4)}, {vr(D,16)}")
    a("s_add_u32 s70, s70, 1\ns_cmp_lt_u32 s70, 2\ns_cbranch_scc1 L_round")
    stamp(2)
    vKa, vUa, vYa, vPr = 2, 3, 4, 5
    a(f"""v_and_b32 v6, 3, v1
v_bfe_u32 v7, v1, 2, 2
v_lshrrev_b32 v8, 4, v1
v_add_u32 v9, v6, v7
v_lshlrev_b32 v9, 3, v9
v_lshl_add_u32 v9, v8, 6, v9
s_mul_i32 s14, {sW4}, {KSTR}
s_add_u32 s14, s14, {K0 + 8}
v_add_u32 v{vKa}, s14, v9
v_mul_u32_u24 v9, {USTR_PH}, v6
v_lshl_add_u32 v9, v8, 4, v9
v_lshlrev_b32 v7, 3, v7
v_sub_u32 v9, v9, v7
s_mul_i32 s14, {sW4}, {USTR}
s_add_u32 s14, s14, {U0 + 1016 - 32*31}
v_add_u32 v{vUa}, s14, v9
s_lshl_b32 s14, {sW4}, 13
s_add_u32 s14, s14, {Y0}
v_lshl_add_u32 v{vYa}, v1, 2, s14
s_lshl_b32 s14, {sW4}, 8
s_add_u32 s14, s14, {PR0}
v_lshl_add_u32 v{vPr}, v1, 2, s14
s_mul_i32 s14, {sCh}, {KSTR}
s_lshl_b32 s15, {sHf}, 11
s_add_u32 s14, s14, s15
v_lshl_add_u32 v10, v1, 4, s14
v_add_f32 v{D}, v{D}, v{vFold}""")
    for r in range(4): a(f"ds_add_f32 v{vPa}, v{D+r} offset:{4*r}")
    for r in range(4): a(f"ds_add_f32 v{vPa+1+r//2}, v{D+4+r} offset:{4*(r%2)}")
    for r in range(4): a(f"ds_add_f32 v{vPa+3}, v{D+8+r} offset:{128*r}")
    lds_arrive(C_P, 6, 7)
    lds_wait(C_P, 4, 6, 7)
    for ps in range(2):
        for i in range(8): a(f"ds_read_b32 v{64+8*ps+i}, v{EX+8*ps+i}")
    for ps in range(2):
        for i in range(4): a(f"v_cvt_pk_bf16_f32 v{80+4*ps+i}, v{64+8*ps+2*i}, v{64+8*ps+2*i+1}")
        a(f"ds_write_b128 v10, {vr(80+4*ps,4)} offset:{K0 + 32 + 1024*ps}")
    lds_arrive(C_K, 6, 7)
    lds_wait(C_K, 4, 6, 7)
    stamp(3)
    KOP, UOP, ACC, TR = 192, 64, 48, 32
    a("s_waitcnt vmcnt(0)")
    for mu in range(16):
        a(f"ds_read_b64_tr_b16 {vr(KOP+4*mu,2)}, v{vKa} offset:{256*mu}\nds_read_b64_tr_b16 {vr(KOP+4*mu+2,2)}, v{vKa} offset:{256*mu+32}")
    for i in range(3): a(f"v_mov_b32 v{TR+8+i}, 0")
    lds_wait(C_U, 4, 6, 7)
    if o["prio"]: a("s_setprio 2")
    stamp(4)
    def uload(nu):
        off = 32 * (31 - nu)
        return [f"ds_read_b64 {vr(UOP+4*nu,2)}, v{vUa} offset:{off}", f"ds_read_b64 {vr(UOP+4*nu+2,2)}, v{vUa} offset:{off+8}"]
    def epi(c):
        A = ACC + 4 * (c % 4)
        cur = TR + 4 * (c % 2); prv = TR + 4 * ((c + 1) % 2)
        pT3 = (ACC + 4 * ((c - 1) % 4) + 3) if c > 0 else TR + 8
        pT2 = prv if c > 0 else TR + 9
        pT1 = prv + 1 if c > 0 else TR + 10
        dp = "row_mask:0xf bank_mask:0xf"
        L = [f"v_add_f32_dpp v{cur}, v{pT3}, v{A+2} wave_ror:1 {dp}",
             f"v_add_f32_dpp v{cur+1}, v{pT2}, v{A+1} wave_ror:1 {dp}",
             f"v_add_f32_dpp v{cur}, v{A+3}, v{A+2} wave_shr:1 {dp}",
             f"v_add_f32_dpp v{cur+2}, v{pT1}, v{A} wave_ror:1 {dp}",
             None,
             f"v_add_f32_dpp v{cur+1}, v{cur}, v{A+1} wave_shr:1 {dp}",
             None, None,
             f"v_add_f32_dpp v{cur+2}, v{cur+1}, v{A} wave_shr:1 {dp}",
             f"ds_write_b32 v{vYa}, v{cur+2} offset:{256*c}"]
        if c % 2 == 1 or c < 4:
            L += [f"v_mov_b32 v{cur+3}, {c+1}", f"ds_write_b32 v{vPr}, v{cur+3}"]
        return L
    for nu in range(3):
        for s in uload(nu): a(s)
    LAG = o.get("lag", 1)
    queue = []
    for c in range(32):
        nm = c // 2 + 1
        pend = list(uload(c + 3)) if c + 3 < 32 else []
        if c - LAG >= 0: queue += epi(c - LAG)
        order = list(range(nm - 1, -1, -1))
        for n, mu in enumerate(order):
            A = ACC + 4 * (c % 4)
            a(f"v_mfma_f32_16x16x32_bf16 {vr(A,4)}, {vr(UOP+4*(c-2*mu),4)}, {vr(KOP+4*mu,4)}, {'0' if n == 0 else vr(A,4)}")
            slots = 2
            last = n == nm - 1
            while (slots > 0 or last) and (pend or queue):
                if pend and (n >= 0) and (not queue or n < 2):
                    a(pend.pop(0)); slots -= 1; continue
                if n < 2 and nm > 4 and not last: break
                if not queue: break
                x = queue.pop(0)
                if x is None:
                    if slots == 2 and not last: break
                    continue
                a(x); slots -= 2 if x.startswith("ds_write") else 1
    for c in range(32 - LAG, 32): queue += epi(c)
    for x in queue:
        if x: a(x)
    stamp(5)
    dump_stamps(6)
    a("L_end:\ns_endpgm\nL_codeend:")
    body = a.finish()
    hdr = open("cdna_kernels/" + NAME + ".s.ref").read().split("; Override launch")[0]
    txt = hdr + f"""; One launch: 7 groups of 32 workgroups exchange transposed tiles through d_ws, each workgroup then
; owns two channels (S4 kernel table, two Toeplitz convolutions on MFMA, gated mix).
; @launch grid=(256,1,1) block=(512,1,1) lds={LDS_BYTES}
.amdgcn_target "amdgcn-amd-amdhsa--gfx950"
.text
.globl {NAME}_kernel
.p2align 8
.type {NAME}_kernel,@function
{NAME}_kernel:
{body}.section .rodata,"a"
.p2align 6
.amdhsa_kernel {NAME}_kernel
  .amdhsa_next_free_vgpr 256
  .amdhsa_next_free_sgpr 102
  .amdhsa_accum_offset 256
  .amdhsa_group_segment_fixed_size 0
  .amdhsa_kernarg_size 152
  .amdhsa_user_sgpr_count 2
  .amdhsa_user_sgpr_kernarg_segment_ptr 1
  .amdhsa_system_sgpr_workgroup_id_x 1
.end_amdhsa_kernel
"""
    return txt, a.nops

if __name__ == "__main__":
    out = sys.argv[1]
    kw = {k: int(v) for k, v in (x.split("=") for x in sys.argv[2:])}
    txt, nops = gen(**kw)
    open(out, "w").write(txt)
    print("wrote", out, "lines", txt.count("\n"), "nops", nops, "lds", LDS_BYTES)
```

```python
import sys, struct, math
from asmlib import Asm

NAME = "gated_mix__ssm_conv_s4__ssm_conv_h3__prompt"
DEFAULT = dict(xcdmap=1, stamps=0, sleep=2, prio=1, hprio=3, mprio=0, touch=1, nacc=8, lsl=2)

KSTR = 4160; K0 = 0
USTR_PH = 1088; USTR = 4 * USTR_PH; U0 = 4 * KSTR
G0 = U0 + 4 * USTR
P0 = G0 + 8192; PSTR = 3072
FL0 = P0 + 4 * PSTR
C_SIG, C_POLL, C_U, C_P, C_K, C_G = (FL0 + 4 * i for i in range(6))
PR0 = FL0 + 256
Y0 = PR0 + 1024
SC0 = Y0 + 32768; SROW = 272; SSTR = 53 * SROW
LDS_BYTES = SC0 + 4 * SSTR
WS_G = 224 * 16384
WS_FL = WS_G + 8192
WS_STAMP = 64 << 20

def f2u(x): return struct.unpack("<I", struct.pack("<f", x))[0]
def hx(x): return "0x%08x" % (x & 0xffffffff)
def vr(a, n=1): return f"v{a}" if n == 1 else f"v[{a}:{a+n-1}]"

sG, sJ, sW, sP = "s4", "s5", "s6", "s7"
pU, pAre, pAim, pBre, pBim, pCre, pCim, pLdt = (f"s[{16+2*i}:{17+2*i}]" for i in range(8))
pDs, pQ, pK, pV, pSh, pSk, pSd, pGw = (f"s[{32+2*i}:{33+2*i}]" for i in range(8))
pOut, pDbg, pWs = "s[48:49]", "s[50:51]", "s[52:53]"
srdK = "s[56:59]"
sHI, sSel0, sSel1 = "s62", "s63", "s64"

def gen(**kw):
    o = dict(DEFAULT); o.update(kw)
    a = Asm()
    nst = [0]
    def stamp(i):
        if o["stamps"] == 3: a(f"s_memtime s[{72+2*i}:{73+2*i}]")
        elif o["stamps"]: a(f"s_memrealtime s[{72+2*i}:{73+2*i}]")
    def dump_stamps(n):
        if not o["stamps"]: return
        a("s_waitcnt lgkmcnt(0)")
        if o["stamps"] == 2:
            base = 1 if n == 8 else 9
            a("s_mov_b64 exec, 1\nv_mov_b32 v2, 0\ns_not_b32 s72, s72")
            idx = [0, 1, 3, 4, 5, 6, 7] if n == 8 else [0, 1, 2, 3, 4, 5]
            if n == 8: a(f"s_cmp_eq_u32 {sG}, 7\ns_cbranch_scc1 L_end")
            for q, i in enumerate(idx):
                a(f"v_mov_b32 v3, s{72+2*i}\nglobal_atomic_umax v2, v3, {pDbg} offset:{4*(base+q)} sc1")
            a("s_waitcnt vmcnt(0)")
            return
        a(f"s_lshl_b32 s8, s2, 3\ns_add_u32 s8, s8, {sW}\ns_lshl_b32 s8, s8, 6\ns_add_u32 s8, s8, {WS_STAMP}")
        if o["stamps"] == 4 and n == 8:
            a(f"s_mov_b64 exec, 0xffff\nv_lshl_add_u32 v2, v1, 2, s8\nglobal_store_dword v2, v41, {pWs}\ns_waitcnt vmcnt(0)")
            return
        a("s_mov_b64 exec, 1\nv_mov_b32 v2, s8")
        for i in range(n):
            a(f"v_mov_b32 v3, s{72+2*i}\nglobal_store_dword v2, v3, {pWs} offset:{4*i}")
        a("s_waitcnt vmcnt(0)")
    def lds_arrive(addr_const, vtmp, vone):
        a(f"s_mov_b64 exec, 1\nv_mov_b32 v{vtmp}, {addr_const}\nv_mov_b32 v{vone}, 1\nds_add_u32 v{vtmp}, v{vone}\ns_mov_b64 exec, -1")
    lab = [0]
    def lds_wait(addr_const, target, vtmp, vval, slp=None):
        slp = o['lsl'] if slp is None else slp
        lab[0] += 1
        L = f"L_w{lab[0]}"
        a(f"v_mov_b32 v{vtmp}, {addr_const}\ns_mov_b32 s65, 0")
        a(f"{L}:\nds_read_b32 v{vval}, v{vtmp}\ns_waitcnt lgkmcnt(0)\nv_cmp_le_u32 vcc, {target}, v{vval}\ns_cbranch_vccnz {L}_ok")
        a(f"s_sleep {slp}\ns_add_u32 s65, s65, 1\ns_bitcmp0_b32 s65, 19\ns_cbranch_scc1 {L}\n{L}_ok:")

    a("s_cmp_ge_u32 s2, 256\ns_cbranch_scc1 L_end")
    stamp(0)
    a("s_load_dwordx16 s[16:31], s[0:1], 0\ns_load_dwordx16 s[32:47], s[0:1], 64")
    a("s_load_dwordx4 s[48:51], s[0:1], 128\ns_load_dwordx2 s[52:53], s[0:1], 144")
    a("v_lshrrev_b32 v2, 6, v0\nv_and_b32 v1, 63, v0")
    if o["xcdmap"]: a(f"s_and_b32 {sG}, s2, 7\ns_lshr_b32 {sJ}, s2, 3")
    else: a(f"s_lshr_b32 {sG}, s2, 5\ns_and_b32 {sJ}, s2, 31")
    a(f"v_readfirstlane_b32 {sW}, v2")
    a(f"s_lshl_b32 {sP}, {sG}, 5\ns_add_u32 {sP}, {sP}, {sJ}")
    a(f"s_cmp_ge_u32 {sW}, 4\ns_cbranch_scc1 L_kwave")

    vB, vB2, vKA = 10, 11, 12
    U_, V_, K_, SH = 16, 24, 32, 44
    GU, GW = 48, 56
    a(f"""s_lshr_b32 s8, {sW}, 1
s_lshl_b32 s8, s8, 5
s_lshl_b32 s9, {sJ}, 6
s_add_u32 s8, s8, s9
s_mul_i32 s8, s8, 896
s_and_b32 s9, {sW}, 1
s_lshl_b32 s10, s9, 6
s_lshl_b32 s11, {sG}, 7
s_add_u32 s10, s10, s11
s_add_u32 s8, s8, s10
v_lshrrev_b32 v2, 4, v1
v_and_b32 v3, 15, v1
v_mul_u32_u24 v4, {8*896}, v2
v_lshl_add_u32 v4, v3, 2, v4
v_add_u32 v{vB}, s8, v4
v_add_u32 v{vB2}, {4*896}, v{vB}
v_subrev_u32 v{vKA}, {3*896}, v{vB}
s_lshl_b32 s12, s2, 3
s_lshl_b32 s13, {sW}, 1
s_add_u32 s12, s12, s13
v_lshrrev_b32 v5, 5, v1
v_add_u32 v5, s12, v5
v_and_b32 v6, 31, v1
v_mul_u32_u24 v6, 28, v6
v_mul_u32_u24 v7, 896, v5
v_add_u32 v7, v7, v6
s_lshl_b32 s10, s10, 2
v_lshl_add_u32 v8, v3, 4, s10
s_cmp_eq_u32 {sG}, 7
s_waitcnt lgkmcnt(0)
s_cbranch_scc1 L_gonly_ld""")
    a(f"s_mov_b32 s56, s36\ns_mov_b32 s57, s37\ns_mov_b32 s58, 1835008\ns_mov_b32 s59, 0x20000")
    for i in range(3): a(f"buffer_load_dword v{K_+i}, v{vKA}, {srdK}, 0 offen offset:{896*i}")
    for i in range(8):
        b, off = (vB, 896*i) if i < 4 else (vB2, 896*(i-4))
        a(f"buffer_load_dword v{K_+3+i}, v{b}, {srdK}, 0 offen offset:{off}")
    a(f"global_load_dwordx4 v[{SH}:{SH+3}], v8, {pSh}")
    for i in range(8):
        b, off = (vB, 896*i) if i < 4 else (vB2, 896*(i-4))
        a(f"global_load_dword v{V_+i}, v{b}, {pV} offset:{off}")
    for i in range(8):
        b, off = (vB, 896*i) if i < 4 else (vB2, 896*(i-4))
        a(f"global_load_dword v{U_+i}, v{b}, {pU} offset:{off}")
    a("L_gonly_ld:")
    NON = 63
    def gate_loads():
        a(f"global_load_dwordx4 v[{GU}:{GU+3}], v7, {pU}\nglobal_load_dwordx3 v[{GU+4}:{GU+6}], v7, {pU} offset:16")
        a(f"global_load_dwordx4 v[{GW}:{GW+3}], v6, {pGw}\nglobal_load_dwordx3 v[{GW+4}:{GW+6}], v6, {pGw} offset:16")
        a(f"global_load_dword v{NON}, v13, {pDbg} sc1")
    a(f"s_mov_b32 {sHI}, 0xffff0000\ns_mov_b32 {sSel0}, 0x05040100\ns_mov_b32 {sSel1}, 0x07060302")
    if o["prio"]: a("s_setprio 1")
    a(f"""s_lshl_b32 s8, {sG}, 5
s_and_b32 s9, {sW}, 1
s_lshl_b32 s9, s9, 4
s_add_u32 s8, s8, s9
s_lshl_b32 s8, s8, 14
s_lshl_b32 s9, {sJ}, 9
s_add_u32 s8, s8, s9
s_lshr_b32 s9, {sW}, 1
s_lshl_b32 s9, s9, 6
s_add_u32 s8, s8, s9
v_lshlrev_b32 v9, 14, v3
v_lshl_add_u32 v9, v2, 4, v9
v_add_u32 v9, s8, v9
s_lshl_b32 s8, s2, 2
s_add_u32 s8, s8, {sW}
s_lshl_b32 s8, s8, 3
s_add_u32 s8, s8, {WS_G}
v_mov_b32 v5, s8
v_mov_b32 v13, 0
s_barrier
s_cmp_eq_u32 {sG}, 7
s_cbranch_scc1 L_g7""")
    KU, WT, AC, VT, PC = 64, 86, 96, 112, 120
    for i in range(3):
        a(f"v_lshlrev_b32 v{KU+2*i}, 16, v{K_+i}\nv_and_b32 v{KU+2*i+1}, {sHI}, v{K_+i}")
    for ch in range(2):
        for t in range(4):
            src = SH + 2*ch + t//2
            a(f"v_lshlrev_b32 v{WT+2*t+ch}, 16, v{src}" if t % 2 == 0 else f"v_and_b32 v{WT+2*t+ch}, {sHI}, v{src}")
    for i in range(3, 11):
        a(f"v_lshlrev_b32 v{KU+2*i}, 16, v{K_+i}\nv_and_b32 v{KU+2*i+1}, {sHI}, v{K_+i}")
    stamp(1)
    for t in range(4):
        for r in range(8):
            k = KU + 2*(r + 3 - t)
            if t == 0: a(f"v_pk_mul_f32 {vr(AC+2*r,2)}, {vr(k,2)}, {vr(WT,2)}")
            else: a(f"v_pk_fma_f32 {vr(AC+2*r,2)}, {vr(k,2)}, {vr(WT+2*t,2)}, {vr(AC+2*r,2)}")
    for r in range(8):
        t = VT + 2*(r % 4)
        a(f"v_lshlrev_b32 v{t}, 16, v{V_+r}\nv_and_b32 v{t+1}, {sHI}, v{V_+r}")
        a(f"v_pk_mul_f32 {vr(AC+2*r,2)}, {vr(AC+2*r,2)}, {vr(t,2)}")
    gate_loads()
    def transpose(base):
        X = [base + 3 - r for r in range(4)]
        a(f"v_permlane32_swap_b32 v{X[0]}, v{X[2]}\nv_permlane32_swap_b32 v{X[1]}, v{X[3]}")
        a(f"v_permlane16_swap_b32 v{X[0]}, v{X[1]}\nv_permlane16_swap_b32 v{X[2]}, v{X[3]}")
    for ch in range(2):
        base = PC + 8 + 4*ch
        for rho in range(4):
            a(f"v_cvt_pk_bf16_f32 v{base+3-rho}, v{AC+2*(rho+4)+ch}, v{AC+2*rho+ch}")
    for ch in range(2): transpose(PC + 8 + 4*ch)
    for ch in range(2):
        a(f"global_store_dwordx4 v9, {vr(PC+8+4*ch,4)}, {pWs} offset:{(2+ch)*128} sc1")
    for ch in range(2):
        base = PC + 4*ch
        for rho in range(4):
            a(f"v_perm_b32 v{base+3-rho}, v{U_+rho}, v{U_+rho+4}, {sSel0 if ch == 0 else sSel1}")
    for ch in range(2): transpose(PC + 4*ch)
    for ch in range(2):
        a(f"global_store_dwordx4 v9, {vr(PC+4*ch,4)}, {pWs} offset:{ch*128} sc1")
    stamp(2)
    a("s_waitcnt vmcnt(0)")
    stamp(3)
    lds_arrive(C_SIG, 2, 3)
    a("L_gate:")
    def nonce_ok(tag):
        a(f"s_mov_b32 s65, 0\nL_n{tag}:\nv_readfirstlane_b32 s66, v{NON}\ns_cmp_lg_u32 s66, 0\ns_cbranch_scc1 L_n{tag}_ok")
        a(f"s_sleep 4\nglobal_load_dword v{NON}, v13, {pDbg} sc1\ns_waitcnt vmcnt(0)\ns_add_u32 s65, s65, 1\ns_bitcmp0_b32 s65, 16\ns_cbranch_scc1 L_n{tag}\nL_n{tag}_ok:")
    nonce_ok("a")
    a(f"s_cmp_lg_u32 {sW}, 0\ns_cbranch_scc1 L_noflag\ns_cmp_eq_u32 {sG}, 7\ns_cbranch_scc1 L_noflag")
    lds_wait(C_SIG, 4, 2, 3, 1)
    a(f"s_lshl_b32 s8, {sP}, 7\ns_add_u32 s8, s8, {WS_FL}\ns_mov_b64 exec, 1\nv_mov_b32 v2, s8\nglobal_store_dword v2, v{NON}, {pWs} sc1\ns_mov_b64 exec, -1")
    a("L_noflag:")
    a("v_mov_b32 v2, 0")
    for i in range(7): a(f"v_dot2_f32_bf16 v2, v{GU+i}, v{GW+i}, v2")
    for sh in (1, 2, 4, 8): a(f"v_add_f32_dpp v2, v2, v2 row_shr:{sh} row_mask:0xf bank_mask:0xf bound_ctrl:0")
    a("v_add_f32_dpp v2, v2, v2 row_bcast:15 row_mask:0xa bank_mask:0xf")
    a(f"v_cvt_pk_bf16_f32 v2, 0, v2\nv_mul_f32 v2, {hx(f2u(-math.log2(math.e)))}, v2\nv_exp_f32 v2, v2\nv_add_f32 v2, 1.0, v2\nv_rcp_f32 v2, v2")
    a(f"v_readlane_b32 s8, v2, 31\nv_mov_b32 v3, s66\nv_cvt_pk_bf16_f32 v2, s8, v2")
    a("s_mov_b32 exec_lo, 0\ns_mov_b32 exec_hi, 0x80000000")
    a(f"global_store_dwordx2 v5, v[2:3], {pWs} sc1")
    a("s_mov_b64 exec, -1")
    a(f"s_cmp_eq_u32 {sG}, 7\ns_cbranch_scc1 L_tend")
    PL, GL = 136, 152
    a(f"""s_lshl_b32 s8, {sP}, 14
v_lshlrev_b32 v10, 4, v0
v_add_u32 v11, {WS_G}, v10
v_add_u32 v10, s8, v10
v_add_u32 v12, 4096, v10
v_add_u32 v13, 8192, v10
v_add_u32 v14, 12288, v10
v_add_u32 v15, 4096, v11
v_and_b32 v2, 3, v0
v_mul_u32_u24 v16, {USTR_PH}, v2
v_bfe_u32 v2, v0, 3, 2
v_mul_u32_u24 v3, {USTR}, v2
v_add_u32 v16, v16, v3
v_bfe_u32 v2, v0, 2, 1
v_lshlrev_b32 v2, 4, v2
v_lshrrev_b32 v3, 5, v0
v_lshl_add_u32 v2, v3, 5, v2
v_sub_u32 v16, v16, v2
v_add_u32 v16, {U0 + 1008 - 768}, v16
v_lshlrev_b32 v17, 4, v0
v_add_u32 v17, {G0}, v17""")
    a(f"s_cmp_lg_u32 {sW}, 0\ns_cbranch_scc1 L_nopoll")
    a(f"s_lshl_b32 s8, {sG}, 12\ns_add_u32 s8, s8, {WS_FL}\nv_and_b32 v2, 31, v1\nv_lshl_add_u32 v2, v2, 7, s8")
    a(f"s_mov_b32 s65, 0\nL_poll:\nglobal_load_dword v3, v2, {pWs} sc1\ns_waitcnt vmcnt(0)\nv_cmp_ne_u32 vcc, s66, v3\ns_cbranch_vccz L_polled\ns_sleep {o['sleep']}\ns_add_u32 s65, s65, 1\ns_bitcmp0_b32 s65, 16\ns_cbranch_scc1 L_poll")
    a("L_polled:")
    lds_arrive(C_POLL, 2, 3)
    a("s_branch L_go\nL_nopoll:")
    lds_wait(C_POLL, 1, 2, 3)
    a("L_go:")
    stamp(4)
    for i, v in enumerate((10, 12, 13, 14)): a(f"global_load_dwordx4 {vr(PL+4*i,4)}, v{v}, {pWs} sc1")
    for i, v in enumerate((11, 15)): a(f"global_load_dwordx4 {vr(GL+4*i,4)}, v{v}, {pWs} sc1")
    hY, hU, hG, hO, hP = 20, 21, 22, 23, 24
    a(f"""s_lshl_b32 s8, {sW}, 8
v_lshlrev_b32 v2, 2, v1
v_add_u32 v2, s8, v2
v_add_u32 v{hY}, {Y0}, v2
v_add_u32 v{hG}, {G0}, v2
v_and_b32 v2, 3, v1
v_mul_u32_u24 v3, {USTR_PH}, v2
v_lshlrev_b32 v{hP}, 8, v2
v_add_u32 v{hP}, {PR0}, v{hP}
v_lshrrev_b32 v2, 2, v1
v_lshlrev_b32 v2, 1, v2
v_sub_u32 v3, v3, v2
s_lshl_b32 s9, {sW}, 5
s_sub_u32 s9, {U0 + 1022}, s9
v_add_u32 v{hU}, s9, v3
s_lshl_b32 s9, {sW}, 6
v_add_u32 v2, s9, v1
v_mul_u32_u24 v{hO}, 896, v2
s_lshl_b32 s9, {sP}, 2
v_add_u32 v{hO}, s9, v{hO}
v_mov_b32 v30, 0
v_mov_b32 v31, 0""")
    for i in range(4): a(f"ds_write_b128 v16, {vr(PL+4*i,4)} offset:{256*(3-i)}")
    stamp(5)
    lds_arrive(C_U, 2, 3)
    a(f"s_mov_b32 s65, 0\nL_gchk:\ns_waitcnt vmcnt(0)")
    a(f"v_cmp_ne_u32 vcc, s66, v{GL+1}\nv_cmp_ne_u32 s[8:9], s66, v{GL+3}\nv_cmp_ne_u32 s[12:13], s66, v{GL+5}\nv_cmp_ne_u32 s[14:15], s66, v{GL+7}")
    a("s_or_b64 s[8:9], s[8:9], vcc\ns_or_b64 s[12:13], s[12:13], s[14:15]\ns_or_b64 s[8:9], s[8:9], s[12:13]\ns_cbranch_scc0 L_gok")
    a("s_sleep 2")
    for i, v in enumerate((11, 15)): a(f"global_load_dwordx4 {vr(GL+4*i,4)}, v{v}, {pWs} sc1")
    a("s_add_u32 s65, s65, 1\ns_bitcmp0_b32 s65, 16\ns_cbranch_scc1 L_gchk\ns_waitcnt vmcnt(0)\nL_gok:")
    for i in range(2):
        g = GL + 4*i
        a(f"v_and_b32 v{g+3}, {sHI}, v{g+2}\nv_lshlrev_b32 v{g+2}, 16, v{g+2}\nv_and_b32 v{g+1}, {sHI}, v{g}\nv_lshlrev_b32 v{g}, 16, v{g}")
        a(f"ds_write_b128 v17, {vr(g,4)} offset:{4096*i}")
    lds_arrive(C_G, 2, 3)
    lds_wait(C_G, 4, 2, 3)
    lds_wait(C_U, 4, 2, 3)
    if o["prio"]: a(f"s_setprio {o['hprio']}")
    a(f"s_add_u32 s9, {sW}, 1\ns_mov_b32 s10, 0")
    a(f"L_help:\ns_mov_b32 s65, 0\nL_hwait:\nds_read_b32 v3, v{hP}\ns_waitcnt lgkmcnt(0)\nv_cmp_gt_u32 vcc, s9, v3\ns_cbranch_vccz L_hgo\ns_sleep {o['lsl']}\ns_add_u32 s65, s65, 1\ns_bitcmp0_b32 s65, 19\ns_cbranch_scc1 L_hwait\nL_hgo:")
    if o["stamps"] == 4:
        a("s_memrealtime s[90:91]\ns_waitcnt lgkmcnt(0)\ns_mov_b32 m0, s10\ns_nop 1\nv_writelane_b32 v41, s90, m0")
    a(f"""ds_read_b32 v26, v{hY}
ds_read_b32 v27, v{hY} offset:8192
ds_read_b32 v28, v{hY} offset:16384
ds_read_b32 v29, v{hY} offset:24576
ds_read_u16_d16_hi v30, v{hU}
ds_read_u16_d16_hi v31, v{hU} offset:{USTR}
ds_read_b32 v25, v{hG}
v_add_u32 v{hY}, 1024, v{hY}
v_add_u32 v{hG}, 1024, v{hG}
v_subrev_u32 v{hU}, 128, v{hU}
s_add_u32 s9, s9, 4
s_add_u32 s10, s10, 1
s_waitcnt lgkmcnt(0)
v_pk_mul_f32 v[28:29], v[28:29], v[30:31]
v_pk_add_f32 v[26:27], v[26:27], v[28:29] neg_lo:[0,1] neg_hi:[0,1]
v_fma_f32 v26, v25, v26, v28
v_fma_f32 v27, v25, v27, v29
v_cvt_pk_bf16_f32 v32, v26, v27
global_store_dword v{hO}, v32, {pOut}
v_add_u32 v{hO}, {256*896}, v{hO}""")
    if o["stamps"] == 4:
        a("s_memrealtime s[90:91]\ns_waitcnt lgkmcnt(0)\ns_add_u32 m0, s10, 7\ns_nop 1\nv_writelane_b32 v41, s90, m0")
    a("s_cmp_lt_u32 s10, 8\ns_cbranch_scc1 L_help")
    stamp(6)
    if o["stamps"]:
        a("s_waitcnt vmcnt(0)"); stamp(7)
    a("L_tend:")
    dump_stamps(8)
    a("s_endpgm\nL_g7:")
    gate_loads()
    a("s_waitcnt vmcnt(0)\ns_branch L_gate")

    a("L_kwave:")
    sW4, sCh, sHf = "s8", "s9", "s10"
    RAW, SK, EX = 16, 24, 32
    vPa, vSw, vRa, vRb, vFold, vFoldB = 48, 52, 53, 54, 55, 56
    a(f"""s_getpc_b64 s[12:13]
L_pc:
s_sub_u32 s12, s12, L_pc-{NAME}_kernel
s_subb_u32 s13, s13, 0
v_and_b32 v2, 127, v0
v_lshlrev_b32 v2, 7, v2
v_min_u32 v2, L_codeend-{NAME}_kernel-4, v2
global_load_dword v57, v2, s[12:13]
s_sub_u32 {sW4}, {sW}, 4
s_lshr_b32 {sCh}, {sW4}, 1
s_and_b32 {sHf}, {sW4}, 1
s_lshl_b32 s11, {sP}, 1
s_add_u32 s11, s11, {sCh}
s_lshl_b32 s14, s11, 9
s_lshl_b32 s15, {sHf}, 8
s_add_u32 s14, s14, s15
v_lshl_add_u32 v3, v1, 2, s14
s_lshl_b32 s14, s11, 12
s_lshl_b32 s15, {sHf}, 11
s_add_u32 s14, s14, s15
v_lshl_add_u32 v4, v1, 4, s14
s_lshl_b32 s14, {sP}, 2
s_waitcnt lgkmcnt(0)
s_cmp_eq_u32 {sG}, 7
s_cbranch_scc1 L_kinit""")
    for i, p in enumerate((pAre, pAim, pBre, pBim, pCre, pCim)): a(f"global_load_dword v{RAW+i}, v3, {p}")
    a(f"s_load_dword s66, {pLdt}, s14\ns_load_dword s67, {pDs}, s14\ns_load_dword s68, {pSd}, s14")
    a(f"""s_cmp_lg_u32 s2, 0
s_cbranch_scc1 L_kinit
s_cmp_lg_u32 {sW4}, 0
s_cbranch_scc1 L_kinit
s_memrealtime s[12:13]
s_mov_b64 exec, 1
v_mov_b32 v7, 0
v_mov_b32 v5, 0
s_waitcnt lgkmcnt(0)
s_or_b32 s12, s12, 1
v_mov_b32 v6, s12
global_atomic_cmpswap v5, v[6:7], {pDbg} sc1
s_mov_b64 exec, -1""")
    a("L_kinit:")
    a(f"""v_mov_b32 v8, 0
v_mov_b32 v9, 0
v_mov_b32 v10, 0
v_mov_b32 v11, 0
v_and_b32 v5, 127, v0
v_lshlrev_b32 v5, 4, v5
ds_write_b128 v5, v[8:11] offset:{FL0}
v_lshrrev_b32 v5, 2, v1
v_mul_u32_u24 v5, {USTR_PH}, v5
v_and_b32 v6, 3, v1
v_lshl_add_u32 v5, v6, 4, v5
ds_write_b128 v5, v[8:11] offset:{U0 + 1024}
v_bfe_u32 v5, v1, 1, 2
v_mul_u32_u24 v5, {KSTR}, v5
v_and_b32 v6, 1, v1
v_lshl_add_u32 v5, v6, 4, v5
ds_write_b128 v5, v[8:11] offset:{K0}
s_waitcnt lgkmcnt(0)
s_barrier
s_cmp_eq_u32 {sG}, 7
s_cbranch_scc1 L_end""")
    a(f"""s_mul_i32 s11, {sCh}, {2*PSTR}
s_add_u32 s11, s11, {P0}
s_sub_u32 s15, s11, {4 * 0x4280}
s_lshl_b32 s14, {sHf}, 10
v_lshl_add_u32 v2, v1, 3, s14
v_cvt_f32_u32 v5, v2
v_cmp_gt_u32 vcc, 128, v2
v_lshl_add_u32 v2, v2, 2, s11""")
    for ps in range(2):
        for i in range(4):
            c0 = 512*ps + 2*i
            d0, d1 = EX + 8*ps + 2*i, EX + 8*ps + 2*i + 1
            a(f"v_add_f32 v6, {hx(f2u(float(c0)))}, v5\nv_add_f32 v7, {hx(f2u(float(c0+1)))}, v5\nv_cvt_pk_bf16_f32 v6, v6, v7")
            a(f"v_and_b32 v{d0}, 0xffff, v6\nv_lshrrev_b32 v{d1}, 16, v6")
            a(f"v_lshl_add_u32 v{d0}, v{d0}, 2, s15\nv_lshl_add_u32 v{d1}, v{d1}, 2, s15")
            if ps == 0:
                a(f"v_add_u32 v6, {8*i}, v2\nv_add_u32 v7, {8*i+4}, v2\nv_cndmask_b32 v{d0}, v{d0}, v6, vcc\nv_cndmask_b32 v{d1}, v{d1}, v7, vcc")
    a(f"""s_mul_i32 s14, {sHf}, {PSTR}
s_add_u32 s11, s11, s14
v_and_b32 v5, 31, v1
v_lshrrev_b32 v6, 5, v1
v_lshlrev_b32 v7, 5, v5
v_lshl_add_u32 v7, v6, 4, v7
v_add_u32 v{vPa}, s11, v7
v_cmp_eq_u32 vcc, 0, v6
v_lshlrev_b32 v7, 4, v5
v_add_u32 v7, {4*256}, v7
v_lshlrev_b32 v8, 3, v5
v_add_u32 v8, {4*384}, v8
v_cndmask_b32 v9, v8, v7, vcc
v_add_u32 v{vPa+1}, s11, v9
v_add_u32 v7, 8, v7
v_add_u32 v8, 256, v8
v_cndmask_b32 v9, v8, v7, vcc
v_add_u32 v{vPa+2}, s11, v9
v_lshlrev_b32 v7, 2, v5
v_lshl_add_u32 v7, v6, 9, v7
v_add_u32 v7, {4*512}, v7
v_add_u32 v{vPa+3}, s11, v7
s_mul_i32 s14, {sW4}, {SSTR}
s_add_u32 s14, s14, {SC0}
v_lshl_add_u32 v{vSw}, v1, 2, s14
v_mul_u32_u24 v7, {SROW}, v5
v_lshl_add_u32 v7, v6, 4, v7
v_add_u32 v{vRa}, s14, v7
v_add_u32 v{vRb}, {21*SROW}, v{vRa}
s_mov_b32 {sHI}, 0xffff0000
s_waitcnt lgkmcnt(0)
s_lshl_b32 s14, {sCh}, 4
s_sub_u32 s14, 16, s14
s_lshl_b32 s66, s66, s14
s_and_b32 s66, s66, {sHI}
s_lshl_b32 s67, s67, s14
s_and_b32 s67, s67, {sHI}
s_lshl_b32 s68, s68, s14
s_and_b32 s68, s68, {sHI}
s_cmp_eq_u32 {sHf}, 0
s_cselect_b32 s67, s67, 0
s_cselect_b32 s68, s68, 0
v_cmp_eq_u32 vcc, 0, v1
v_mov_b32 v7, s67
v_mov_b32 v8, s68
v_cndmask_b32 v{vFold}, 0, v7, vcc
v_cndmask_b32 v{vFoldB}, 0, v8, vcc""")
    L2E = math.log2(math.e); L2Eh = struct.unpack("<f", struct.pack("<f", L2E))[0]; L2El = L2E - L2Eh
    a(f"""v_mov_b32 v5, s66
v_mul_f32 v6, {hx(f2u(L2Eh))}, v5
v_mov_b32 v8, {hx(f2u(L2Eh))}
v_fma_f32 v7, v5, v8, -v6
v_fmac_f32 v7, {hx(f2u(L2El))}, v5
v_exp_f32 v6, v6
v_mul_f32 v7, {hx(f2u(math.log(2.0)))}, v7
v_fma_f32 v6, v6, v7, v6
v_cvt_pk_bf16_f32 v6, 0, v6
v_readfirstlane_b32 s66, v6""")
    I2P = 1.0 / (2.0 * math.pi); I2Ph = struct.unpack("<f", struct.pack("<f", I2P))[0]; I2Pl = I2P - I2Ph
    a(f"s_mov_b32 s69, {hx(f2u(I2Ph))}\ns_mov_b32 s70, 0")
    D = 96; OA = 112; OB = 128
    for i in range(16): a(f"v_mov_b32 v{D+i}, 0")
    a(f"s_waitcnt vmcnt(0)")
    stamp(1)
    A2, TH, TL, M, PH = 58, 59, 60, 62, 63
    Z1, Z2, Z4, Z8, Z256, W, X, Yc, Fc = 64, 66, 68, 70, 72, 74, 76, 78, 80
    PK = 84
    a("L_round:")
    a(f"s_cmp_eq_u32 s70, 0\ns_cbranch_scc0 L_hi")
    for i in range(6): a(f"v_lshlrev_b32 v{8+i}, 16, v{RAW+i}")
    a(f"global_load_dwordx4 {vr(SK,4)}, v4, {pSk}\nglobal_load_dwordx4 {vr(SK+4,4)}, v4, {pSk} offset:1024")
    a("s_branch L_unp\nL_hi:")
    for i in range(6): a(f"v_and_b32 v{8+i}, {sHI}, v{RAW+i}")
    a("L_unp:")
    a(f"""v_mul_f32 v8, s66, v8
v_mul_f32 v9, s66, v9
v_mul_f32 v{A2}, {hx(f2u(L2Eh))}, v8
v_mul_f32 v{TH}, s69, v9
v_fma_f32 v{TL}, v9, s69, -v{TH}
v_fmac_f32 v{TL}, {hx(f2u(I2Pl))}, v9""")
    def cmul(d, x, z):
        a(f"v_pk_mul_f32 {vr(d,2)}, {vr(x,2)}, {vr(z,2)} op_sel_hi:[0,1]" if d != x else f"v_pk_mul_f32 v[14:15], {vr(x,2)}, {vr(z,2)} op_sel_hi:[0,1]")
        t = d if d != x else 14
        a(f"v_pk_fma_f32 {vr(d,2)}, {vr(x,2)}, {vr(z,2)}, {vr(t,2)} op_sel:[1,1,0] op_sel_hi:[1,0,1] neg_lo:[1,0,0]")
    for e, Z in ((1, Z1), (8, Z8), (256, Z256)):
        if e == 1:
            a(f"v_exp_f32 v{M}, v{A2}\nv_fract_f32 v{PH}, v{TH}\nv_add_f32 v{PH}, v{PH}, v{TL}")
        else:
            c = hx(f2u(float(e)))
            a(f"v_mul_f32 v{M}, {c}, v{A2}\nv_mul_f32 v{PH}, {c}, v{TH}\nv_exp_f32 v{M}, v{M}\nv_fract_f32 v{PH}, v{PH}\nv_fmac_f32 v{PH}, {c}, v{TL}")
        a(f"v_cos_f32 v{Z}, v{PH}\nv_sin_f32 v{Z+1}, v{PH}")
        a(f"v_pk_mul_f32 {vr(Z,2)}, {vr(Z,2)}, {vr(M,2)} op_sel_hi:[1,0]")
    pk = [0]
    def cvt(row, src, neg):
        r = PK + (pk[0] % 8); pk[0] += 1
        return f"v_cvt_pk_bf16_f32 v{r}, v{src}, {'-' if neg else ''}v{src+1}", f"ds_write_b32 v{vSw}, v{r} offset:{row*SROW}"
    def cm(d, x, z):
        t = d if d != x else 14
        return (f"v_pk_mul_f32 {vr(t,2)}, {vr(x,2)}, {vr(z,2)} op_sel_hi:[0,1]",
                f"v_pk_fma_f32 {vr(d,2)}, {vr(x,2)}, {vr(z,2)}, {vr(t,2)} op_sel:[1,1,0] op_sel_hi:[1,0,1] neg_lo:[1,0,0]")
    cmul(W, 12, 10)
    a(f"v_mul_f32 v{W}, s66, v{W}\nv_mul_f32 v{W+1}, s66, v{W+1}")
    cmul(Z2, Z1, Z1); cmul(Z4, Z2, Z2)
    gch = []
    cur, oth = W, X
    def seq(rows_src):
        pass
    steps = []
    A_, B_ = X, Yc
    steps.append((None, W, None, 0))
    prev = W
    for r in range(1, 8):
        d = A_ if prev != A_ else B_
        steps.append((d, prev, Z1, r)); prev = d
    steps.append((W, W, Z256, 8)); prev = W
    for r in range(9, 12):
        d = A_ if prev != A_ else B_
        steps.append((d, prev, Z2, r)); prev = d
    steps += [(W, W, Z256, 12), (A_, W, Z4, 13), (W, W, Z256, 14), (A_, W, Z4, 15)]
    steps += [(W, W, Z256, 16 + i) for i in range(5)]
    fsteps = []
    F0, F1 = Fc, Fc + 2
    a(f"v_mov_b32 v{PK+7}, 0x3f80\nds_write_b32 v{vSw}, v{PK+7} offset:{21*SROW}")
    fsteps.append((None, Z8, None, 22))
    prev = Z8
    for jx in range(2, 32):
        d = F0 if prev != F0 else F1
        fsteps.append((d, prev, Z8, 21 + jx)); prev = d
    late = []
    for n in range(max(len(steps), len(fsteps))):
        m0, m1, cv, wr = [], [], [], []
        for lst, neg in ((fsteps, False), (steps, True)):
            if n < len(lst):
                d, x, z, row = lst[n]
                if d is not None:
                    p, q = cm(d, x, z); m0.append(p); m1.append(q); x = d
                c_, w_ = cvt(row, x, neg); cv.append(c_); wr.append(w_)
        for t in m0 + late[:1] + m1 + late[1:] + cv: a(t)
        late = wr
    for t in late: a(t)
    for s in range(8):
        ra, rb = OA + 4*(s % 4), OB + 4*(s % 4)
        a(f"ds_read_b128 {vr(ra,4)}, v{vRa} offset:{32*s}\nds_read_b128 {vr(rb,4)}, v{vRb} offset:{32*s}")
        if s >= 2:
            q = s - 2
            a(f"v_mfma_f32_32x32x16_bf16 {vr(D,16)}, {vr(OA+4*(q%4),4)}, {vr(OB+4*(q%4),4)}, {vr(D,16)}")
    for q in (6, 7):
        a(f"v_mfma_f32_32x32x16_bf16 {vr(D,16)}, {vr(OA+4*(q%4),4)}, {vr(OB+4*(q%4),4)}, {vr(D,16)}")
    a("s_add_u32 s70, s70, 1\ns_cmp_lt_u32 s70, 2\ns_cbranch_scc1 L_round")
    stamp(2)
    vKa, vUa, vYa, vPr = 2, 3, 4, 5
    a(f"""v_and_b32 v6, 3, v1
v_bfe_u32 v7, v1, 2, 2
v_lshrrev_b32 v8, 4, v1
v_add_u32 v9, v6, v7
v_lshlrev_b32 v9, 3, v9
v_lshl_add_u32 v9, v8, 6, v9
s_mul_i32 s14, {sW4}, {KSTR}
s_add_u32 s14, s14, {K0 + 8}
v_add_u32 v{vKa}, s14, v9
v_mul_u32_u24 v9, {USTR_PH}, v6
v_lshl_add_u32 v9, v8, 4, v9
v_lshlrev_b32 v7, 3, v7
v_sub_u32 v9, v9, v7
s_mul_i32 s14, {sW4}, {USTR}
s_add_u32 s14, s14, {U0 + 1016 - 32*31}
v_add_u32 v{vUa}, s14, v9
s_lshl_b32 s14, {sW4}, 13
s_add_u32 s14, s14, {Y0}
v_lshl_add_u32 v{vYa}, v1, 2, s14
s_lshl_b32 s14, {sW4}, 8
s_add_u32 s14, s14, {PR0}
v_lshl_add_u32 v{vPr}, v1, 2, s14
s_mul_i32 s14, {sCh}, {KSTR}
s_lshl_b32 s15, {sHf}, 11
s_add_u32 s14, s14, s15
v_lshl_add_u32 v10, v1, 4, s14
v_add_f32 v{D}, v{D}, v{vFold}""")
    a(f"ds_write_b128 v{vPa}, {vr(D,4)}\nds_write_b64 v{vPa+1}, {vr(D+4,2)}\nds_write_b64 v{vPa+2}, {vr(D+6,2)}")
    for r in range(4): a(f"ds_write_b32 v{vPa+3}, v{D+8+r} offset:{128*r}")
    lds_arrive(C_P, 6, 7)
    a("s_waitcnt vmcnt(0)")
    a(f"""s_mul_i32 s14, {sCh}, {KSTR}
s_lshl_b32 s15, {sHf}, 11
s_add_u32 s14, s14, s15
v_lshl_add_u32 v11, v1, 4, s14
v_lshlrev_b32 v12, 16, v{SK}
v_add_f32 v12, v12, v{vFoldB}
v_cvt_pk_bf16_f32 v12, v12, v12
v_mov_b32 v13, 0xffff
v_bfi_b32 v{SK}, v13, v12, v{SK}
ds_write_b128 v11, {vr(SK,4)} offset:{K0 + 2*KSTR + 32}
ds_write_b128 v11, {vr(SK+4,4)} offset:{K0 + 2*KSTR + 32 + 1024}""")
    if o["touch"]:
        a(f"s_lshl_b32 s14, {sJ}, 6\ns_lshl_b32 s15, {sW4}, 4\ns_add_u32 s14, s14, s15\nv_and_b32 v11, 15, v1\nv_add_u32 v11, s14, v11\nv_mul_u32_u24 v11, 896, v11\ns_lshl_b32 s14, {sG}, 7\nv_add_u32 v11, s14, v11")
        a(f"global_load_dword v57, v11, {pOut}")
    lds_wait(C_P, 4, 6, 7, 1)
    for ps in range(2):
        for i in range(8): a(f"ds_read_b32 v{64+8*ps+i}, v{EX+8*ps+i}\nds_read_b32 v{112+8*ps+i}, v{EX+8*ps+i} offset:{PSTR}")
    for ps in range(2):
        for i in range(8): a(f"v_add_f32 v{64+8*ps+i}, v{64+8*ps+i}, v{112+8*ps+i}")
        for i in range(4): a(f"v_cvt_pk_bf16_f32 v{80+4*ps+i}, v{64+8*ps+2*i}, v{64+8*ps+2*i+1}")
        a(f"ds_write_b128 v10, {vr(80+4*ps,4)} offset:{K0 + 32 + 1024*ps}")
    lds_arrive(C_K, 6, 7)
    lds_wait(C_K, 4, 6, 7, 1)
    stamp(3)
    KOP, UOP, ACC, TR = 192, 64, 24, 8
    for mu in range(16):
        a(f"ds_read_b64_tr_b16 {vr(KOP+4*mu,2)}, v{vKa} offset:{256*mu}\nds_read_b64_tr_b16 {vr(KOP+4*mu+2,2)}, v{vKa} offset:{256*mu+32}")
    ZR = 58
    for i in range(3): a(f"v_mov_b32 v{ZR+i}, 0")
    lds_wait(C_U, 4, 6, 7, 1)
    if o["prio"]: a(f"s_setprio {o['mprio']}")
    stamp(4)
    def uload(nu):
        off = 32 * (31 - nu)
        return [f"ds_read_b64 {vr(UOP+4*nu,2)}, v{vUa} offset:{off}", f"ds_read_b64 {vr(UOP+4*nu+2,2)}, v{vUa} offset:{off+8}"]
    NACC = o["nacc"]; NT = 4
    dp = "row_mask:0xf bank_mask:0xf"
    pos = [0]
    def em(t):
        a(t); pos[0] += 1
    mf_end = {}
    done_at = {}
    def epi(c):
        A = ACC + 4 * (c % NACC)
        cur = TR + 4 * (c % NT); prv = TR + 4 * ((c - 1) % NT)
        pT3 = (ACC + 4 * ((c - 1) % NACC) + 3) if c > 0 else ZR
        pT2 = prv if c > 0 else ZR + 1
        pT1 = prv + 1 if c > 0 else ZR + 2
        L = [((c, 0), f"v_add_f32_dpp v{cur}, v{pT3}, v{A+2} wave_ror:1 {dp}", 1, [(("m", c), 9), ((c - NT + 1, 1), 1), ((c - NT + 1, 3), 1), ((c - NT, 6), 1)]),
             ((c, 2), f"v_add_f32_dpp v{cur}, v{A+3}, v{A+2} wave_shr:1 {dp}", 1, [((c, 0), 1)]),
             ((c, 1), f"v_add_f32_dpp v{cur+1}, v{pT2}, v{A+1} wave_ror:1 {dp}", 1, [((c, 2), 1), ((c - 1, 2), 3)]),
             ((c, 4), f"v_add_f32_dpp v{cur+1}, v{cur}, v{A+1} wave_shr:1 {dp}", 1, [((c, 1), 1), ((c, 2), 3)]),
             ((c, 3), f"v_add_f32_dpp v{cur+2}, v{pT1}, v{A} wave_ror:1 {dp}", 1, [((c, 4), 1), ((c - 1, 4), 3)]),
             ((c, 5), f"v_add_f32_dpp v{cur+2}, v{cur+1}, v{A} wave_shr:1 {dp}", 1, [((c, 3), 1), ((c, 4), 3)]),
             ((c, 6), f"ds_write_b32 v{vYa}, v{cur+2} offset:{256*c}", 2, [((c, 5), 2), ((c - 1, 6), 1)])]
        if c % 2 == 1:
            L += [((c, 7), f"v_mov_b32_e64 v{cur+3}, {c+1}", 1, [((c, 5), 1), ((c - NT, 8), 1)]), ((c, 8), f"ds_write_b32 v{vPr}, v{cur+3}", 2, [((c, 7), 2), ((c, 6), 1)])]
        return L
    def ready(item):
        for key, dist in item[3]:
            if key[0] != "m" and key[0] < 0: continue
            if key not in done_at or pos[0] - done_at[key] < dist: return False
        return True
    queue = []
    def fill(slots):
        while slots > 0:
            pick = None
            for n, it in enumerate(queue[:24]):
                if it[2] <= slots + (1 if slots == 1 and False else 0) and ready(it): pick = n; break
            if pick is None: return
            it = queue.pop(pick); done_at[it[0]] = pos[0]; em(it[1]); slots -= it[2]
    def drain(pred):
        while any(pred(it) for it in queue):
            n0 = len(queue); fill(2)
            if len(queue) == n0: em("s_nop 0")
    for nu in range(3):
        for t in uload(nu): em(t)
    for c in range(32):
        nm = c // 2 + 1
        if c + 3 < 32:
            tl = uload(c + 3)
            queue[0:0] = [(("u", c, 0), tl[0], 1, []), (("u", c, 1), tl[1], 1, [])]
        old = c - NACC
        if old >= 0: drain(lambda it: it[0][0] == old or it[0] == (old + 1, 0))
        if c >= 1: drain(lambda it: it[0][0] == "u" and it[0][1] <= c - 2)
        for n, mu in enumerate(range(nm - 1, -1, -1)):
            A = ACC + 4 * (c % NACC)
            em(f"v_mfma_f32_16x16x32_bf16 {vr(A,4)}, {vr(UOP+4*(c-2*mu),4)}, {vr(KOP+4*mu,4)}, {'0' if n == 0 else vr(A,4)}")
            if n == nm - 1:
                done_at[("m", c)] = pos[0] - 1; queue.extend(epi(c))
            fill(2)
    drain(lambda it: True)
    stamp(5)
    dump_stamps(6)
    a("L_end:\ns_endpgm\nL_codeend:")
    body = a.finish()
    hdr = open("cdna_kernels/" + NAME + ".s.ref").read().split("; Override launch")[0]
    txt = hdr + f"""; One launch: 7 groups of 32 workgroups exchange transposed tiles through d_ws, each workgroup then
; owns two channels (S4 kernel table, two Toeplitz convolutions on MFMA, gated mix).
; @launch grid=(256,1,1) block=(512,1,1) lds={LDS_BYTES}
.amdgcn_target "amdgcn-amd-amdhsa--gfx950"
.text
.globl {NAME}_kernel
.p2align 8
.type {NAME}_kernel,@function
{NAME}_kernel:
{body}.section .rodata,"a"
.p2align 6
.amdhsa_kernel {NAME}_kernel
  .amdhsa_next_free_vgpr 256
  .amdhsa_next_free_sgpr 102
  .amdhsa_accum_offset 256
  .amdhsa_group_segment_fixed_size 0
  .amdhsa_kernarg_size 152
  .amdhsa_user_sgpr_count 2
  .amdhsa_user_sgpr_kernarg_segment_ptr 1
  .amdhsa_system_sgpr_workgroup_id_x 1
.end_amdhsa_kernel
"""
    return txt, a.nops

if __name__ == "__main__":
    out = sys.argv[1]
    kw = {k: int(v) for k, v in (x.split("=") for x in sys.argv[2:])}
    txt, nops = gen(**kw)
    open(out, "w").write(txt)
    print("wrote", out, "lines", txt.count("\n"), "nops", nops, "lds", LDS_BYTES)
```

```python
import sys, struct, math
from asmlib import Asm

NAME = "gated_mix__ssm_conv_s4__ssm_conv_h3__prompt"
DEFAULT = dict(xcdmap=1, stamps=0, sleep=2, prio=1, hprio=3, mprio=0, touch=1, nacc=8, lsl=2)

KSTR = 4160; K0 = 0
USTR_PH = 1088; USTR = 4 * USTR_PH; U0 = 4 * KSTR
G0 = U0 + 4 * USTR
P0 = G0 + 8192; PSTR = 3072
FL0 = P0 + 4 * PSTR
C_SIG, C_POLL, C_U, C_P, C_K, C_G = (FL0 + 4 * i for i in range(6))
PR0 = FL0 + 256
Y0 = PR0 + 1024
SC0 = Y0 + 32768; SROW = 272; SSTR = 53 * SROW
LDS_BYTES = SC0 + 4 * SSTR
WS_G = 224 * 16384
WS_FL = WS_G + 8192
WS_STAMP = 64 << 20

def f2u(x): return struct.unpack("<I", struct.pack("<f", x))[0]
def hx(x): return "0x%08x" % (x & 0xffffffff)
def vr(a, n=1): return f"v{a}" if n == 1 else f"v[{a}:{a+n-1}]"

sG, sJ, sW, sP = "s4", "s5", "s6", "s7"
pU, pAre, pAim, pBre, pBim, pCre, pCim, pLdt = (f"s[{16+2*i}:{17+2*i}]" for i in range(8))
pDs, pQ, pK, pV, pSh, pSk, pSd, pGw = (f"s[{32+2*i}:{33+2*i}]" for i in range(8))
pOut, pDbg, pWs = "s[48:49]", "s[50:51]", "s[52:53]"
srdK = "s[56:59]"
sHI, sSel0, sSel1 = "s62", "s63", "s64"

def gen(**kw):
    o = dict(DEFAULT); o.update(kw)
    a = Asm()
    nst = [0]
    def stamp(i):
        if o["stamps"] == 3: a(f"s_memtime s[{72+2*i}:{73+2*i}]")
        elif o["stamps"]: a(f"s_memrealtime s[{72+2*i}:{73+2*i}]")
    def dump_stamps(n):
        if not o["stamps"]: return
        a("s_waitcnt lgkmcnt(0)")
        if o["stamps"] == 5:
            i = o["probe"]
            if (n == 8) == (i < 100):
                i = i % 100
                a(f"s_cmp_lg_u32 s2, {o.get('pwg', 0)}\ns_cbranch_scc1 L_end\ns_sub_u32 s8, s{72+2*i}, s72\ns_mul_i32 s8, s8, 20\ns_min_u32 s8, s8, 100000\ns_memrealtime s[10:11]\ns_waitcnt lgkmcnt(0)\ns_add_u32 s8, s8, s10")
                a(f"L_pr{n}:\ns_sleep 4\ns_memrealtime s[10:11]\ns_waitcnt lgkmcnt(0)\ns_sub_u32 s9, s8, s10\ns_cmp_gt_i32 s9, 0\ns_cbranch_scc1 L_pr{n}")
            return
        if o["stamps"] == 2:
            base = 1 if n == 8 else 9
            a("s_mov_b64 exec, 1\nv_mov_b32 v2, 0\ns_not_b32 s72, s72")
            idx = [0, 1, 3, 4, 5, 6, 7] if n == 8 else [0, 1, 2, 3, 4, 5]
            if n == 8: a(f"s_cmp_eq_u32 {sG}, 7\ns_cbranch_scc1 L_end")
            for q, i in enumerate(idx):
                a(f"v_mov_b32 v3, s{72+2*i}\nglobal_atomic_umax v2, v3, {pDbg} offset:{4*(base+q)} sc1")
            a("s_waitcnt vmcnt(0)")
            return
        a(f"s_lshl_b32 s8, s2, 3\ns_add_u32 s8, s8, {sW}\ns_lshl_b32 s8, s8, 6\ns_add_u32 s8, s8, {WS_STAMP}")
        if o["stamps"] == 4 and n == 8:
            a(f"s_mov_b64 exec, 0xffff\nv_lshl_add_u32 v2, v1, 2, s8\nglobal_store_dword v2, v41, {pWs}\ns_waitcnt vmcnt(0)")
            return
        a("s_mov_b64 exec, 1\nv_mov_b32 v2, s8")
        for i in range(n):
            a(f"v_mov_b32 v3, s{72+2*i}\nglobal_store_dword v2, v3, {pWs} offset:{4*i}")
        a("s_waitcnt vmcnt(0)")
    def lds_arrive(addr_const, vtmp, vone):
        a(f"s_mov_b64 exec, 1\nv_mov_b32 v{vtmp}, {addr_const}\nv_mov_b32 v{vone}, 1\nds_add_u32 v{vtmp}, v{vone}\ns_mov_b64 exec, -1")
    lab = [0]
    def lds_wait(addr_const, target, vtmp, vval, slp=None):
        slp = o['lsl'] if slp is None else slp
        lab[0] += 1
        L = f"L_w{lab[0]}"
        a(f"v_mov_b32 v{vtmp}, {addr_const}\ns_mov_b32 s65, 0")
        a(f"{L}:\nds_read_b32 v{vval}, v{vtmp}\ns_waitcnt lgkmcnt(0)\nv_cmp_le_u32 vcc, {target}, v{vval}\ns_cbranch_vccnz {L}_ok")
        a(f"s_sleep {slp}\ns_add_u32 s65, s65, 1\ns_bitcmp0_b32 s65, 19\ns_cbranch_scc1 {L}\n{L}_ok:")

    a("s_cmp_ge_u32 s2, 256\ns_cbranch_scc1 L_end")
    stamp(0)
    a("s_load_dwordx16 s[16:31], s[0:1], 0\ns_load_dwordx16 s[32:47], s[0:1], 64")
    a("s_load_dwordx4 s[48:51], s[0:1], 128\ns_load_dwordx2 s[52:53], s[0:1], 144")
    a("v_lshrrev_b32 v2, 6, v0\nv_and_b32 v1, 63, v0")
    if o["xcdmap"]: a(f"s_and_b32 {sG}, s2, 7\ns_lshr_b32 {sJ}, s2, 3")
    else: a(f"s_lshr_b32 {sG}, s2, 5\ns_and_b32 {sJ}, s2, 31")
    a(f"v_readfirstlane_b32 {sW}, v2")
    a(f"s_lshl_b32 {sP}, {sG}, 5\ns_add_u32 {sP}, {sP}, {sJ}")
    a(f"s_cmp_ge_u32 {sW}, 4\ns_cbranch_scc1 L_kwave")

    vB, vB2, vKA = 10, 11, 12
    U_, V_, K_, SH = 16, 24, 32, 44
    GU, GW = 48, 56
    a(f"""s_lshr_b32 s8, {sW}, 1
s_lshl_b32 s8, s8, 5
s_lshl_b32 s9, {sJ}, 6
s_add_u32 s8, s8, s9
s_mul_i32 s8, s8, 896
s_and_b32 s9, {sW}, 1
s_lshl_b32 s10, s9, 6
s_lshl_b32 s11, {sG}, 7
s_add_u32 s10, s10, s11
s_add_u32 s8, s8, s10
v_lshrrev_b32 v2, 4, v1
v_and_b32 v3, 15, v1
v_mul_u32_u24 v4, {8*896}, v2
v_lshl_add_u32 v4, v3, 2, v4
v_add_u32 v{vB}, s8, v4
v_add_u32 v{vB2}, {4*896}, v{vB}
v_subrev_u32 v{vKA}, {3*896}, v{vB}
s_lshl_b32 s12, s2, 3
s_lshl_b32 s13, {sW}, 1
s_add_u32 s12, s12, s13
v_lshrrev_b32 v5, 5, v1
v_add_u32 v5, s12, v5
v_and_b32 v6, 31, v1
v_mul_u32_u24 v6, 28, v6
v_mul_u32_u24 v7, 896, v5
v_add_u32 v7, v7, v6
s_lshl_b32 s10, s10, 2
v_lshl_add_u32 v8, v3, 4, s10
s_cmp_eq_u32 {sG}, 7
s_waitcnt lgkmcnt(0)
s_cbranch_scc1 L_gonly_ld""")
    a(f"s_mov_b32 s56, s36\ns_mov_b32 s57, s37\ns_mov_b32 s58, 1835008\ns_mov_b32 s59, 0x20000")
    for i in range(3): a(f"buffer_load_dword v{K_+i}, v{vKA}, {srdK}, 0 offen offset:{896*i}")
    for i in range(8):
        b, off = (vB, 896*i) if i < 4 else (vB2, 896*(i-4))
        a(f"buffer_load_dword v{K_+3+i}, v{b}, {srdK}, 0 offen offset:{off}")
    a(f"global_load_dwordx4 v[{SH}:{SH+3}], v8, {pSh}")
    for i in range(8):
        b, off = (vB, 896*i) if i < 4 else (vB2, 896*(i-4))
        a(f"global_load_dword v{V_+i}, v{b}, {pV} offset:{off}")
    for i in range(8):
        b, off = (vB, 896*i) if i < 4 else (vB2, 896*(i-4))
        a(f"global_load_dword v{U_+i}, v{b}, {pU} offset:{off}")
    a("L_gonly_ld:")
    NON = 63
    def gate_loads():
        a(f"global_load_dwordx4 v[{GU}:{GU+3}], v7, {pU}\nglobal_load_dwordx3 v[{GU+4}:{GU+6}], v7, {pU} offset:16")
        a(f"global_load_dwordx4 v[{GW}:{GW+3}], v6, {pGw}\nglobal_load_dwordx3 v[{GW+4}:{GW+6}], v6, {pGw} offset:16")
        a(f"global_load_dword v{NON}, v13, {pDbg} sc1")
    a(f"s_mov_b32 {sHI}, 0xffff0000\ns_mov_b32 {sSel0}, 0x05040100\ns_mov_b32 {sSel1}, 0x07060302")
    if o["prio"]: a("s_setprio 1")
    a(f"""s_lshl_b32 s8, {sG}, 5
s_and_b32 s9, {sW}, 1
s_lshl_b32 s9, s9, 4
s_add_u32 s8, s8, s9
s_lshl_b32 s8, s8, 14
s_lshl_b32 s9, {sJ}, 9
s_add_u32 s8, s8, s9
s_lshr_b32 s9, {sW}, 1
s_lshl_b32 s9, s9, 6
s_add_u32 s8, s8, s9
v_lshlrev_b32 v9, 14, v3
v_lshl_add_u32 v9, v2, 4, v9
v_add_u32 v9, s8, v9
s_lshl_b32 s8, s2, 2
s_add_u32 s8, s8, {sW}
s_lshl_b32 s8, s8, 3
s_add_u32 s8, s8, {WS_G}
v_mov_b32 v5, s8
v_mov_b32 v13, 0
s_barrier
s_cmp_eq_u32 {sG}, 7
s_cbranch_scc1 L_g7""")
    KU, WT, AC, VT, PC = 64, 86, 96, 112, 120
    for i in range(3):
        a(f"v_lshlrev_b32 v{KU+2*i}, 16, v{K_+i}\nv_and_b32 v{KU+2*i+1}, {sHI}, v{K_+i}")
    for ch in range(2):
        for t in range(4):
            src = SH + 2*ch + t//2
            a(f"v_lshlrev_b32 v{WT+2*t+ch}, 16, v{src}" if t % 2 == 0 else f"v_and_b32 v{WT+2*t+ch}, {sHI}, v{src}")
    for i in range(3, 11):
        a(f"v_lshlrev_b32 v{KU+2*i}, 16, v{K_+i}\nv_and_b32 v{KU+2*i+1}, {sHI}, v{K_+i}")
    stamp(1)
    for t in range(4):
        for r in range(8):
            k = KU + 2*(r + 3 - t)
            if t == 0: a(f"v_pk_mul_f32 {vr(AC+2*r,2)}, {vr(k,2)}, {vr(WT,2)}")
            else: a(f"v_pk_fma_f32 {vr(AC+2*r,2)}, {vr(k,2)}, {vr(WT+2*t,2)}, {vr(AC+2*r,2)}")
    for r in range(8):
        t = VT + 2*(r % 4)
        a(f"v_lshlrev_b32 v{t}, 16, v{V_+r}\nv_and_b32 v{t+1}, {sHI}, v{V_+r}")
        a(f"v_pk_mul_f32 {vr(AC+2*r,2)}, {vr(AC+2*r,2)}, {vr(t,2)}")
    gate_loads()
    def transpose(base):
        X = [base + 3 - r for r in range(4)]
        a(f"v_permlane32_swap_b32 v{X[0]}, v{X[2]}\nv_permlane32_swap_b32 v{X[1]}, v{X[3]}")
        a(f"v_permlane16_swap_b32 v{X[0]}, v{X[1]}\nv_permlane16_swap_b32 v{X[2]}, v{X[3]}")
    for ch in range(2):
        base = PC + 8 + 4*ch
        for rho in range(4):
            a(f"v_cvt_pk_bf16_f32 v{base+3-rho}, v{AC+2*(rho+4)+ch}, v{AC+2*rho+ch}")
    for ch in range(2): transpose(PC + 8 + 4*ch)
    for ch in range(2):
        a(f"global_store_dwordx4 v9, {vr(PC+8+4*ch,4)}, {pWs} offset:{(2+ch)*128} sc1")
    for ch in range(2):
        base = PC + 4*ch
        for rho in range(4):
            a(f"v_perm_b32 v{base+3-rho}, v{U_+rho}, v{U_+rho+4}, {sSel0 if ch == 0 else sSel1}")
    for ch in range(2): transpose(PC + 4*ch)
    for ch in range(2):
        a(f"global_store_dwordx4 v9, {vr(PC+4*ch,4)}, {pWs} offset:{ch*128} sc1")
    stamp(2)
    a("s_waitcnt vmcnt(0)")
    stamp(3)
    lds_arrive(C_SIG, 2, 3)
    a("L_gate:")
    def nonce_ok(tag):
        a(f"s_mov_b32 s65, 0\nL_n{tag}:\nv_readfirstlane_b32 s66, v{NON}\ns_cmp_lg_u32 s66, 0\ns_cbranch_scc1 L_n{tag}_ok")
        a(f"s_sleep 4\nglobal_load_dword v{NON}, v13, {pDbg} sc1\ns_waitcnt vmcnt(0)\ns_add_u32 s65, s65, 1\ns_bitcmp0_b32 s65, 16\ns_cbranch_scc1 L_n{tag}\nL_n{tag}_ok:")
    nonce_ok("a")
    a(f"s_cmp_lg_u32 {sW}, 0\ns_cbranch_scc1 L_noflag\ns_cmp_eq_u32 {sG}, 7\ns_cbranch_scc1 L_noflag")
    lds_wait(C_SIG, 4, 2, 3, 1)
    a(f"s_lshl_b32 s8, {sP}, 7\ns_add_u32 s8, s8, {WS_FL}\ns_mov_b64 exec, 1\nv_mov_b32 v2, s8\nglobal_store_dword v2, v{NON}, {pWs} sc1\ns_mov_b64 exec, -1")
    a("L_noflag:")
    a("v_mov_b32 v2, 0")
    for i in range(7): a(f"v_dot2_f32_bf16 v2, v{GU+i}, v{GW+i}, v2")
    for sh in (1, 2, 4, 8): a(f"v_add_f32_dpp v2, v2, v2 row_shr:{sh} row_mask:0xf bank_mask:0xf bound_ctrl:0")
    a("v_add_f32_dpp v2, v2, v2 row_bcast:15 row_mask:0xa bank_mask:0xf")
    a(f"v_cvt_pk_bf16_f32 v2, 0, v2\nv_mul_f32 v2, {hx(f2u(-math.log2(math.e)))}, v2\nv_exp_f32 v2, v2\nv_add_f32 v2, 1.0, v2\nv_rcp_f32 v2, v2")
    a(f"v_readlane_b32 s8, v2, 31\nv_mov_b32 v3, s66\nv_cvt_pk_bf16_f32 v2, s8, v2")
    a("s_mov_b32 exec_lo, 0\ns_mov_b32 exec_hi, 0x80000000")
    a(f"global_store_dwordx2 v5, v[2:3], {pWs} sc1")
    a("s_mov_b64 exec, -1")
    a(f"s_cmp_eq_u32 {sG}, 7\ns_cbranch_scc1 L_tend")
    PL, GL = 136, 152
    a(f"""s_lshl_b32 s8, {sP}, 14
v_lshlrev_b32 v10, 4, v0
v_add_u32 v11, {WS_G}, v10
v_add_u32 v10, s8, v10
v_add_u32 v12, 4096, v10
v_add_u32 v13, 8192, v10
v_add_u32 v14, 12288, v10
v_add_u32 v15, 4096, v11
v_and_b32 v2, 3, v0
v_mul_u32_u24 v16, {USTR_PH}, v2
v_bfe_u32 v2, v0, 3, 2
v_mul_u32_u24 v3, {USTR}, v2
v_add_u32 v16, v16, v3
v_bfe_u32 v2, v0, 2, 1
v_lshlrev_b32 v2, 4, v2
v_lshrrev_b32 v3, 5, v0
v_lshl_add_u32 v2, v3, 5, v2
v_sub_u32 v16, v16, v2
v_add_u32 v16, {U0 + 1008 - 768}, v16
v_lshlrev_b32 v17, 4, v0
v_add_u32 v17, {G0}, v17""")
    a(f"s_cmp_lg_u32 {sW}, 0\ns_cbranch_scc1 L_nopoll")
    a(f"s_lshl_b32 s8, {sG}, 12\ns_add_u32 s8, s8, {WS_FL}\nv_and_b32 v2, 31, v1\nv_lshl_add_u32 v2, v2, 7, s8")
    a(f"s_mov_b32 s65, 0\nL_poll:\nglobal_load_dword v3, v2, {pWs} sc1\ns_waitcnt vmcnt(0)\nv_cmp_ne_u32 vcc, s66, v3\ns_cbranch_vccz L_polled\ns_sleep {o['sleep']}\ns_add_u32 s65, s65, 1\ns_bitcmp0_b32 s65, 16\ns_cbranch_scc1 L_poll")
    a("L_polled:")
    lds_arrive(C_POLL, 2, 3)
    a("s_branch L_go\nL_nopoll:")
    lds_wait(C_POLL, 1, 2, 3)
    a("L_go:")
    stamp(4)
    for i, v in enumerate((10, 12, 13, 14)): a(f"global_load_dwordx4 {vr(PL+4*i,4)}, v{v}, {pWs} sc1")
    for i, v in enumerate((11, 15)): a(f"global_load_dwordx4 {vr(GL+4*i,4)}, v{v}, {pWs} sc1")
    hY, hU, hG, hO, hP = 20, 21, 22, 23, 24
    a(f"""s_lshl_b32 s8, {sW}, 8
v_lshlrev_b32 v2, 2, v1
v_add_u32 v2, s8, v2
v_add_u32 v{hY}, {Y0}, v2
v_add_u32 v{hG}, {G0}, v2
v_and_b32 v2, 3, v1
v_mul_u32_u24 v3, {USTR_PH}, v2
v_lshlrev_b32 v{hP}, 8, v2
v_add_u32 v{hP}, {PR0}, v{hP}
v_lshrrev_b32 v2, 2, v1
v_lshlrev_b32 v2, 1, v2
v_sub_u32 v3, v3, v2
s_lshl_b32 s9, {sW}, 5
s_sub_u32 s9, {U0 + 1022}, s9
v_add_u32 v{hU}, s9, v3
s_lshl_b32 s9, {sW}, 6
v_add_u32 v2, s9, v1
v_mul_u32_u24 v{hO}, 896, v2
s_lshl_b32 s9, {sP}, 2
v_add_u32 v{hO}, s9, v{hO}
v_mov_b32 v30, 0
v_mov_b32 v31, 0""")
    for i in range(4): a(f"ds_write_b128 v16, {vr(PL+4*i,4)} offset:{256*(3-i)}")
    stamp(5)
    lds_arrive(C_U, 2, 3)
    a(f"s_mov_b32 s65, 0\nL_gchk:\ns_waitcnt vmcnt(0)")
    a(f"v_cmp_ne_u32 vcc, s66, v{GL+1}\nv_cmp_ne_u32 s[8:9], s66, v{GL+3}\nv_cmp_ne_u32 s[12:13], s66, v{GL+5}\nv_cmp_ne_u32 s[14:15], s66, v{GL+7}")
    a("s_or_b64 s[8:9], s[8:9], vcc\ns_or_b64 s[12:13], s[12:13], s[14:15]\ns_or_b64 s[8:9], s[8:9], s[12:13]\ns_cbranch_scc0 L_gok")
    a("s_sleep 2")
    for i, v in enumerate((11, 15)): a(f"global_load_dwordx4 {vr(GL+4*i,4)}, v{v}, {pWs} sc1")
    a("s_add_u32 s65, s65, 1\ns_bitcmp0_b32 s65, 16\ns_cbranch_scc1 L_gchk\ns_waitcnt vmcnt(0)\nL_gok:")
    for i in range(2):
        g = GL + 4*i
        a(f"v_and_b32 v{g+3}, {sHI}, v{g+2}\nv_lshlrev_b32 v{g+2}, 16, v{g+2}\nv_and_b32 v{g+1}, {sHI}, v{g}\nv_lshlrev_b32 v{g}, 16, v{g}")
        a(f"ds_write_b128 v17, {vr(g,4)} offset:{4096*i}")
    lds_arrive(C_G, 2, 3)
    lds_wait(C_G, 4, 2, 3)
    lds_wait(C_U, 4, 2, 3)
    if o["prio"]: a(f"s_setprio {o['hprio']}")
    a(f"s_add_u32 s9, {sW}, 1\ns_mov_b32 s10, 0")
    a(f"L_help:\ns_mov_b32 s65, 0\nL_hwait:\nds_read_b32 v3, v{hP}\ns_waitcnt lgkmcnt(0)\nv_cmp_gt_u32 vcc, s9, v3\ns_cbranch_vccz L_hgo\ns_sleep {o['lsl']}\ns_add_u32 s65, s65, 1\ns_bitcmp0_b32 s65, 19\ns_cbranch_scc1 L_hwait\nL_hgo:")
    if o["stamps"] == 4:
        a("s_memrealtime s[90:91]\ns_waitcnt lgkmcnt(0)\ns_mov_b32 m0, s10\ns_nop 1\nv_writelane_b32 v41, s90, m0")
    a(f"""ds_read_b32 v26, v{hY}
ds_read_b32 v27, v{hY} offset:8192
ds_read_b32 v28, v{hY} offset:16384
ds_read_b32 v29, v{hY} offset:24576
ds_read_u16_d16_hi v30, v{hU}
ds_read_u16_d16_hi v31, v{hU} offset:{USTR}
ds_read_b32 v25, v{hG}
v_add_u32 v{hY}, 1024, v{hY}
v_add_u32 v{hG}, 1024, v{hG}
v_subrev_u32 v{hU}, 128, v{hU}
s_add_u32 s9, s9, 4
s_add_u32 s10, s10, 1
s_waitcnt lgkmcnt(0)
v_pk_mul_f32 v[28:29], v[28:29], v[30:31]
v_pk_add_f32 v[26:27], v[26:27], v[28:29] neg_lo:[0,1] neg_hi:[0,1]
v_fma_f32 v26, v25, v26, v28
v_fma_f32 v27, v25, v27, v29
v_cvt_pk_bf16_f32 v32, v26, v27
global_store_dword v{hO}, v32, {pOut}
v_add_u32 v{hO}, {256*896}, v{hO}""")
    if o["stamps"] == 4:
        a("s_memrealtime s[90:91]\ns_waitcnt lgkmcnt(0)\ns_add_u32 m0, s10, 7\ns_nop 1\nv_writelane_b32 v41, s90, m0")
    a("s_cmp_lt_u32 s10, 8\ns_cbranch_scc1 L_help")
    stamp(6)
    if o["stamps"]:
        a("s_waitcnt vmcnt(0)"); stamp(7)
    a("L_tend:")
    dump_stamps(8)
    a("s_endpgm\nL_g7:")
    gate_loads()
    a("s_waitcnt vmcnt(0)\ns_branch L_gate")

    a("L_kwave:")
    sW4, sCh, sHf = "s8", "s9", "s10"
    RAW, SK, EX = 16, 24, 32
    vPa, vSw, vRa, vRb, vFold, vFoldB = 48, 52, 53, 54, 55, 56
    a(f"""s_getpc_b64 s[12:13]
L_pc:
s_sub_u32 s12, s12, L_pc-{NAME}_kernel
s_subb_u32 s13, s13, 0
v_and_b32 v2, 127, v0
v_lshlrev_b32 v2, 7, v2
v_min_u32 v2, L_codeend-{NAME}_kernel-4, v2
global_load_dword v57, v2, s[12:13]
s_sub_u32 {sW4}, {sW}, 4
s_lshr_b32 {sCh}, {sW4}, 1
s_and_b32 {sHf}, {sW4}, 1
s_lshl_b32 s11, {sP}, 1
s_add_u32 s11, s11, {sCh}
s_lshl_b32 s14, s11, 9
s_lshl_b32 s15, {sHf}, 8
s_add_u32 s14, s14, s15
v_lshl_add_u32 v3, v1, 2, s14
s_lshl_b32 s14, s11, 12
s_lshl_b32 s15, {sHf}, 11
s_add_u32 s14, s14, s15
v_lshl_add_u32 v4, v1, 4, s14
s_lshl_b32 s14, {sP}, 2
s_waitcnt lgkmcnt(0)
s_cmp_eq_u32 {sG}, 7
s_cbranch_scc1 L_kinit""")
    for i, p in enumerate((pAre, pAim, pBre, pBim, pCre, pCim)): a(f"global_load_dword v{RAW+i}, v3, {p}")
    a(f"s_load_dword s66, {pLdt}, s14\ns_load_dword s67, {pDs}, s14\ns_load_dword s68, {pSd}, s14")
    a(f"""s_cmp_lg_u32 s2, 0
s_cbranch_scc1 L_kinit
s_cmp_lg_u32 {sW4}, 0
s_cbranch_scc1 L_kinit
s_memrealtime s[12:13]
s_mov_b64 exec, 1
v_mov_b32 v7, 0
v_mov_b32 v5, 0
s_waitcnt lgkmcnt(0)
s_or_b32 s12, s12, 1
v_mov_b32 v6, s12
global_atomic_cmpswap v5, v[6:7], {pDbg} sc1
s_mov_b64 exec, -1""")
    a("L_kinit:")
    a(f"""v_mov_b32 v8, 0
v_mov_b32 v9, 0
v_mov_b32 v10, 0
v_mov_b32 v11, 0
v_and_b32 v5, 127, v0
v_lshlrev_b32 v5, 4, v5
ds_write_b128 v5, v[8:11] offset:{FL0}
v_lshrrev_b32 v5, 2, v1
v_mul_u32_u24 v5, {USTR_PH}, v5
v_and_b32 v6, 3, v1
v_lshl_add_u32 v5, v6, 4, v5
ds_write_b128 v5, v[8:11] offset:{U0 + 1024}
v_bfe_u32 v5, v1, 1, 2
v_mul_u32_u24 v5, {KSTR}, v5
v_and_b32 v6, 1, v1
v_lshl_add_u32 v5, v6, 4, v5
ds_write_b128 v5, v[8:11] offset:{K0}
s_waitcnt lgkmcnt(0)
s_barrier
s_cmp_eq_u32 {sG}, 7
s_cbranch_scc1 L_end""")
    a(f"""s_mul_i32 s11, {sCh}, {2*PSTR}
s_add_u32 s11, s11, {P0}
s_sub_u32 s15, s11, {4 * 0x4280}
s_lshl_b32 s14, {sHf}, 10
v_lshl_add_u32 v2, v1, 3, s14
v_cvt_f32_u32 v5, v2
v_cmp_gt_u32 vcc, 128, v2
v_lshl_add_u32 v2, v2, 2, s11""")
    for ps in range(2):
        for i in range(4):
            c0 = 512*ps + 2*i
            d0, d1 = EX + 8*ps + 2*i, EX + 8*ps + 2*i + 1
            a(f"v_add_f32 v6, {hx(f2u(float(c0)))}, v5\nv_add_f32 v7, {hx(f2u(float(c0+1)))}, v5\nv_cvt_pk_bf16_f32 v6, v6, v7")
            a(f"v_and_b32 v{d0}, 0xffff, v6\nv_lshrrev_b32 v{d1}, 16, v6")
            a(f"v_lshl_add_u32 v{d0}, v{d0}, 2, s15\nv_lshl_add_u32 v{d1}, v{d1}, 2, s15")
            if ps == 0:
                a(f"v_add_u32 v6, {8*i}, v2\nv_add_u32 v7, {8*i+4}, v2\nv_cndmask_b32 v{d0}, v{d0}, v6, vcc\nv_cndmask_b32 v{d1}, v{d1}, v7, vcc")
    a(f"""s_mul_i32 s14, {sHf}, {PSTR}
s_add_u32 s11, s11, s14
v_and_b32 v5, 31, v1
v_lshrrev_b32 v6, 5, v1
v_lshlrev_b32 v7, 5, v5
v_lshl_add_u32 v7, v6, 4, v7
v_add_u32 v{vPa}, s11, v7
v_cmp_eq_u32 vcc, 0, v6
v_lshlrev_b32 v7, 4, v5
v_add_u32 v7, {4*256}, v7
v_lshlrev_b32 v8, 3, v5
v_add_u32 v8, {4*384}, v8
v_cndmask_b32 v9, v8, v7, vcc
v_add_u32 v{vPa+1}, s11, v9
v_add_u32 v7, 8, v7
v_add_u32 v8, 256, v8
v_cndmask_b32 v9, v8, v7, vcc
v_add_u32 v{vPa+2}, s11, v9
v_lshlrev_b32 v7, 2, v5
v_lshl_add_u32 v7, v6, 9, v7
v_add_u32 v7, {4*512}, v7
v_add_u32 v{vPa+3}, s11, v7
s_mul_i32 s14, {sW4}, {SSTR}
s_add_u32 s14, s14, {SC0}
v_lshl_add_u32 v{vSw}, v1, 2, s14
v_mul_u32_u24 v7, {SROW}, v5
v_lshl_add_u32 v7, v6, 4, v7
v_add_u32 v{vRa}, s14, v7
v_add_u32 v{vRb}, {21*SROW}, v{vRa}
s_mov_b32 {sHI}, 0xffff0000
s_waitcnt lgkmcnt(0)
s_lshl_b32 s14, {sCh}, 4
s_sub_u32 s14, 16, s14
s_lshl_b32 s66, s66, s14
s_and_b32 s66, s66, {sHI}
s_lshl_b32 s67, s67, s14
s_and_b32 s67, s67, {sHI}
s_lshl_b32 s68, s68, s14
s_and_b32 s68, s68, {sHI}
s_cmp_eq_u32 {sHf}, 0
s_cselect_b32 s67, s67, 0
s_cselect_b32 s68, s68, 0
v_cmp_eq_u32 vcc, 0, v1
v_mov_b32 v7, s67
v_mov_b32 v8, s68
v_cndmask_b32 v{vFold}, 0, v7, vcc
v_cndmask_b32 v{vFoldB}, 0, v8, vcc""")
    L2E = math.log2(math.e); L2Eh = struct.unpack("<f", struct.pack("<f", L2E))[0]; L2El = L2E - L2Eh
    a(f"""v_mov_b32 v5, s66
v_mul_f32 v6, {hx(f2u(L2Eh))}, v5
v_mov_b32 v8, {hx(f2u(L2Eh))}
v_fma_f32 v7, v5, v8, -v6
v_fmac_f32 v7, {hx(f2u(L2El))}, v5
v_exp_f32 v6, v6
v_mul_f32 v7, {hx(f2u(math.log(2.0)))}, v7
v_fma_f32 v6, v6, v7, v6
v_cvt_pk_bf16_f32 v6, 0, v6
v_readfirstlane_b32 s66, v6""")
    I2P = 1.0 / (2.0 * math.pi); I2Ph = struct.unpack("<f", struct.pack("<f", I2P))[0]; I2Pl = I2P - I2Ph
    a(f"s_mov_b32 s69, {hx(f2u(I2Ph))}\ns_mov_b32 s70, 0")
    D = 96; OA = 112; OB = 128
    for i in range(16): a(f"v_mov_b32 v{D+i}, 0")
    a(f"s_waitcnt vmcnt(0)")
    stamp(1)
    A2, TH, TL, M, PH = 58, 59, 60, 62, 63
    Z1, Z2, Z4, Z8, Z256, W, X, Yc, Fc = 64, 66, 68, 70, 72, 74, 76, 78, 80
    PK = 84
    a("L_round:")
    a(f"s_cmp_eq_u32 s70, 0\ns_cbranch_scc0 L_hi")
    for i in range(6): a(f"v_lshlrev_b32 v{8+i}, 16, v{RAW+i}")
    a(f"global_load_dwordx4 {vr(SK,4)}, v4, {pSk}\nglobal_load_dwordx4 {vr(SK+4,4)}, v4, {pSk} offset:1024")
    a("s_branch L_unp\nL_hi:")
    for i in range(6): a(f"v_and_b32 v{8+i}, {sHI}, v{RAW+i}")
    a("L_unp:")
    a(f"""v_mul_f32 v8, s66, v8
v_mul_f32 v9, s66, v9
v_mul_f32 v{A2}, {hx(f2u(L2Eh))}, v8
v_mul_f32 v{TH}, s69, v9
v_fma_f32 v{TL}, v9, s69, -v{TH}
v_fmac_f32 v{TL}, {hx(f2u(I2Pl))}, v9""")
    def cmul(d, x, z):
        a(f"v_pk_mul_f32 {vr(d,2)}, {vr(x,2)}, {vr(z,2)} op_sel_hi:[0,1]" if d != x else f"v_pk_mul_f32 v[14:15], {vr(x,2)}, {vr(z,2)} op_sel_hi:[0,1]")
        t = d if d != x else 14
        a(f"v_pk_fma_f32 {vr(d,2)}, {vr(x,2)}, {vr(z,2)}, {vr(t,2)} op_sel:[1,1,0] op_sel_hi:[1,0,1] neg_lo:[1,0,0]")
    for e, Z in ((1, Z1), (8, Z8), (256, Z256)):
        if e == 1:
            a(f"v_exp_f32 v{M}, v{A2}\nv_fract_f32 v{PH}, v{TH}\nv_add_f32 v{PH}, v{PH}, v{TL}")
        else:
            c = hx(f2u(float(e)))
            a(f"v_mul_f32 v{M}, {c}, v{A2}\nv_mul_f32 v{PH}, {c}, v{TH}\nv_exp_f32 v{M}, v{M}\nv_fract_f32 v{PH}, v{PH}\nv_fmac_f32 v{PH}, {c}, v{TL}")
        a(f"v_cos_f32 v{Z}, v{PH}\nv_sin_f32 v{Z+1}, v{PH}")
        a(f"v_pk_mul_f32 {vr(Z,2)}, {vr(Z,2)}, {vr(M,2)} op_sel_hi:[1,0]")
    pk = [0]
    def cvt(row, src, neg):
        r = PK + (pk[0] % 8); pk[0] += 1
        return f"v_cvt_pk_bf16_f32 v{r}, v{src}, {'-' if neg else ''}v{src+1}", f"ds_write_b32 v{vSw}, v{r} offset:{row*SROW}"
    def cm(d, x, z):
        t = d if d != x else 14
        return (f"v_pk_mul_f32 {vr(t,2)}, {vr(x,2)}, {vr(z,2)} op_sel_hi:[0,1]",
                f"v_pk_fma_f32 {vr(d,2)}, {vr(x,2)}, {vr(z,2)}, {vr(t,2)} op_sel:[1,1,0] op_sel_hi:[1,0,1] neg_lo:[1,0,0]")
    cmul(W, 12, 10)
    a(f"v_mul_f32 v{W}, s66, v{W}\nv_mul_f32 v{W+1}, s66, v{W+1}")
    cmul(Z2, Z1, Z1); cmul(Z4, Z2, Z2)
    gch = []
    cur, oth = W, X
    def seq(rows_src):
        pass
    steps = []
    A_, B_ = X, Yc
    steps.append((None, W, None, 0))
    prev = W
    for r in range(1, 8):
        d = A_ if prev != A_ else B_
        steps.append((d, prev, Z1, r)); prev = d
    steps.append((W, W, Z256, 8)); prev = W
    for r in range(9, 12):
        d = A_ if prev != A_ else B_
        steps.append((d, prev, Z2, r)); prev = d
    steps += [(W, W, Z256, 12), (A_, W, Z4, 13), (W, W, Z256, 14), (A_, W, Z4, 15)]
    steps += [(W, W, Z256, 16 + i) for i in range(5)]
    fsteps = []
    F0, F1 = Fc, Fc + 2
    a(f"v_mov_b32 v{PK+7}, 0x3f80\nds_write_b32 v{vSw}, v{PK+7} offset:{21*SROW}")
    fsteps.append((None, Z8, None, 22))
    prev = Z8
    for jx in range(2, 32):
        d = F0 if prev != F0 else F1
        fsteps.append((d, prev, Z8, 21 + jx)); prev = d
    late = []
    for n in range(max(len(steps), len(fsteps))):
        m0, m1, cv, wr = [], [], [], []
        for lst, neg in ((fsteps, False), (steps, True)):
            if n < len(lst):
                d, x, z, row = lst[n]
                if d is not None:
                    p, q = cm(d, x, z); m0.append(p); m1.append(q); x = d
                c_, w_ = cvt(row, x, neg); cv.append(c_); wr.append(w_)
        for t in m0 + late[:1] + m1 + late[1:] + cv: a(t)
        late = wr
    for t in late: a(t)
    for s in range(8):
        ra, rb = OA + 4*(s % 4), OB + 4*(s % 4)
        a(f"ds_read_b128 {vr(ra,4)}, v{vRa} offset:{32*s}\nds_read_b128 {vr(rb,4)}, v{vRb} offset:{32*s}")
        if s >= 2:
            q = s - 2
            a(f"v_mfma_f32_32x32x16_bf16 {vr(D,16)}, {vr(OA+4*(q%4),4)}, {vr(OB+4*(q%4),4)}, {vr(D,16)}")
    for q in (6, 7):
        a(f"v_mfma_f32_32x32x16_bf16 {vr(D,16)}, {vr(OA+4*(q%4),4)}, {vr(OB+4*(q%4),4)}, {vr(D,16)}")
    a("s_add_u32 s70, s70, 1\ns_cmp_lt_u32 s70, 2\ns_cbranch_scc1 L_round")
    stamp(2)
    vKa, vUa, vYa, vPr = 2, 3, 4, 5
    a(f"""v_and_b32 v6, 3, v1
v_bfe_u32 v7, v1, 2, 2
v_lshrrev_b32 v8, 4, v1
v_add_u32 v9, v6, v7
v_lshlrev_b32 v9, 3, v9
v_lshl_add_u32 v9, v8, 6, v9
s_mul_i32 s14, {sW4}, {KSTR}
s_add_u32 s14, s14, {K0 + 8}
v_add_u32 v{vKa}, s14, v9
v_mul_u32_u24 v9, {USTR_PH}, v6
v_lshl_add_u32 v9, v8, 4, v9
v_lshlrev_b32 v7, 3, v7
v_sub_u32 v9, v9, v7
s_mul_i32 s14, {sW4}, {USTR}
s_add_u32 s14, s14, {U0 + 1016 - 32*31}
v_add_u32 v{vUa}, s14, v9
s_lshl_b32 s14, {sW4}, 13
s_add_u32 s14, s14, {Y0}
v_lshl_add_u32 v{vYa}, v1, 2, s14
s_lshl_b32 s14, {sW4}, 8
s_add_u32 s14, s14, {PR0}
v_lshl_add_u32 v{vPr}, v1, 2, s14
s_mul_i32 s14, {sCh}, {KSTR}
s_lshl_b32 s15, {sHf}, 11
s_add_u32 s14, s14, s15
v_lshl_add_u32 v10, v1, 4, s14
v_add_f32 v{D}, v{D}, v{vFold}""")
    a(f"ds_write_b128 v{vPa}, {vr(D,4)}\nds_write_b64 v{vPa+1}, {vr(D+4,2)}\nds_write_b64 v{vPa+2}, {vr(D+6,2)}")
    for r in range(4): a(f"ds_write_b32 v{vPa+3}, v{D+8+r} offset:{128*r}")
    lds_arrive(C_P, 6, 7)
    a("s_waitcnt vmcnt(0)")
    a(f"""s_mul_i32 s14, {sCh}, {KSTR}
s_lshl_b32 s15, {sHf}, 11
s_add_u32 s14, s14, s15
v_lshl_add_u32 v11, v1, 4, s14
v_lshlrev_b32 v12, 16, v{SK}
v_add_f32 v12, v12, v{vFoldB}
v_cvt_pk_bf16_f32 v12, v12, v12
v_mov_b32 v13, 0xffff
v_bfi_b32 v{SK}, v13, v12, v{SK}
ds_write_b128 v11, {vr(SK,4)} offset:{K0 + 2*KSTR + 32}
ds_write_b128 v11, {vr(SK+4,4)} offset:{K0 + 2*KSTR + 32 + 1024}""")
    if o["touch"]:
        a(f"s_lshl_b32 s14, {sJ}, 6\ns_lshl_b32 s15, {sW4}, 4\ns_add_u32 s14, s14, s15\nv_and_b32 v11, 15, v1\nv_add_u32 v11, s14, v11\nv_mul_u32_u24 v11, 896, v11\ns_lshl_b32 s14, {sG}, 7\nv_add_u32 v11, s14, v11")
        a(f"global_load_dword v57, v11, {pOut}")
    lds_wait(C_P, 4, 6, 7, 1)
    for ps in range(2):
        for i in range(8): a(f"ds_read_b32 v{64+8*ps+i}, v{EX+8*ps+i}\nds_read_b32 v{112+8*ps+i}, v{EX+8*ps+i} offset:{PSTR}")
    for ps in range(2):
        for i in range(8): a(f"v_add_f32 v{64+8*ps+i}, v{64+8*ps+i}, v{112+8*ps+i}")
        for i in range(4): a(f"v_cvt_pk_bf16_f32 v{80+4*ps+i}, v{64+8*ps+2*i}, v{64+8*ps+2*i+1}")
        a(f"ds_write_b128 v10, {vr(80+4*ps,4)} offset:{K0 + 32 + 1024*ps}")
    lds_arrive(C_K, 6, 7)
    lds_wait(C_K, 4, 6, 7, 1)
    stamp(3)
    KOP, UOP, ACC, TR = 192, 64, 24, 8
    for mu in range(16):
        a(f"ds_read_b64_tr_b16 {vr(KOP+4*mu,2)}, v{vKa} offset:{256*mu}\nds_read_b64_tr_b16 {vr(KOP+4*mu+2,2)}, v{vKa} offset:{256*mu+32}")
    ZR = 58
    for i in range(3): a(f"v_mov_b32 v{ZR+i}, 0")
    lds_wait(C_U, 4, 6, 7, 1)
    if o["prio"]: a(f"s_setprio {o['mprio']}")
    stamp(4)
    def uload(nu):
        off = 32 * (31 - nu)
        return [f"ds_read_b64 {vr(UOP+4*nu,2)}, v{vUa} offset:{off}", f"ds_read_b64 {vr(UOP+4*nu+2,2)}, v{vUa} offset:{off+8}"]
    NACC = o["nacc"]; NT = 4
    dp = "row_mask:0xf bank_mask:0xf"
    pos = [0]
    def em(t):
        a(t); pos[0] += 1
    mf_end = {}
    done_at = {}
    def epi(c):
        A = ACC + 4 * (c % NACC)
        cur = TR + 4 * (c % NT); prv = TR + 4 * ((c - 1) % NT)
        pT3 = (ACC + 4 * ((c - 1) % NACC) + 3) if c > 0 else ZR
        pT2 = prv if c > 0 else ZR + 1
        pT1 = prv + 1 if c > 0 else ZR + 2
        L = [((c, 0), f"v_add_f32_dpp v{cur}, v{pT3}, v{A+2} wave_ror:1 {dp}", 1, [(("m", c), 9), ((c - NT + 1, 1), 1), ((c - NT + 1, 3), 1), ((c - NT, 6), 1)]),
             ((c, 2), f"v_add_f32_dpp v{cur}, v{A+3}, v{A+2} wave_shr:1 {dp}", 1, [((c, 0), 1)]),
             ((c, 1), f"v_add_f32_dpp v{cur+1}, v{pT2}, v{A+1} wave_ror:1 {dp}", 1, [((c, 2), 1), ((c - 1, 2), 3)]),
             ((c, 4), f"v_add_f32_dpp v{cur+1}, v{cur}, v{A+1} wave_shr:1 {dp}", 1, [((c, 1), 1), ((c, 2), 3)]),
             ((c, 3), f"v_add_f32_dpp v{cur+2}, v{pT1}, v{A} wave_ror:1 {dp}", 1, [((c, 4), 1), ((c - 1, 4), 3)]),
             ((c, 5), f"v_add_f32_dpp v{cur+2}, v{cur+1}, v{A} wave_shr:1 {dp}", 1, [((c, 3), 1), ((c, 4), 3)]),
             ((c, 6), f"ds_write_b32 v{vYa}, v{cur+2} offset:{256*c}", 2, [((c, 5), 2), ((c - 1, 6), 1)])]
        if c % 2 == 1:
            L += [((c, 7), f"v_mov_b32_e64 v{cur+3}, {c+1}", 1, [((c, 5), 1), ((c - NT, 8), 1)]), ((c, 8), f"ds_write_b32 v{vPr}, v{cur+3}", 2, [((c, 7), 2), ((c, 6), 1)])]
        return L
    def ready(item):
        for key, dist in item[3]:
            if key[0] != "m" and key[0] < 0: continue
            if key not in done_at or pos[0] - done_at[key] < dist: return False
        return True
    queue = []
    def fill(slots):
        while slots > 0:
            pick = None
            for n, it in enumerate(queue[:24]):
                if it[2] <= slots + (1 if slots == 1 and False else 0) and ready(it): pick = n; break
            if pick is None: return
            it = queue.pop(pick); done_at[it[0]] = pos[0]; em(it[1]); slots -= it[2]
    def drain(pred):
        while any(pred(it) for it in queue):
            n0 = len(queue); fill(2)
            if len(queue) == n0: em("s_nop 0")
    for nu in range(3):
        for t in uload(nu): em(t)
    for c in range(32):
        nm = c // 2 + 1
        if c + 3 < 32:
            tl = uload(c + 3)
            queue[0:0] = [(("u", c, 0), tl[0], 1, []), (("u", c, 1), tl[1], 1, [])]
        old = c - NACC
        if old >= 0: drain(lambda it: it[0][0] == old or it[0] == (old + 1, 0))
        if c >= 1: drain(lambda it: it[0][0] == "u" and it[0][1] <= c - 2)
        for n, mu in enumerate(range(nm - 1, -1, -1)):
            A = ACC + 4 * (c % NACC)
            em(f"v_mfma_f32_16x16x32_bf16 {vr(A,4)}, {vr(UOP+4*(c-2*mu),4)}, {vr(KOP+4*mu,4)}, {'0' if n == 0 else vr(A,4)}")
            if n == nm - 1:
                done_at[("m", c)] = pos[0] - 1; queue.extend(epi(c))
            fill(2)
    drain(lambda it: True)
    stamp(5)
    dump_stamps(6)
    a("L_end:\ns_endpgm\nL_codeend:")
    body = a.finish()
    hdr = open("cdna_kernels/" + NAME + ".s.ref").read().split("; Override launch")[0]
    txt = hdr + f"""; One launch: 7 groups of 32 workgroups exchange transposed tiles through d_ws, each workgroup then
; owns two channels (S4 kernel table, two Toeplitz convolutions on MFMA, gated mix).
; @launch grid=(256,1,1) block=(512,1,1) lds={LDS_BYTES}
.amdgcn_target "amdgcn-amd-amdhsa--gfx950"
.text
.globl {NAME}_kernel
.p2align 8
.type {NAME}_kernel,@function
{NAME}_kernel:
{body}.section .rodata,"a"
.p2align 6
.amdhsa_kernel {NAME}_kernel
  .amdhsa_next_free_vgpr 256
  .amdhsa_next_free_sgpr 102
  .amdhsa_accum_offset 256
  .amdhsa_group_segment_fixed_size 0
  .amdhsa_kernarg_size 152
  .amdhsa_user_sgpr_count 2
  .amdhsa_user_sgpr_kernarg_segment_ptr 1
  .amdhsa_system_sgpr_workgroup_id_x 1
.end_amdhsa_kernel
"""
    return txt, a.nops

if __name__ == "__main__":
    out = sys.argv[1]
    kw = {k: int(v) for k, v in (x.split("=") for x in sys.argv[2:])}
    txt, nops = gen(**kw)
    open(out, "w").write(txt)
    print("wrote", out, "lines", txt.count("\n"), "nops", nops, "lds", LDS_BYTES)
```

```python
import sys, struct, math
from asmlib import Asm

NAME = "gated_mix__ssm_conv_s4__ssm_conv_h3__prompt"
DEFAULT = dict(xcdmap=1, stamps=0, sleep=1, tprio=1, hprio=0, mprio=0, touch=1, nacc=8, lsl=1, fastflag=1, probe=0, pwg=0, sigpos=20, allpoll=0)

KSTR = 4160; K0 = 0
USTR_PH = 1088; USTR = 4 * USTR_PH; U0 = 4 * KSTR
G0 = U0 + 4 * USTR
FL0 = G0 + 8192
C_SIG, C_POLL, C_U, C_P, C_K, C_G = (FL0 + 4 * i for i in range(6))
PR0 = FL0 + 256
SC0 = PR0 + 1024; SROW = 272; SSTR = 53 * SROW
Y0 = SC0
LDS_BYTES = SC0 + 8 * SSTR
WS_G = 224 * 16384
WS_FL = WS_G + 8192
WS_STAMP = 64 << 20

def f2u(x): return struct.unpack("<I", struct.pack("<f", x))[0]
def f32(x): return struct.unpack("<f", struct.pack("<f", x))[0]
def hx(x): return "0x%08x" % (x & 0xffffffff)
def vr(a, n=1): return f"v{a}" if n == 1 else f"v[{a}:{a+n-1}]"

sG, sJ, sW, sP = "s4", "s5", "s6", "s7"
pU, pAre, pAim, pBre, pBim, pCre, pCim, pLdt = (f"s[{16+2*i}:{17+2*i}]" for i in range(8))
pDs, pQ, pK, pV, pSh, pSk, pSd, pGw = (f"s[{32+2*i}:{33+2*i}]" for i in range(8))
pOut, pDbg, pWs = "s[48:49]", "s[50:51]", "s[52:53]"
srdK = "s[56:59]"
sKq, sCh, sHf, sSig = "s54", "s55", "s60", "s61"
sHI, sSel0, sSel1, sSpin = "s62", "s63", "s64", "s65"
sDt, sDs, sSd, sI2P, sNon, sRole = "s66", "s67", "s68", "s69", "s70", "s71"

def gen(**kw):
    o = dict(DEFAULT); o.update(kw)
    a = Asm()
    def stamp(i):
        if o["stamps"] == 3: a(f"s_memtime s[{72+2*i}:{73+2*i}]")
        elif o["stamps"]: a(f"s_memrealtime s[{72+2*i}:{73+2*i}]")
    def dump_stamps(role):
        if not o["stamps"]: return
        n = 8
        a("s_waitcnt lgkmcnt(0)")
        if o["stamps"] == 5:
            i = o["probe"]
            if (role == "T") == (i < 100):
                i %= 100
                a(f"s_cmp_lg_u32 s2, {o['pwg']}\ns_cbranch_scc1 L_end\ns_sub_u32 s8, s{72+2*i}, s72\ns_mul_i32 s8, s8, 20\ns_min_u32 s8, s8, 100000\ns_memrealtime s[10:11]\ns_waitcnt lgkmcnt(0)\ns_add_u32 s8, s8, s10")
                a(f"L_pr{role}:\ns_sleep 4\ns_memrealtime s[10:11]\ns_waitcnt lgkmcnt(0)\ns_sub_u32 s9, s8, s10\ns_cmp_gt_i32 s9, 0\ns_cbranch_scc1 L_pr{role}")
            return
        a(f"s_lshl_b32 s8, s2, 3\ns_add_u32 s8, s8, {sW}\ns_lshl_b32 s8, s8, 6\ns_add_u32 s8, s8, {WS_STAMP}")
        if o["stamps"] == 4 and role == "T":
            a(f"s_mov_b64 exec, 0xffff\nv_lshl_add_u32 v2, v1, 2, s8\nglobal_store_dword v2, v41, {pWs}\ns_waitcnt vmcnt(0)")
            return
        a("s_mov_b64 exec, 1\nv_mov_b32 v2, s8")
        for i in range(n):
            a(f"v_mov_b32 v3, s{72+2*i}\nglobal_store_dword v2, v3, {pWs} offset:{4*i}")
        a("s_waitcnt vmcnt(0)")
    def lds_arrive(addr, vt=2, v1=3):
        a(f"s_mov_b64 exec, 1\nv_mov_b32 v{vt}, {addr}\nv_mov_b32 v{v1}, 1\nds_add_u32 v{vt}, v{v1}\ns_mov_b64 exec, -1")
    lab = [0]
    def lds_wait(addr, target, vt=2, vv=3, slp=None):
        slp = o["lsl"] if slp is None else slp
        lab[0] += 1; L = f"L_w{lab[0]}"
        a(f"v_mov_b32 v{vt}, {addr}\ns_mov_b32 {sSpin}, 0")
        a(f"{L}:\nds_read_b32 v{vv}, v{vt}\ns_waitcnt lgkmcnt(0)\nv_cmp_le_u32 vcc, {target}, v{vv}\ns_cbranch_vccnz {L}_ok")
        if slp: a(f"s_sleep {slp}")
        a(f"s_add_u32 {sSpin}, {sSpin}, 1\ns_bitcmp0_b32 {sSpin}, 19\ns_cbranch_scc1 {L}\n{L}_ok:")

    RAW, EX, vPa, vSw, vRa, vRb, vFold, vFoldB, vKw, vPar, vSkA, vDummy = 200, 206, 214, 218, 219, 220, 221, 222, 223, 224, 225, 57
    def param_loads():
        a(f"""s_lshl_b32 s11, {sP}, 1
s_add_u32 s11, s11, {sCh}
s_lshl_b32 s14, s11, 9
s_lshl_b32 s15, {sHf}, 8
s_add_u32 s14, s14, s15
v_lshl_add_u32 v{vPar}, v1, 2, s14
s_lshl_b32 s14, {sP}, 2""")
        for i, p in enumerate((pAre, pAim, pBre, pBim, pCre, pCim)): a(f"global_load_dword v{RAW+i}, v{vPar}, {p}")
        a(f"s_load_dword {sDt}, {pLdt}, s14")

    a("s_cmp_ge_u32 s2, 256\ns_cbranch_scc1 L_end")
    stamp(0)
    a("s_load_dwordx16 s[16:31], s[0:1], 0\ns_load_dwordx16 s[32:47], s[0:1], 64")
    a("s_load_dwordx4 s[48:51], s[0:1], 128\ns_load_dwordx2 s[52:53], s[0:1], 144")
    a("v_lshrrev_b32 v2, 6, v0\nv_and_b32 v1, 63, v0")
    if o["xcdmap"]: a(f"s_and_b32 {sG}, s2, 7\ns_lshr_b32 {sJ}, s2, 3")
    else: a(f"s_lshr_b32 {sG}, s2, 5\ns_and_b32 {sJ}, s2, 31")
    a(f"v_readfirstlane_b32 {sW}, v2")
    a(f"s_lshl_b32 {sP}, {sG}, 5\ns_add_u32 {sP}, {sP}, {sJ}")
    a(f"s_and_b32 {sKq}, {sW}, 3\ns_lshr_b32 {sCh}, {sKq}, 1\ns_and_b32 {sHf}, {sW}, 1")
    a(f"s_cmp_ge_u32 {sW}, 4\ns_cbranch_scc1 L_kpre")

    vB, vB2, vKA, vSt, vGa, vZ = 10, 11, 12, 9, 5, 4
    U_, V_, K_, SH, GU, GW, NON = 16, 24, 32, 44, 48, 56, 63
    a(f"""s_lshr_b32 s8, {sW}, 1
s_lshl_b32 s8, s8, 5
s_lshl_b32 s9, {sJ}, 6
s_add_u32 s8, s8, s9
s_mul_i32 s8, s8, 896
s_lshl_b32 s10, {sHf}, 6
s_lshl_b32 s11, {sG}, 7
s_add_u32 s10, s10, s11
s_add_u32 s8, s8, s10
v_lshrrev_b32 v2, 4, v1
v_and_b32 v3, 15, v1
v_mul_u32_u24 v4, {8*896}, v2
v_lshl_add_u32 v4, v3, 2, v4
v_add_u32 v{vB}, s8, v4
v_add_u32 v{vB2}, {4*896}, v{vB}
v_subrev_u32 v{vKA}, {3*896}, v{vB}
s_lshl_b32 s10, s10, 2
v_lshl_add_u32 v8, v3, 4, s10
s_cmp_eq_u32 {sG}, 7
s_waitcnt lgkmcnt(0)
s_cbranch_scc1 L_tskip
s_mov_b32 s56, s36
s_mov_b32 s57, s37
s_mov_b32 s58, 1835008
s_mov_b32 s59, 0x20000""")
    rows = [((vB, 896*i) if i < 4 else (vB2, 896*(i-4))) for i in range(8)]
    for i in range(3): a(f"buffer_load_dword v{K_+i}, v{vKA}, {srdK}, 0 offen offset:{896*i}")
    for i, (b, off) in enumerate(rows): a(f"buffer_load_dword v{K_+3+i}, v{b}, {srdK}, 0 offen offset:{off}")
    a(f"global_load_dwordx4 v[{SH}:{SH+3}], v8, {pSh}")
    for i, (b, off) in enumerate(rows): a(f"global_load_dword v{V_+i}, v{b}, {pV} offset:{off}")
    for i, (b, off) in enumerate(rows): a(f"global_load_dword v{U_+i}, v{b}, {pU} offset:{off}")
    param_loads()
    a("L_tskip:")
    a(f"""s_mov_b32 {sSel0}, 0x05040100
s_mov_b32 {sSel1}, 0x07060302
s_lshl_b32 s12, s2, 3
s_lshl_b32 s13, {sW}, 1
s_add_u32 s12, s12, s13
v_lshrrev_b32 v7, 5, v1
v_add_u32 v7, s12, v7
v_and_b32 v6, 31, v1
v_mul_u32_u24 v6, 28, v6
v_mul_u32_u24 v7, 896, v7
v_add_u32 v7, v7, v6
s_lshl_b32 s8, {sG}, 5
s_lshl_b32 s9, {sHf}, 4
s_add_u32 s8, s8, s9
s_lshl_b32 s8, s8, 14
s_lshl_b32 s9, {sJ}, 9
s_add_u32 s8, s8, s9
s_lshl_b32 s9, {sCh}, 6
s_add_u32 s8, s8, s9
v_lshlrev_b32 v{vSt}, 14, v3
v_lshl_add_u32 v{vSt}, v2, 4, v{vSt}
v_add_u32 v{vSt}, s8, v{vSt}
s_lshl_b32 s8, s2, 2
s_add_u32 s8, s8, {sW}
s_lshl_b32 s8, s8, 3
s_add_u32 s8, s8, {WS_G}
v_mov_b32 v{vGa}, s8
v_mov_b32 v{vZ}, 0
s_mov_b32 {sRole}, 1
s_mov_b32 {sSig}, 2""")
    if o["tprio"]: a(f"s_setprio {o['tprio']}")
    a("s_branch L_setup")

    a(f"""L_kpre:
s_getpc_b64 s[12:13]
L_pc:
s_sub_u32 s12, s12, L_pc-{NAME}_kernel
s_subb_u32 s13, s13, 0
v_and_b32 v2, 127, v0
v_lshlrev_b32 v2, 7, v2
v_min_u32 v2, L_codeend-{NAME}_kernel-4, v2
global_load_dword v{vDummy}, v2, s[12:13]
s_mov_b32 {sRole}, 0
s_mov_b32 {sSig}, 0
s_cmp_eq_u32 {sG}, 7
s_waitcnt lgkmcnt(0)
s_cbranch_scc1 L_kinit""")
    param_loads()
    a(f"s_load_dword {sDs}, {pDs}, s14\ns_load_dword {sSd}, {pSd}, s14")
    a(f"""s_cmp_lg_u32 s2, 0
s_cbranch_scc1 L_nonon
s_cmp_lg_u32 {sKq}, 0
s_cbranch_scc1 L_nonon
s_memrealtime s[12:13]
s_mov_b64 exec, 1
v_mov_b32 v7, 0
v_mov_b32 v5, 0
s_waitcnt lgkmcnt(0)
s_or_b32 s12, s12, 1
v_mov_b32 v6, s12
global_atomic_cmpswap v5, v[6:7], {pDbg} sc1
s_mov_b64 exec, -1
L_nonon:""")
    if o["fastflag"]:
        a(f"s_cmp_lg_u32 {sKq}, 3\ns_cbranch_scc1 L_kinit\ns_lshl_b32 s14, {sG}, 13\ns_add_u32 s14, s14, {WS_FL}\nv_lshl_add_u32 v2, v1, 7, s14\nglobal_load_dword v{vDummy}, v2, {pWs} sc1")
    a(f"""L_kinit:
v_mov_b32 v8, 0
v_mov_b32 v9, 0
v_mov_b32 v10, 0
v_mov_b32 v11, 0
v_lshlrev_b32 v5, 4, v1
ds_write_b128 v5, v[8:11] offset:{FL0}
ds_write_b128 v5, v[8:11] offset:{FL0 + 256}
v_lshrrev_b32 v5, 2, v1
v_mul_u32_u24 v5, {USTR_PH}, v5
v_and_b32 v6, 3, v1
v_lshl_add_u32 v5, v6, 4, v5
ds_write_b128 v5, v[8:11] offset:{U0 + 1024}
v_bfe_u32 v5, v1, 1, 2
v_mul_u32_u24 v5, {KSTR}, v5
v_and_b32 v6, 1, v1
v_lshl_add_u32 v5, v6, 4, v5
ds_write_b128 v5, v[8:11] offset:{K0}""")

    a(f"""L_setup:
s_mov_b32 {sHI}, 0xffff0000
s_waitcnt lgkmcnt(0)
s_barrier
s_cmp_lg_u32 {sG}, 7
s_cbranch_scc1 L_main
s_cmp_eq_u32 {sRole}, 0
s_cbranch_scc1 L_end
s_branch L_g7
L_main:
s_add_u32 {sSig}, {sSig}, {sHf}
s_mul_i32 s11, {sCh}, {4*SSTR}
s_add_u32 s11, s11, {SC0}""")
    a(f"""s_mul_i32 s14, {sSig}, {SSTR}
s_add_u32 s11, s11, s14
v_and_b32 v13, 31, v1
v_lshrrev_b32 v14, 5, v1
v_lshlrev_b32 v15, 5, v13
v_lshl_add_u32 v15, v14, 4, v15
v_add_u32 v{vPa}, s11, v15
v_cmp_eq_u32 vcc, 0, v14
v_lshlrev_b32 v15, 4, v13
v_add_u32 v15, {4*256}, v15
v_lshlrev_b32 v2, 3, v13
v_add_u32 v2, {4*384}, v2
v_cndmask_b32 v3, v2, v15, vcc
v_add_u32 v{vPa+1}, s11, v3
v_add_u32 v15, 8, v15
v_add_u32 v2, 256, v2
v_cndmask_b32 v3, v2, v15, vcc
v_add_u32 v{vPa+2}, s11, v3
v_lshlrev_b32 v15, 2, v13
v_lshl_add_u32 v15, v14, 9, v15
v_add_u32 v15, {4*512}, v15
v_add_u32 v{vPa+3}, s11, v15
v_lshl_add_u32 v{vSw}, v1, 2, s11
v_mul_u32_u24 v15, {SROW}, v13
v_lshl_add_u32 v15, v14, 4, v15
v_add_u32 v{vRa}, s11, v15
v_add_u32 v{vRb}, {21*SROW}, v{vRa}
s_lshl_b32 s14, {sCh}, 4
s_sub_u32 s14, 16, s14
s_lshl_b32 {sDt}, {sDt}, s14
s_and_b32 {sDt}, {sDt}, {sHI}""")
    L2E = math.log2(math.e); L2Eh = f32(L2E); L2El = L2E - L2Eh
    I2P = 1.0 / (2.0 * math.pi); I2Ph = f32(I2P); I2Pl = I2P - I2Ph
    a(f"""v_mov_b32 v13, {sDt}
v_mul_f32 v14, {hx(f2u(L2Eh))}, v13
v_mov_b32 v2, {hx(f2u(L2Eh))}
v_fma_f32 v15, v13, v2, -v14
v_fmac_f32 v15, {hx(f2u(L2El))}, v13
v_exp_f32 v14, v14
v_mul_f32 v15, {hx(f2u(math.log(2.0)))}, v15
v_fma_f32 v14, v14, v15, v14
v_cvt_pk_bf16_f32 v14, 0, v14
v_readfirstlane_b32 {sDt}, v14
s_mov_b32 {sI2P}, {hx(f2u(I2Ph))}""")
    D = 176
    a(f"s_cmp_eq_u32 {sRole}, 0\ns_cbranch_scc1 L_kround")

    KU, WT, AC, VT, PC = 64, 86, 96, 112, 120
    a("s_waitcnt vmcnt(30)")
    for i in range(3): a(f"v_lshlrev_b32 v{KU+2*i}, 16, v{K_+i}\nv_and_b32 v{KU+2*i+1}, {sHI}, v{K_+i}")
    a("s_waitcnt vmcnt(22)")
    for i in range(3, 11): a(f"v_lshlrev_b32 v{KU+2*i}, 16, v{K_+i}\nv_and_b32 v{KU+2*i+1}, {sHI}, v{K_+i}")
    for ch in range(2):
        for t in range(4):
            src = SH + 2*ch + t//2
            a(f"v_lshlrev_b32 v{WT+2*t+ch}, 16, v{src}" if t % 2 == 0 else f"v_and_b32 v{WT+2*t+ch}, {sHI}, v{src}")
    stamp(1)
    for t in range(4):
        for r in range(8):
            k = KU + 2*(r + 3 - t)
            if t == 0: a(f"v_pk_mul_f32 {vr(AC+2*r,2)}, {vr(k,2)}, {vr(WT,2)}")
            else: a(f"v_pk_fma_f32 {vr(AC+2*r,2)}, {vr(k,2)}, {vr(WT+2*t,2)}, {vr(AC+2*r,2)}")
    a("s_waitcnt vmcnt(14)")
    for r in range(8):
        t = VT + 2*(r % 4)
        a(f"v_lshlrev_b32 v{t}, 16, v{V_+r}\nv_and_b32 v{t+1}, {sHI}, v{V_+r}")
        a(f"v_pk_mul_f32 {vr(AC+2*r,2)}, {vr(AC+2*r,2)}, {vr(t,2)}")
    def gate_loads():
        a(f"global_load_dwordx4 v[{GU}:{GU+3}], v7, {pU}\nglobal_load_dwordx3 v[{GU+4}:{GU+6}], v7, {pU} offset:16")
        a(f"global_load_dwordx4 v[{GW}:{GW+3}], v6, {pGw}\nglobal_load_dwordx3 v[{GW+4}:{GW+6}], v6, {pGw} offset:16")
        a(f"global_load_dword v{NON}, v{vZ}, {pDbg} sc1")
    def transpose2(b0, b1):
        for st, pr in (("32", ((0, 2), (1, 3))), ("16", ((0, 1), (2, 3)))):
            for base in (b0, b1):
                for x, y in pr: a(f"v_permlane{st}_swap_b32 v{base+3-x}, v{base+3-y}")
    for ch in range(2):
        for rho in range(4):
            a(f"v_cvt_pk_bf16_f32 v{PC+8+4*ch+3-rho}, v{AC+2*(rho+4)+ch}, v{AC+2*rho+ch}")
    transpose2(PC + 8, PC + 12)
    for ch in range(2): a(f"global_store_dwordx4 v{vSt}, {vr(PC+8+4*ch,4)}, {pWs} offset:{(2+ch)*128} sc1")
    a("s_waitcnt vmcnt(8)")
    for ch in range(2):
        for rho in range(4):
            a(f"v_perm_b32 v{PC+4*ch+3-rho}, v{U_+rho}, v{U_+rho+4}, {sSel0 if ch == 0 else sSel1}")
    transpose2(PC, PC + 4)
    for ch in range(2): a(f"global_store_dwordx4 v{vSt}, {vr(PC+4*ch,4)}, {pWs} offset:{ch*128} sc1")
    gate_loads()
    stamp(2)
    a("s_waitcnt vmcnt(9)")
    for i in range(6): a(f"v_and_b32 v{8+i}, {sHI}, v{RAW+i}")
    a("s_branch L_round")
    SK = 24
    a(f"""L_kround:
s_lshl_b32 s14, {sP}, 1
s_add_u32 s14, s14, {sCh}
s_lshl_b32 s14, s14, 12
s_lshl_b32 s15, {sHf}, 11
s_add_u32 s14, s14, s15
v_lshl_add_u32 v{vSkA}, v1, 4, s14
s_waitcnt vmcnt(0)""")
    stamp(1)
    for i in range(6): a(f"v_lshlrev_b32 v{8+i}, 16, v{RAW+i}")
    a(f"global_load_dwordx4 {vr(SK,4)}, v{vSkA}, {pSk}\nglobal_load_dwordx4 {vr(SK+4,4)}, v{vSkA}, {pSk} offset:1024")

    a("L_round:")
    A2, TH, TL, M, PH = 140, 141, 142, 144, 145
    Z1, Z2, Z4, Z8, Z256, W, X, Yc, Fc = 146, 148, 150, 152, 154, 156, 158, 160, 162
    PK = 166; OA = 64; OB = 80
    a(f"""v_mul_f32 v8, {sDt}, v8
v_mul_f32 v9, {sDt}, v9
v_mul_f32 v{A2}, {hx(f2u(L2Eh))}, v8
v_mul_f32 v{TH}, {sI2P}, v9
v_fma_f32 v{TL}, v9, {sI2P}, -v{TH}
v_fmac_f32 v{TL}, {hx(f2u(I2Pl))}, v9""")
    def cm(d, x, z):
        t = d if d != x else 14
        return (f"v_pk_mul_f32 {vr(t,2)}, {vr(x,2)}, {vr(z,2)} op_sel_hi:[0,1]",
                f"v_pk_fma_f32 {vr(d,2)}, {vr(x,2)}, {vr(z,2)}, {vr(t,2)} op_sel:[1,1,0] op_sel_hi:[1,0,1] neg_lo:[1,0,0]")
    def cmul(d, x, z):
        for t in cm(d, x, z): a(t)
    anchors = ((1, Z1, 136), (8, Z8, 138), (256, Z256, 144))
    for e, Z, Mx in anchors:
        if e == 1: a(f"v_exp_f32 v{Mx}, v{A2}\nv_fract_f32 v{Mx+1}, v{TH}")
        else:
            c = hx(f2u(float(e)))
            a(f"v_mul_f32 v{Mx}, {c}, v{A2}\nv_mul_f32 v{Mx+1}, {c}, v{TH}\nv_exp_f32 v{Mx}, v{Mx}\nv_fract_f32 v{Mx+1}, v{Mx+1}")
    for e, Z, Mx in anchors:
        if e == 1: a(f"v_add_f32 v{Mx+1}, v{Mx+1}, v{TL}")
        else: a(f"v_fmac_f32 v{Mx+1}, {hx(f2u(float(e)))}, v{TL}")
    for e, Z, Mx in anchors: a(f"v_cos_f32 v{Z}, v{Mx+1}\nv_sin_f32 v{Z+1}, v{Mx+1}")
    cmul(W, 12, 10)
    for e, Z, Mx in anchors: a(f"v_pk_mul_f32 {vr(Z,2)}, {vr(Z,2)}, {vr(Mx,2)} op_sel_hi:[1,0]")
    a(f"v_mul_f32 v{W}, {sDt}, v{W}\nv_mul_f32 v{W+1}, {sDt}, v{W+1}")
    cmul(Z2, Z1, Z1)
    a(f"v_mov_b32 v{PK+7}, 0x3f80\nds_write_b32 v{vSw}, v{PK+7} offset:{21*SROW}")
    cmul(Z4, Z2, Z2)
    pk = [0]
    def cvt(row, src, neg):
        r = PK + (pk[0] % 8); pk[0] += 1
        return f"v_cvt_pk_bf16_f32 v{r}, v{src}, {'-' if neg else ''}v{src+1}", f"ds_write_b32 v{vSw}, v{r} offset:{row*SROW}"
    steps = [(None, W, None, 0)]; prev = W
    for r in range(1, 8):
        d = X if prev != X else Yc
        steps.append((d, prev, Z1, r)); prev = d
    steps.append((W, W, Z256, 8)); prev = W
    for r in range(9, 12):
        d = X if prev != X else Yc
        steps.append((d, prev, Z2, r)); prev = d
    steps += [(W, W, Z256, 12), (X, W, Z4, 13), (W, W, Z256, 14), (X, W, Z4, 15)]
    steps += [(W, W, Z256, 16 + i) for i in range(5)]
    fsteps = [(None, Z8, None, 22)]; prev = Z8
    for jx in range(2, 32):
        d = Fc if prev != Fc else Fc + 2
        fsteps.append((d, prev, Z8, 21 + jx)); prev = d
    late = []
    for n in range(max(len(steps), len(fsteps))):
        m0, m1, cv, wr = [], [], [], []
        for lst, neg in ((fsteps, False), (steps, True)):
            if n < len(lst):
                d, x, z, row = lst[n]
                if d is not None:
                    p, q = cm(d, x, z); m0.append(p); m1.append(q); x = d
                c_, w_ = cvt(row, x, neg); cv.append(c_); wr.append(w_)
        for t in m0 + late[:1] + m1 + late[1:] + cv: a(t)
        late = wr
        if n == o["sigpos"]: a(f"s_cmp_eq_u32 {sRole}, 1\ns_cbranch_scc1 L_sig\nL_sigret:")
    for t in late: a(t)
    def kmf(q): a(f"v_mfma_f32_32x32x16_bf16 {vr(D,16)}, {vr(OA+4*(q%4),4)}, {vr(OB+4*(q%4),4)}, {vr(D,16) if q else 0}")
    for s in range(8):
        a(f"ds_read_b128 {vr(OA+4*(s%4),4)}, v{vRa} offset:{32*s}\nds_read_b128 {vr(OB+4*(s%4),4)}, v{vRb} offset:{32*s}")
        if s >= 3: kmf(s - 3)
    for q in (5, 6, 7): kmf(q)
    a(f"s_cmp_eq_u32 {sRole}, 1\ns_cbranch_scc1 L_tpost")

    def table_write():
        a(f"ds_write_b128 v{vPa}, {vr(D,4)}\nds_write_b64 v{vPa+1}, {vr(D+4,2)}\nds_write_b64 v{vPa+2}, {vr(D+6,2)}")
        for r in range(4): a(f"ds_write_b32 v{vPa+3}, v{D+8+r} offset:{128*r}")
        lds_arrive(C_P)
    def gather(dst, n, vaddr, off):
        for q in range(4):
            r = dst + 4*q
            if n == 4: a(f"ds_read_b128 {vr(r,4)}, v{vaddr} offset:{off + q*SSTR}")
            else: a(f"ds_read_b64 {vr(r,2)}, v{vaddr} offset:{off + q*SSTR}\nds_read_b32 v{r+2}, v{vaddr} offset:{off + q*SSTR + 8}")
    def total(dst, n):
        for i in range(n): a(f"v_add_f32 v{dst+i}, v{dst+i}, v{dst+4+i}\nv_add_f32 v{dst+8+i}, v{dst+8+i}, v{dst+12+i}")
        for i in range(n): a(f"v_add_f32 v{dst+i}, v{dst+i}, v{dst+8+i}")
    def pack(dst, src, pat):
        for i, (x, y) in enumerate(pat): a(f"v_cvt_pk_bf16_f32 v{dst+i}, v{src+x}, v{src+y}")
    def expand():
        a(f"""s_mul_i32 s14, {sCh}, {4*SSTR}
s_add_u32 s14, s14, {SC0}
v_lshl_add_u32 v18, v1, 3, s14
v_lshl_add_u32 v19, v1, 4, s14
s_mul_i32 s14, {sCh}, {KSTR}
s_add_u32 s14, s14, {K0 + 32}
v_lshl_add_u32 v20, v1, 3, s14
v_lshl_add_u32 v21, v1, 4, s14
v_lshl_add_u32 v22, v1, 5, s14""")
        lds_wait(C_P, 8, slp=0)
        a(f"s_cmp_eq_u32 {sHf}, 0\ns_cbranch_scc1 L_exp0")
        gather(64, 3, 18, 4*256); gather(80, 3, 18, 4*384)
        total(64, 3); pack(96, 64, ((0, 0), (1, 2)))
        a(f"ds_write_b64 v20, v[96:97] offset:{2*256}")
        total(80, 3); pack(100, 80, ((0, 0), (0, 1), (1, 1), (2, 2)))
        a(f"ds_write_b128 v21, v[100:103] offset:{2*512}")
        a("s_branch L_expd\nL_exp0:")
        gather(64, 3, 18, 4*512); gather(80, 4, 19, 0)
        total(64, 3); pack(96, 64, ((0, 0), (0, 0), (0, 1), (1, 1), (1, 1), (1, 1), (2, 2), (2, 2)))
        a(f"ds_write_b128 v22, v[96:99] offset:{2*1024}\nds_write_b128 v22, v[100:103] offset:{2*1024+16}")
        total(80, 4); pack(104, 80, ((0, 1), (2, 3)))
        a(f"ds_write_b64 v20, v[104:105]")
        a("L_expd:")
        lds_arrive(C_K)

    stamp(2)
    vKa, vUa, vYa, vPr = 16, 17, 4, 5
    a(f"""s_lshl_b32 s14, {sCh}, 4
s_sub_u32 s14, 16, s14
s_lshl_b32 {sDs}, {sDs}, s14
s_and_b32 {sDs}, {sDs}, {sHI}
s_lshl_b32 {sSd}, {sSd}, s14
s_and_b32 {sSd}, {sSd}, {sHI}
s_cmp_eq_u32 {sHf}, 0
s_cselect_b32 {sDs}, {sDs}, 0
s_cselect_b32 {sSd}, {sSd}, 0
v_cmp_eq_u32 vcc, 0, v1
v_mov_b32 v7, {sDs}
v_mov_b32 v8, {sSd}
v_cndmask_b32 v{vFold}, 0, v7, vcc
v_cndmask_b32 v{vFoldB}, 0, v8, vcc
v_add_f32 v{D}, v{D}, v{vFold}""")
    table_write()
    a(f"""v_and_b32 v6, 3, v1
v_bfe_u32 v7, v1, 2, 2
v_lshrrev_b32 v8, 4, v1
v_add_u32 v9, v6, v7
v_lshlrev_b32 v9, 3, v9
v_lshl_add_u32 v9, v8, 6, v9
s_mul_i32 s14, {sKq}, {KSTR}
s_add_u32 s14, s14, {K0 + 8}
v_add_u32 v{vKa}, s14, v9
v_mul_u32_u24 v9, {USTR_PH}, v6
v_lshl_add_u32 v9, v8, 4, v9
v_lshlrev_b32 v7, 3, v7
v_sub_u32 v9, v9, v7
s_mul_i32 s14, {sKq}, {USTR}
s_add_u32 s14, s14, {U0 + 1016 - 32*31}
v_add_u32 v{vUa}, s14, v9
s_lshl_b32 s14, {sKq}, 13
s_add_u32 s14, s14, {Y0}
v_lshl_add_u32 v{vYa}, v1, 2, s14
s_lshl_b32 s14, {sKq}, 8
s_add_u32 s14, s14, {PR0}
v_lshl_add_u32 v{vPr}, v1, 2, s14
s_mul_i32 s14, {sCh}, {KSTR}
s_lshl_b32 s15, {sHf}, 11
s_add_u32 s14, s14, s15
v_lshl_add_u32 v11, v1, 4, s14
s_waitcnt vmcnt(0)
v_lshlrev_b32 v12, 16, v{SK}
v_add_f32 v12, v12, v{vFoldB}
v_cvt_pk_bf16_f32 v12, v12, v12
v_mov_b32 v13, 0xffff
v_bfi_b32 v{SK}, v13, v12, v{SK}
ds_write_b128 v11, {vr(SK,4)} offset:{K0 + 2*KSTR + 32}
ds_write_b128 v11, {vr(SK+4,4)} offset:{K0 + 2*KSTR + 32 + 1024}""")
    if o["touch"]:
        a(f"s_lshl_b32 s14, {sJ}, 6\ns_lshl_b32 s15, {sKq}, 4\ns_add_u32 s14, s14, s15\nv_and_b32 v11, 15, v1\nv_add_u32 v11, s14, v11\nv_mul_u32_u24 v11, 896, v11\ns_lshl_b32 s14, {sG}, 7\nv_add_u32 v11, s14, v11")
        a(f"global_load_dword v{vDummy}, v11, {pOut}")
    expand()
    lds_wait(C_K, 4, slp=0)
    stamp(3)
    KOP, UOP, ACC, TR, ZR = 192, 64, 24, 8, 58
    a(f"v_mov_b32 v2, v{vKa}\nv_mov_b32 v3, v{vUa}")
    vKa, vUa = 2, 3
    for mu in range(16):
        a(f"ds_read_b64_tr_b16 {vr(KOP+4*mu,2)}, v{vKa} offset:{256*mu}\nds_read_b64_tr_b16 {vr(KOP+4*mu+2,2)}, v{vKa} offset:{256*mu+32}")
    for i in range(3): a(f"v_mov_b32 v{ZR+i}, 0")
    lds_wait(C_U, 4, 6, 7, slp=0)
    if o["mprio"]: a(f"s_setprio {o['mprio']}")
    stamp(4)
    def uload(nu):
        off = 32 * (31 - nu)
        return [f"ds_read_b64 {vr(UOP+4*nu,2)}, v{vUa} offset:{off}", f"ds_read_b64 {vr(UOP+4*nu+2,2)}, v{vUa} offset:{off+8}"]
    NACC = o["nacc"]; NT = 4
    dp = "row_mask:0xf bank_mask:0xf"
    pos = [0]
    def em(t):
        a(t); pos[0] += 1
    done_at = {}
    lastflag = [None]
    def epi(c):
        A = ACC + 4 * (c % NACC)
        cur = TR + 4 * (c % NT); prv = TR + 4 * ((c - 1) % NT)
        pT3 = (ACC + 4 * ((c - 1) % NACC) + 3) if c > 0 else ZR
        pT2 = prv if c > 0 else ZR + 1
        pT1 = prv + 1 if c > 0 else ZR + 2
        L = [((c, 0), f"v_add_f32_dpp v{cur}, v{pT3}, v{A+2} wave_ror:1 {dp}", 1, [(("m", c), 9), ((c - NT + 1, 1), 1), ((c - NT + 1, 3), 1), ((c - NT, 6), 1)]),
             ((c, 2), f"v_add_f32_dpp v{cur}, v{A+3}, v{A+2} wave_shr:1 {dp}", 1, [((c, 0), 1)]),
             ((c, 1), f"v_add_f32_dpp v{cur+1}, v{pT2}, v{A+1} wave_ror:1 {dp}", 1, [((c, 2), 1), ((c - 1, 2), 3)]),
             ((c, 4), f"v_add_f32_dpp v{cur+1}, v{cur}, v{A+1} wave_shr:1 {dp}", 1, [((c, 1), 1), ((c, 2), 3)]),
             ((c, 3), f"v_add_f32_dpp v{cur+2}, v{pT1}, v{A} wave_ror:1 {dp}", 1, [((c, 4), 1), ((c - 1, 4), 3)]),
             ((c, 5), f"v_add_f32_dpp v{cur+2}, v{cur+1}, v{A} wave_shr:1 {dp}", 1, [((c, 3), 1), ((c, 4), 3)]),
             ((c, 6), f"ds_write_b32 v{vYa}, v{cur+2} offset:{256*c}", 2, [((c, 5), 2), ((c - 1, 6), 1)])]
        if c % 2 == 1 or c >= 28:
            dep = [((c, 5), 1)] + ([(lastflag[0], 1)] if lastflag[0] else [])
            L += [((c, 7), f"v_mov_b32_e64 v61, {c+1}", 1, dep), ((c, 8), f"ds_write_b32 v{vPr}, v61", 2, [((c, 7), 2), ((c, 6), 1)])]
            lastflag[0] = (c, 8)
        return L
    def ready(item):
        for key, dist in item[3]:
            if key[0] != "m" and key[0] < 0: continue
            if key not in done_at or pos[0] - done_at[key] < dist: return False
        return True
    queue = []
    def fill(slots):
        while slots > 0:
            pick = None
            for n, it in enumerate(queue[:24]):
                if it[2] <= slots and ready(it): pick = n; break
            if pick is None: return
            it = queue.pop(pick); done_at[it[0]] = pos[0]; em(it[1]); slots -= it[2]
    def drain(pred):
        while any(pred(it) for it in queue):
            n0 = len(queue); fill(2)
            if len(queue) == n0: em("s_nop 0")
    for nu in range(3):
        for t in uload(nu): em(t)
    for c in range(32):
        nm = c // 2 + 1
        if c + 3 < 32:
            tl = uload(c + 3)
            queue[0:0] = [(("u", c, 0), tl[0], 1, []), (("u", c, 1), tl[1], 1, [])]
        old = c - NACC
        if old >= 0: drain(lambda it: it[0][0] == old or it[0] == (old + 1, 0))
        if c >= 1: drain(lambda it: it[0][0] == "u" and it[0][1] <= c - 2)
        for n, mu in enumerate(range(nm - 1, -1, -1)):
            A = ACC + 4 * (c % NACC)
            em(f"v_mfma_f32_16x16x32_bf16 {vr(A,4)}, {vr(UOP+4*(c-2*mu),4)}, {vr(KOP+4*mu,4)}, {'0' if n == 0 else vr(A,4)}")
            if n == nm - 1:
                done_at[("m", c)] = pos[0] - 1; queue.extend(epi(c))
            fill(2)
    drain(lambda it: True)
    stamp(5)
    dump_stamps("K")
    a("s_endpgm")

    def nonce(tag):
        a(f"s_mov_b32 {sSpin}, 0\nL_non{tag}:\nv_readfirstlane_b32 {sNon}, v{NON}\ns_cmp_lg_u32 {sNon}, 0\ns_cbranch_scc1 L_non{tag}_ok")
        a(f"s_sleep 4\nglobal_load_dword v{NON}, v{vZ}, {pDbg} sc1\ns_waitcnt vmcnt(0)\ns_add_u32 {sSpin}, {sSpin}, 1\ns_bitcmp0_b32 {sSpin}, 16\ns_cbranch_scc1 L_non{tag}\nL_non{tag}_ok:")
    def gate():
        a("v_mov_b32 v2, 0")
        for i in range(7): a(f"v_dot2_f32_bf16 v2, v{GU+i}, v{GW+i}, v2")
        for sh in (1, 2, 4, 8): a(f"v_add_f32_dpp v2, v2, v2 row_shr:{sh} row_mask:0xf bank_mask:0xf bound_ctrl:0")
        a("v_add_f32_dpp v2, v2, v2 row_bcast:15 row_mask:0xa bank_mask:0xf")
        a(f"v_cvt_pk_bf16_f32 v2, 0, v2\nv_mul_f32 v2, {hx(f2u(-L2E))}, v2\nv_exp_f32 v2, v2\nv_add_f32 v2, 1.0, v2\nv_rcp_f32 v2, v2")
        a(f"v_readlane_b32 s8, v2, 31\nv_mov_b32 v3, {sNon}\nv_cvt_pk_bf16_f32 v2, s8, v2")
        a("s_mov_b32 exec_lo, 0\ns_mov_b32 exec_hi, 0x80000000")
        a(f"global_store_dwordx2 v{vGa}, v[2:3], {pWs} sc1")
        a("s_mov_b64 exec, -1")
    a("L_sig:\ns_waitcnt vmcnt(0)")
    stamp(3)
    a(f"s_mov_b64 exec, 1\nv_mov_b32 v2, {C_SIG}\nv_mov_b32 v3, 1\nds_add_rtn_u32 v6, v2, v3\ns_mov_b64 exec, -1")
    nonce("a")
    a(f"s_lshl_b32 s8, {sG}, 13\ns_lshl_b32 s9, {sJ}, 7\ns_add_u32 s8, s8, s9\ns_add_u32 s8, s8, {WS_FL}\nv_mov_b32 v2, s8\nv_add_u32 v3, 4096, v2")
    a("s_waitcnt lgkmcnt(0)\nv_readfirstlane_b32 s8, v6\ns_cmp_lg_u32 s8, 3\ns_cbranch_scc1 L_sigd\ns_mov_b64 exec, 1")
    if o["fastflag"]: a(f"global_store_dword v2, v{NON}, {pWs}")
    a(f"global_store_dword v3, v{NON}, {pWs} sc1\ns_mov_b64 exec, -1\nL_sigd:")
    gate()
    a("s_branch L_sigret")
    a("L_tpost:")
    a(f"s_lshl_b32 s8, {sG}, 13\ns_add_u32 s8, s8, {WS_FL}\nv_lshl_add_u32 v18, v1, 7, s8")
    if not o["allpoll"]: a(f"s_cmp_lg_u32 {sW}, 0\ns_cbranch_scc1 L_np0")
    a(f"global_load_dword v19, v18, {pWs} sc1\nL_np0:")
    PL, GL = 136, 152
    a(f"""s_lshl_b32 s8, {sP}, 14
v_lshlrev_b32 v10, 4, v0
v_add_u32 v11, {WS_G}, v10
v_add_u32 v10, s8, v10
v_add_u32 v12, 4096, v10
v_add_u32 v13, 8192, v10
v_add_u32 v14, 12288, v10
v_add_u32 v15, 4096, v11
v_and_b32 v2, 3, v0
v_mul_u32_u24 v16, {USTR_PH}, v2
v_bfe_u32 v2, v0, 3, 2
v_mul_u32_u24 v3, {USTR}, v2
v_add_u32 v16, v16, v3
v_bfe_u32 v2, v0, 2, 1
v_lshlrev_b32 v2, 4, v2
v_lshrrev_b32 v3, 5, v0
v_lshl_add_u32 v2, v3, 5, v2
v_sub_u32 v16, v16, v2
v_add_u32 v16, {U0 + 1008 - 768}, v16
v_lshlrev_b32 v17, 4, v0
v_add_u32 v17, {G0}, v17""")
    table_write()
    if not o["allpoll"]: a(f"s_cmp_lg_u32 {sW}, 0\ns_cbranch_scc1 L_nopoll")
    a(f"s_mov_b32 {sSpin}, 0\nL_poll:\ns_waitcnt vmcnt(0)\nv_cmp_eq_u32 vcc, {sNon}, v19\ns_or_b32 s8, vcc_lo, vcc_hi\ns_cmp_eq_u32 s8, -1\ns_cbranch_scc1 L_polled")
    if o["sleep"]: a(f"s_sleep {o['sleep']}")
    a(f"global_load_dword v19, v18, {pWs} sc1\ns_add_u32 {sSpin}, {sSpin}, 1\ns_bitcmp0_b32 {sSpin}, 16\ns_cbranch_scc1 L_poll\nL_polled:")
    if not o["allpoll"]:
        lds_arrive(C_POLL)
        a("s_branch L_go\nL_nopoll:")
        lds_wait(C_POLL, 1, slp=0)
        a("L_go:")
    stamp(4)
    for i, v in enumerate((10, 12, 13, 14)): a(f"global_load_dwordx4 {vr(PL+4*i,4)}, v{v}, {pWs} sc1")
    hY, hU, hG, hO, hP = 20, 21, 22, 23, 24
    a(f"""s_lshl_b32 s8, {sW}, 8
v_lshlrev_b32 v2, 2, v1
v_add_u32 v2, s8, v2
v_add_u32 v{hY}, {Y0}, v2
v_add_u32 v{hG}, {G0}, v2
v_and_b32 v2, 3, v1
v_mul_u32_u24 v3, {USTR_PH}, v2
v_lshlrev_b32 v{hP}, 8, v2
v_add_u32 v{hP}, {PR0}, v{hP}
v_lshrrev_b32 v2, 2, v1
v_lshlrev_b32 v2, 1, v2
v_sub_u32 v3, v3, v2
s_lshl_b32 s9, {sW}, 5
s_sub_u32 s9, {U0 + 1022}, s9
v_add_u32 v{hU}, s9, v3
s_lshl_b32 s9, {sW}, 6
v_add_u32 v2, s9, v1
v_mul_u32_u24 v{hO}, 896, v2
s_lshl_b32 s9, {sP}, 2
v_add_u32 v{hO}, s9, v{hO}
v_mov_b32 v30, 0
v_mov_b32 v31, 0""")
    for i, v in enumerate((11, 15)): a(f"global_load_dwordx4 {vr(GL+4*i,4)}, v{v}, {pWs} sc1")
    for i in range(4): a(f"ds_write_b128 v16, {vr(PL+4*i,4)} offset:{256*(3-i)}")
    stamp(5)
    lds_arrive(C_U)
    a(f"s_mov_b32 {sSpin}, 0\nL_gchk:\ns_waitcnt vmcnt(0)")
    a(f"v_cmp_ne_u32 vcc, {sNon}, v{GL+1}\nv_cmp_ne_u32 s[8:9], {sNon}, v{GL+3}\nv_cmp_ne_u32 s[12:13], {sNon}, v{GL+5}\nv_cmp_ne_u32 s[14:15], {sNon}, v{GL+7}")
    a("s_or_b64 s[8:9], s[8:9], vcc\ns_or_b64 s[12:13], s[12:13], s[14:15]\ns_or_b64 s[8:9], s[8:9], s[12:13]\ns_cbranch_scc0 L_gok")
    a("s_sleep 2")
    for i, v in enumerate((11, 15)): a(f"global_load_dwordx4 {vr(GL+4*i,4)}, v{v}, {pWs} sc1")
    a(f"s_add_u32 {sSpin}, {sSpin}, 1\ns_bitcmp0_b32 {sSpin}, 16\ns_cbranch_scc1 L_gchk\ns_waitcnt vmcnt(0)\nL_gok:")
    for i in range(2):
        g = GL + 4*i
        a(f"v_and_b32 v{g+3}, {sHI}, v{g+2}\nv_lshlrev_b32 v{g+2}, 16, v{g+2}\nv_and_b32 v{g+1}, {sHI}, v{g}\nv_lshlrev_b32 v{g}, 16, v{g}")
        a(f"ds_write_b128 v17, {vr(g,4)} offset:{4096*i}")
    lds_arrive(C_G)
    lds_wait(C_G, 4)
    a(f"s_setprio {o['hprio']}")
    a(f"s_add_u32 s9, {sW}, 1\ns_mov_b32 s10, 0")
    a(f"L_help:\ns_mov_b32 {sSpin}, 0\nL_hwait:\nds_read_b32 v3, v{hP}\ns_waitcnt lgkmcnt(0)\nv_cmp_gt_u32 vcc, s9, v3\ns_cbranch_vccz L_hgo")
    if o["lsl"]: a(f"s_sleep {o['lsl']}")
    a(f"s_add_u32 {sSpin}, {sSpin}, 1\ns_bitcmp0_b32 {sSpin}, 19\ns_cbranch_scc1 L_hwait\nL_hgo:")
    if o["stamps"] == 4: a("s_memrealtime s[90:91]\ns_waitcnt lgkmcnt(0)\ns_mov_b32 m0, s10\ns_nop 1\nv_writelane_b32 v41, s90, m0")
    a(f"""ds_read_b32 v28, v{hY} offset:16384
ds_read_b32 v29, v{hY} offset:24576
ds_read_u16_d16_hi v30, v{hU}
ds_read_u16_d16_hi v31, v{hU} offset:{USTR}
ds_read_b32 v26, v{hY}
ds_read_b32 v27, v{hY} offset:8192
ds_read_b32 v25, v{hG}
v_add_u32 v{hY}, 1024, v{hY}
v_add_u32 v{hG}, 1024, v{hG}
v_subrev_u32 v{hU}, 128, v{hU}
s_add_u32 s9, s9, 4
s_add_u32 s10, s10, 1
s_waitcnt lgkmcnt(0)
v_mul_f32 v28, v28, v30
v_mul_f32 v29, v29, v31
v_sub_f32 v26, v26, v28
v_sub_f32 v27, v27, v29
v_fmac_f32 v28, v25, v26
v_fmac_f32 v29, v25, v27
v_cvt_pk_bf16_f32 v32, v28, v29
global_store_dword v{hO}, v32, {pOut}
v_add_u32 v{hO}, {256*896}, v{hO}""")
    if o["stamps"] == 4: a("s_memrealtime s[90:91]\ns_waitcnt lgkmcnt(0)\ns_add_u32 m0, s10, 7\ns_nop 1\nv_writelane_b32 v41, s90, m0")
    a("s_cmp_lt_u32 s10, 8\ns_cbranch_scc1 L_help")
    stamp(6)
    if o["stamps"]:
        a("s_waitcnt vmcnt(0)"); stamp(7)
    a("L_tend:")
    dump_stamps("T")
    a("s_endpgm\nL_g7:")
    gate_loads()
    a("s_waitcnt vmcnt(0)")
    nonce("b")
    gate()
    a("s_branch L_tend")
    a("L_end:\ns_endpgm\nL_codeend:")
    body = a.finish()
    hdr = open("cdna_kernels/" + NAME + ".s.ref").read().split("; Override launch")[0]
    txt = hdr + f"""; One launch: 7 groups of 32 workgroups exchange transposed tiles through d_ws, each workgroup then
; owns two channels (S4 kernel table, two Toeplitz convolutions on MFMA, gated mix).
; @launch grid=(256,1,1) block=(512,1,1) lds={LDS_BYTES}
.amdgcn_target "amdgcn-amd-amdhsa--gfx950"
.text
.globl {NAME}_kernel
.p2align 8
.type {NAME}_kernel,@function
{NAME}_kernel:
{body}.section .rodata,"a"
.p2align 6
.amdhsa_kernel {NAME}_kernel
  .amdhsa_next_free_vgpr 256
  .amdhsa_next_free_sgpr 102
  .amdhsa_accum_offset 256
  .amdhsa_group_segment_fixed_size 0
  .amdhsa_kernarg_size 152
  .amdhsa_user_sgpr_count 2
  .amdhsa_user_sgpr_kernarg_segment_ptr 1
  .amdhsa_system_sgpr_workgroup_id_x 1
.end_amdhsa_kernel
"""
    return txt, a.nops

if __name__ == "__main__":
    out = sys.argv[1]
    kw = {k: int(v) for k, v in (x.split("=") for x in sys.argv[2:])}
    txt, nops = gen(**kw)
    open(out, "w").write(txt)
    print("wrote", out, "lines", txt.count("\n"), "nops", nops, "lds", LDS_BYTES)
```

```python
import sys, struct, math
from asmlib import Asm

NAME = "gated_mix__ssm_conv_s4__ssm_conv_h3__prompt"
DEFAULT = dict(xcdmap=1, stamps=0, sleep=1, tprio=1, hprio=0, mprio=0, touch=1, nacc=8, lsl=1, fastflag=1, probe=0, pwg=0, sigpos=20, allpoll=0, bper=3)

KSTR = 4160; K0 = 0
USTR_PH = 1088; USTR = 4 * USTR_PH; U0 = 4 * KSTR
G0 = U0 + 4 * USTR
FL0 = G0 + 8192
C_SIG, C_POLL, C_U, C_P, C_K, C_G = (FL0 + 4 * i for i in range(6))
PR0 = FL0 + 256
SC0 = PR0 + 1024; SROW = 272; SSTR = 53 * SROW
Y0 = SC0
LDS_BYTES = SC0 + 8 * SSTR
WS_G = 224 * 16384
WS_FL = WS_G + 8192
WS_STAMP = 64 << 20

def f2u(x): return struct.unpack("<I", struct.pack("<f", x))[0]
def f32(x): return struct.unpack("<f", struct.pack("<f", x))[0]
def hx(x): return "0x%08x" % (x & 0xffffffff)
def vr(a, n=1): return f"v{a}" if n == 1 else f"v[{a}:{a+n-1}]"

sG, sJ, sW, sP = "s4", "s5", "s6", "s7"
pU, pAre, pAim, pBre, pBim, pCre, pCim, pLdt = (f"s[{16+2*i}:{17+2*i}]" for i in range(8))
pDs, pQ, pK, pV, pSh, pSk, pSd, pGw = (f"s[{32+2*i}:{33+2*i}]" for i in range(8))
pOut, pDbg, pWs = "s[48:49]", "s[50:51]", "s[52:53]"
srdK = "s[56:59]"
sKq, sCh, sHf, sSig = "s54", "s55", "s60", "s61"
sHI, sSel0, sSel1, sSpin = "s62", "s63", "s64", "s65"
sDt, sDs, sSd, sI2P, sNon, sRole = "s66", "s67", "s68", "s69", "s70", "s71"

def gen(**kw):
    o = dict(DEFAULT); o.update(kw)
    a = Asm()
    def stamp(i):
        if o["stamps"] == 3: a(f"s_memtime s[{72+2*i}:{73+2*i}]")
        elif o["stamps"]: a(f"s_memrealtime s[{72+2*i}:{73+2*i}]")
    def dump_stamps(role):
        if not o["stamps"]: return
        n = 8
        a("s_waitcnt lgkmcnt(0)")
        if o["stamps"] == 5:
            i = o["probe"]
            if (role == "T") == (i < 100):
                i %= 100
                a(f"s_cmp_lg_u32 s2, {o['pwg']}\ns_cbranch_scc1 L_end\ns_sub_u32 s8, s{72+2*i}, s72\ns_mul_i32 s8, s8, 20\ns_min_u32 s8, s8, 100000\ns_memrealtime s[10:11]\ns_waitcnt lgkmcnt(0)\ns_add_u32 s8, s8, s10")
                a(f"L_pr{role}:\ns_sleep 4\ns_memrealtime s[10:11]\ns_waitcnt lgkmcnt(0)\ns_sub_u32 s9, s8, s10\ns_cmp_gt_i32 s9, 0\ns_cbranch_scc1 L_pr{role}")
            return
        a(f"s_lshl_b32 s8, s2, 3\ns_add_u32 s8, s8, {sW}\ns_lshl_b32 s8, s8, 6\ns_add_u32 s8, s8, {WS_STAMP}")
        if o["stamps"] == 4 and role == "T":
            a(f"s_mov_b64 exec, 0xffff\nv_lshl_add_u32 v2, v1, 2, s8\nglobal_store_dword v2, v41, {pWs}\ns_waitcnt vmcnt(0)")
            return
        a("s_mov_b64 exec, 1\nv_mov_b32 v2, s8")
        for i in range(n):
            a(f"v_mov_b32 v3, s{72+2*i}\nglobal_store_dword v2, v3, {pWs} offset:{4*i}")
        a("s_waitcnt vmcnt(0)")
    def lds_arrive(addr, vt=2, v1=3):
        a(f"s_mov_b64 exec, 1\nv_mov_b32 v{vt}, {addr}\nv_mov_b32 v{v1}, 1\nds_add_u32 v{vt}, v{v1}\ns_mov_b64 exec, -1")
    lab = [0]
    def lds_wait(addr, target, vt=2, vv=3, slp=None):
        slp = o["lsl"] if slp is None else slp
        lab[0] += 1; L = f"L_w{lab[0]}"
        a(f"v_mov_b32 v{vt}, {addr}\ns_mov_b32 {sSpin}, 0")
        a(f"{L}:\nds_read_b32 v{vv}, v{vt}\ns_waitcnt lgkmcnt(0)\nv_cmp_le_u32 vcc, {target}, v{vv}\ns_cbranch_vccnz {L}_ok")
        if slp: a(f"s_sleep {slp}")
        a(f"s_add_u32 {sSpin}, {sSpin}, 1\ns_bitcmp0_b32 {sSpin}, 19\ns_cbranch_scc1 {L}\n{L}_ok:")

    RAW, EX, vPa, vSw, vRa, vRb, vFold, vFoldB, vKw, vPar, vSkA, vDummy = 200, 206, 214, 218, 219, 220, 221, 222, 223, 224, 225, 57
    def param_loads():
        a(f"""s_lshl_b32 s11, {sP}, 1
s_add_u32 s11, s11, {sCh}
s_lshl_b32 s14, s11, 9
s_lshl_b32 s15, {sHf}, 8
s_add_u32 s14, s14, s15
v_lshl_add_u32 v{vPar}, v1, 2, s14
s_lshl_b32 s14, {sP}, 2""")
        for i, p in enumerate((pAre, pAim, pBre, pBim, pCre, pCim)): a(f"global_load_dword v{RAW+i}, v{vPar}, {p}")
        a(f"s_load_dword {sDt}, {pLdt}, s14")

    a("s_cmp_ge_u32 s2, 256\ns_cbranch_scc1 L_end")
    stamp(0)
    a("s_load_dwordx16 s[16:31], s[0:1], 0\ns_load_dwordx16 s[32:47], s[0:1], 64")
    a("s_load_dwordx4 s[48:51], s[0:1], 128\ns_load_dwordx2 s[52:53], s[0:1], 144")
    a("v_lshrrev_b32 v2, 6, v0\nv_and_b32 v1, 63, v0")
    if o["xcdmap"]: a(f"s_and_b32 {sG}, s2, 7\ns_lshr_b32 {sJ}, s2, 3")
    else: a(f"s_lshr_b32 {sG}, s2, 5\ns_and_b32 {sJ}, s2, 31")
    a(f"v_readfirstlane_b32 {sW}, v2")
    a(f"s_lshl_b32 {sP}, {sG}, 5\ns_add_u32 {sP}, {sP}, {sJ}")
    a(f"s_and_b32 {sKq}, {sW}, 3\ns_lshr_b32 {sCh}, {sKq}, 1\ns_and_b32 {sHf}, {sW}, 1")
    a(f"s_cmp_ge_u32 {sW}, 4\ns_cbranch_scc1 L_kpre")

    vB, vB2, vKA, vSt, vGa, vZ = 10, 11, 12, 9, 5, 4
    U_, V_, K_, SH, GU, GW, NON = 16, 24, 32, 44, 48, 56, 63
    a(f"""s_lshr_b32 s8, {sW}, 1
s_lshl_b32 s8, s8, 5
s_lshl_b32 s9, {sJ}, 6
s_add_u32 s8, s8, s9
s_mul_i32 s8, s8, 896
s_lshl_b32 s10, {sHf}, 6
s_lshl_b32 s11, {sG}, 7
s_add_u32 s10, s10, s11
s_add_u32 s8, s8, s10
v_lshrrev_b32 v2, 4, v1
v_and_b32 v3, 15, v1
v_mul_u32_u24 v4, {8*896}, v2
v_lshl_add_u32 v4, v3, 2, v4
v_add_u32 v{vB}, s8, v4
v_add_u32 v{vB2}, {4*896}, v{vB}
v_subrev_u32 v{vKA}, {3*896}, v{vB}
s_lshl_b32 s10, s10, 2
v_lshl_add_u32 v8, v3, 4, s10
s_cmp_eq_u32 {sG}, 7
s_waitcnt lgkmcnt(0)
s_cbranch_scc1 L_tskip
s_mov_b32 s56, s36
s_mov_b32 s57, s37
s_mov_b32 s58, 1835008
s_mov_b32 s59, 0x20000""")
    rows = [((vB, 896*i) if i < 4 else (vB2, 896*(i-4))) for i in range(8)]
    for i in range(3): a(f"buffer_load_dword v{K_+i}, v{vKA}, {srdK}, 0 offen offset:{896*i}")
    for i, (b, off) in enumerate(rows): a(f"buffer_load_dword v{K_+3+i}, v{b}, {srdK}, 0 offen offset:{off}")
    a(f"global_load_dwordx4 v[{SH}:{SH+3}], v8, {pSh}")
    for i, (b, off) in enumerate(rows): a(f"global_load_dword v{V_+i}, v{b}, {pV} offset:{off}")
    for i, (b, off) in enumerate(rows): a(f"global_load_dword v{U_+i}, v{b}, {pU} offset:{off}")
    param_loads()
    a("L_tskip:")
    a(f"""s_mov_b32 {sSel0}, 0x05040100
s_mov_b32 {sSel1}, 0x07060302
s_lshl_b32 s12, s2, 3
s_lshl_b32 s13, {sW}, 1
s_add_u32 s12, s12, s13
v_lshrrev_b32 v7, 5, v1
v_add_u32 v7, s12, v7
v_and_b32 v6, 31, v1
v_mul_u32_u24 v6, 28, v6
v_mul_u32_u24 v7, 896, v7
v_add_u32 v7, v7, v6
s_lshl_b32 s8, {sG}, 5
s_lshl_b32 s9, {sHf}, 4
s_add_u32 s8, s8, s9
s_lshl_b32 s8, s8, 14
s_lshl_b32 s9, {sJ}, 9
s_add_u32 s8, s8, s9
s_lshl_b32 s9, {sCh}, 6
s_add_u32 s8, s8, s9
v_lshlrev_b32 v{vSt}, 14, v3
v_lshl_add_u32 v{vSt}, v2, 4, v{vSt}
v_add_u32 v{vSt}, s8, v{vSt}
s_lshl_b32 s8, s2, 2
s_add_u32 s8, s8, {sW}
s_lshl_b32 s8, s8, 3
s_add_u32 s8, s8, {WS_G}
v_mov_b32 v{vGa}, s8
v_mov_b32 v{vZ}, 0
s_mov_b32 {sRole}, 1
s_mov_b32 {sSig}, 2""")
    if o["tprio"]: a(f"s_setprio {o['tprio']}")
    a("s_branch L_setup")

    a(f"""L_kpre:
s_getpc_b64 s[12:13]
L_pc:
s_sub_u32 s12, s12, L_pc-{NAME}_kernel
s_subb_u32 s13, s13, 0
v_and_b32 v2, 127, v0
v_lshlrev_b32 v2, 7, v2
v_min_u32 v2, L_codeend-{NAME}_kernel-4, v2
global_load_dword v{vDummy}, v2, s[12:13]
s_mov_b32 {sRole}, 0
s_mov_b32 {sSig}, 0
s_cmp_eq_u32 {sG}, 7
s_waitcnt lgkmcnt(0)
s_cbranch_scc1 L_kinit""")
    param_loads()
    a(f"s_load_dword {sDs}, {pDs}, s14\ns_load_dword {sSd}, {pSd}, s14")
    a(f"""s_cmp_lg_u32 s2, 0
s_cbranch_scc1 L_nonon
s_cmp_lg_u32 {sKq}, 0
s_cbranch_scc1 L_nonon
s_memrealtime s[12:13]
s_mov_b64 exec, 1
v_mov_b32 v7, 0
v_mov_b32 v5, 0
s_waitcnt lgkmcnt(0)
s_or_b32 s12, s12, 1
v_mov_b32 v6, s12
global_atomic_cmpswap v5, v[6:7], {pDbg} sc1
s_mov_b64 exec, -1
L_nonon:""")
    if o["fastflag"]:
        a(f"s_cmp_lg_u32 {sKq}, 3\ns_cbranch_scc1 L_kinit\ns_lshl_b32 s14, {sG}, 13\ns_add_u32 s14, s14, {WS_FL}\nv_and_b32 v2, 31, v1\nv_lshl_add_u32 v2, v2, 7, s14\nglobal_load_dword v{vDummy}, v2, {pWs} sc1")
    a(f"""L_kinit:
v_mov_b32 v8, 0
v_mov_b32 v9, 0
v_mov_b32 v10, 0
v_mov_b32 v11, 0
v_lshlrev_b32 v5, 4, v1
ds_write_b128 v5, v[8:11] offset:{FL0}
ds_write_b128 v5, v[8:11] offset:{FL0 + 256}
v_lshrrev_b32 v5, 2, v1
v_mul_u32_u24 v5, {USTR_PH}, v5
v_and_b32 v6, 3, v1
v_lshl_add_u32 v5, v6, 4, v5
ds_write_b128 v5, v[8:11] offset:{U0 + 1024}
v_bfe_u32 v5, v1, 1, 2
v_mul_u32_u24 v5, {KSTR}, v5
v_and_b32 v6, 1, v1
v_lshl_add_u32 v5, v6, 4, v5
ds_write_b128 v5, v[8:11] offset:{K0}""")

    a(f"""L_setup:
s_mov_b32 {sHI}, 0xffff0000
s_waitcnt lgkmcnt(0)
s_barrier
s_cmp_lg_u32 {sG}, 7
s_cbranch_scc1 L_main
s_cmp_eq_u32 {sRole}, 0
s_cbranch_scc1 L_end
s_branch L_g7
L_main:
s_add_u32 {sSig}, {sSig}, {sHf}
s_mul_i32 s11, {sCh}, {4*SSTR}
s_add_u32 s11, s11, {SC0}""")
    a(f"""s_mul_i32 s14, {sSig}, {SSTR}
s_add_u32 s11, s11, s14
v_and_b32 v13, 31, v1
v_lshrrev_b32 v14, 5, v1
v_lshlrev_b32 v15, 5, v13
v_lshl_add_u32 v15, v14, 4, v15
v_add_u32 v{vPa}, s11, v15
v_cmp_eq_u32 vcc, 0, v14
v_lshlrev_b32 v15, 4, v13
v_add_u32 v15, {4*256}, v15
v_lshlrev_b32 v2, 3, v13
v_add_u32 v2, {4*384}, v2
v_cndmask_b32 v3, v2, v15, vcc
v_add_u32 v{vPa+1}, s11, v3
v_add_u32 v15, 8, v15
v_add_u32 v2, 256, v2
v_cndmask_b32 v3, v2, v15, vcc
v_add_u32 v{vPa+2}, s11, v3
v_lshlrev_b32 v15, 2, v13
v_lshl_add_u32 v15, v14, 9, v15
v_add_u32 v15, {4*512}, v15
v_add_u32 v{vPa+3}, s11, v15
v_lshl_add_u32 v{vSw}, v1, 2, s11
v_mul_u32_u24 v15, {SROW}, v13
v_lshl_add_u32 v15, v14, 4, v15
v_add_u32 v{vRa}, s11, v15
v_add_u32 v{vRb}, {21*SROW}, v{vRa}
s_lshl_b32 s14, {sCh}, 4
s_sub_u32 s14, 16, s14
s_lshl_b32 {sDt}, {sDt}, s14
s_and_b32 {sDt}, {sDt}, {sHI}""")
    L2E = math.log2(math.e); L2Eh = f32(L2E); L2El = L2E - L2Eh
    I2P = 1.0 / (2.0 * math.pi); I2Ph = f32(I2P); I2Pl = I2P - I2Ph
    a(f"""v_mov_b32 v13, {sDt}
v_mul_f32 v14, {hx(f2u(L2Eh))}, v13
v_mov_b32 v2, {hx(f2u(L2Eh))}
v_fma_f32 v15, v13, v2, -v14
v_fmac_f32 v15, {hx(f2u(L2El))}, v13
v_exp_f32 v14, v14
v_mul_f32 v15, {hx(f2u(math.log(2.0)))}, v15
v_fma_f32 v14, v14, v15, v14
v_cvt_pk_bf16_f32 v14, 0, v14
v_readfirstlane_b32 {sDt}, v14
s_mov_b32 {sI2P}, {hx(f2u(I2Ph))}""")
    D = 176
    a(f"s_cmp_eq_u32 {sRole}, 0\ns_cbranch_scc1 L_kround")

    KU, WT, AC, VT, PC = 64, 86, 96, 112, 120
    a("s_waitcnt vmcnt(30)")
    for i in range(3): a(f"v_lshlrev_b32 v{KU+2*i}, 16, v{K_+i}\nv_and_b32 v{KU+2*i+1}, {sHI}, v{K_+i}")
    a("s_waitcnt vmcnt(22)")
    for i in range(3, 11): a(f"v_lshlrev_b32 v{KU+2*i}, 16, v{K_+i}\nv_and_b32 v{KU+2*i+1}, {sHI}, v{K_+i}")
    for ch in range(2):
        for t in range(4):
            src = SH + 2*ch + t//2
            a(f"v_lshlrev_b32 v{WT+2*t+ch}, 16, v{src}" if t % 2 == 0 else f"v_and_b32 v{WT+2*t+ch}, {sHI}, v{src}")
    stamp(1)
    for t in range(4):
        for r in range(8):
            k = KU + 2*(r + 3 - t)
            if t == 0: a(f"v_pk_mul_f32 {vr(AC+2*r,2)}, {vr(k,2)}, {vr(WT,2)}")
            else: a(f"v_pk_fma_f32 {vr(AC+2*r,2)}, {vr(k,2)}, {vr(WT+2*t,2)}, {vr(AC+2*r,2)}")
    a("s_waitcnt vmcnt(14)")
    for r in range(8):
        t = VT + 2*(r % 4)
        a(f"v_lshlrev_b32 v{t}, 16, v{V_+r}\nv_and_b32 v{t+1}, {sHI}, v{V_+r}")
        a(f"v_pk_mul_f32 {vr(AC+2*r,2)}, {vr(AC+2*r,2)}, {vr(t,2)}")
    def gate_loads():
        a(f"global_load_dwordx4 v[{GU}:{GU+3}], v7, {pU}\nglobal_load_dwordx3 v[{GU+4}:{GU+6}], v7, {pU} offset:16")
        a(f"global_load_dwordx4 v[{GW}:{GW+3}], v6, {pGw}\nglobal_load_dwordx3 v[{GW+4}:{GW+6}], v6, {pGw} offset:16")
        a(f"global_load_dword v{NON}, v{vZ}, {pDbg} sc1")
    def transpose2(b0, b1):
        for st, pr in (("32", ((0, 2), (1, 3))), ("16", ((0, 1), (2, 3)))):
            for base in (b0, b1):
                for x, y in pr: a(f"v_permlane{st}_swap_b32 v{base+3-x}, v{base+3-y}")
    for ch in range(2):
        for rho in range(4):
            a(f"v_cvt_pk_bf16_f32 v{PC+8+4*ch+3-rho}, v{AC+2*(rho+4)+ch}, v{AC+2*rho+ch}")
    transpose2(PC + 8, PC + 12)
    for ch in range(2): a(f"global_store_dwordx4 v{vSt}, {vr(PC+8+4*ch,4)}, {pWs} offset:{(2+ch)*128} sc1")
    a("s_waitcnt vmcnt(8)")
    for ch in range(2):
        for rho in range(4):
            a(f"v_perm_b32 v{PC+4*ch+3-rho}, v{U_+rho}, v{U_+rho+4}, {sSel0 if ch == 0 else sSel1}")
    transpose2(PC, PC + 4)
    for ch in range(2): a(f"global_store_dwordx4 v{vSt}, {vr(PC+4*ch,4)}, {pWs} offset:{ch*128} sc1")
    gate_loads()
    stamp(2)
    a("s_waitcnt vmcnt(9)")
    for i in range(6): a(f"v_and_b32 v{8+i}, {sHI}, v{RAW+i}")
    a("s_branch L_round")
    SK = 24
    a(f"""L_kround:
s_lshl_b32 s14, {sP}, 1
s_add_u32 s14, s14, {sCh}
s_lshl_b32 s14, s14, 12
s_lshl_b32 s15, {sHf}, 11
s_add_u32 s14, s14, s15
v_lshl_add_u32 v{vSkA}, v1, 4, s14
s_waitcnt vmcnt(0)""")
    stamp(1)
    for i in range(6): a(f"v_lshlrev_b32 v{8+i}, 16, v{RAW+i}")
    a(f"global_load_dwordx4 {vr(SK,4)}, v{vSkA}, {pSk}\nglobal_load_dwordx4 {vr(SK+4,4)}, v{vSkA}, {pSk} offset:1024")

    a("L_round:")
    A2, TH, TL, M, PH = 140, 141, 142, 144, 145
    Z1, Z2, Z4, Z8, Z256, W, X, Yc, Fc = 146, 148, 150, 152, 154, 156, 158, 160, 162
    PK = 166; OA = 64; OB = 80
    a(f"""v_mul_f32 v8, {sDt}, v8
v_mul_f32 v9, {sDt}, v9
v_mul_f32 v{A2}, {hx(f2u(L2Eh))}, v8
v_mul_f32 v{TH}, {sI2P}, v9
v_fma_f32 v{TL}, v9, {sI2P}, -v{TH}
v_fmac_f32 v{TL}, {hx(f2u(I2Pl))}, v9""")
    def cm(d, x, z):
        t = d if d != x else 14
        return (f"v_pk_mul_f32 {vr(t,2)}, {vr(x,2)}, {vr(z,2)} op_sel_hi:[0,1]",
                f"v_pk_fma_f32 {vr(d,2)}, {vr(x,2)}, {vr(z,2)}, {vr(t,2)} op_sel:[1,1,0] op_sel_hi:[1,0,1] neg_lo:[1,0,0]")
    def cmul(d, x, z):
        for t in cm(d, x, z): a(t)
    anchors = ((1, Z1, 136), (8, Z8, 138), (256, Z256, 144))
    for e, Z, Mx in anchors:
        if e == 1: a(f"v_exp_f32 v{Mx}, v{A2}\nv_fract_f32 v{Mx+1}, v{TH}")
        else:
            c = hx(f2u(float(e)))
            a(f"v_mul_f32 v{Mx}, {c}, v{A2}\nv_mul_f32 v{Mx+1}, {c}, v{TH}\nv_exp_f32 v{Mx}, v{Mx}\nv_fract_f32 v{Mx+1}, v{Mx+1}")
    for e, Z, Mx in anchors:
        if e == 1: a(f"v_add_f32 v{Mx+1}, v{Mx+1}, v{TL}")
        else: a(f"v_fmac_f32 v{Mx+1}, {hx(f2u(float(e)))}, v{TL}")
    for e, Z, Mx in anchors: a(f"v_cos_f32 v{Z}, v{Mx+1}\nv_sin_f32 v{Z+1}, v{Mx+1}")
    cmul(W, 12, 10)
    for e, Z, Mx in anchors: a(f"v_pk_mul_f32 {vr(Z,2)}, {vr(Z,2)}, {vr(Mx,2)} op_sel_hi:[1,0]")
    a(f"v_mul_f32 v{W}, {sDt}, v{W}\nv_mul_f32 v{W+1}, {sDt}, v{W+1}")
    cmul(Z2, Z1, Z1)
    a(f"v_mov_b32 v{PK+7}, 0x3f80\nds_write_b32 v{vSw}, v{PK+7} offset:{21*SROW}")
    cmul(Z4, Z2, Z2)
    pk = [0]
    def cvt(row, src, neg):
        r = PK + (pk[0] % 8); pk[0] += 1
        return f"v_cvt_pk_bf16_f32 v{r}, v{src}, {'-' if neg else ''}v{src+1}", f"ds_write_b32 v{vSw}, v{r} offset:{row*SROW}"
    steps = [(None, W, None, 0)]; prev = W
    for r in range(1, 8):
        d = X if prev != X else Yc
        steps.append((d, prev, Z1, r)); prev = d
    steps.append((W, W, Z256, 8)); prev = W
    for r in range(9, 12):
        d = X if prev != X else Yc
        steps.append((d, prev, Z2, r)); prev = d
    steps += [(W, W, Z256, 12), (X, W, Z4, 13), (W, W, Z256, 14), (X, W, Z4, 15)]
    steps += [(W, W, Z256, 16 + i) for i in range(5)]
    fsteps = [(None, Z8, None, 22)]; prev = Z8
    for jx in range(2, 32):
        d = Fc if prev != Fc else Fc + 2
        fsteps.append((d, prev, Z8, 21 + jx)); prev = d
    late = []
    for n in range(max(len(steps), len(fsteps))):
        m0, m1, cv, wr = [], [], [], []
        for lst, neg in ((fsteps, False), (steps, True)):
            if n < len(lst):
                d, x, z, row = lst[n]
                if d is not None:
                    p, q = cm(d, x, z); m0.append(p); m1.append(q); x = d
                c_, w_ = cvt(row, x, neg); cv.append(c_); wr.append(w_)
        for t in m0 + late[:1] + m1 + late[1:] + cv: a(t)
        late = wr
        if n == o["sigpos"]: a(f"s_cmp_eq_u32 {sRole}, 1\ns_cbranch_scc1 L_sig\nL_sigret:")
    for t in late: a(t)
    def kmf(q): a(f"v_mfma_f32_32x32x16_bf16 {vr(D,16)}, {vr(OA+4*(q%4),4)}, {vr(OB+4*(q%4),4)}, {vr(D,16) if q else 0}")
    for s in range(8):
        a(f"ds_read_b128 {vr(OA+4*(s%4),4)}, v{vRa} offset:{32*s}\nds_read_b128 {vr(OB+4*(s%4),4)}, v{vRb} offset:{32*s}")
        if s >= 3: kmf(s - 3)
    for q in (5, 6, 7): kmf(q)
    a(f"s_cmp_eq_u32 {sRole}, 1\ns_cbranch_scc1 L_tpost")

    def table_write():
        a(f"ds_write_b128 v{vPa}, {vr(D,4)}\nds_write_b64 v{vPa+1}, {vr(D+4,2)}\nds_write_b64 v{vPa+2}, {vr(D+6,2)}")
        for r in range(4): a(f"ds_write_b32 v{vPa+3}, v{D+8+r} offset:{128*r}")
        lds_arrive(C_P)
    def gather(dst, n, vaddr, off):
        for q in range(4):
            r = dst + 4*q
            if n == 4: a(f"ds_read_b128 {vr(r,4)}, v{vaddr} offset:{off + q*SSTR}")
            else: a(f"ds_read_b64 {vr(r,2)}, v{vaddr} offset:{off + q*SSTR}\nds_read_b32 v{r+2}, v{vaddr} offset:{off + q*SSTR + 8}")
    def total(dst, n):
        for i in range(n): a(f"v_add_f32 v{dst+i}, v{dst+i}, v{dst+4+i}\nv_add_f32 v{dst+8+i}, v{dst+8+i}, v{dst+12+i}")
        for i in range(n): a(f"v_add_f32 v{dst+i}, v{dst+i}, v{dst+8+i}")
    def pack(dst, src, pat):
        for i, (x, y) in enumerate(pat): a(f"v_cvt_pk_bf16_f32 v{dst+i}, v{src+x}, v{src+y}")
    def expand():
        a(f"""s_mul_i32 s14, {sCh}, {4*SSTR}
s_add_u32 s14, s14, {SC0}
v_lshl_add_u32 v18, v1, 3, s14
v_lshl_add_u32 v19, v1, 4, s14
s_mul_i32 s14, {sCh}, {KSTR}
s_add_u32 s14, s14, {K0 + 32}
v_lshl_add_u32 v20, v1, 3, s14
v_lshl_add_u32 v21, v1, 4, s14
v_lshl_add_u32 v22, v1, 5, s14""")
        lds_wait(C_P, 8, slp=0)
        a(f"s_cmp_eq_u32 {sHf}, 0\ns_cbranch_scc1 L_exp0")
        gather(64, 3, 18, 4*256); gather(80, 3, 18, 4*384)
        total(64, 3); pack(96, 64, ((0, 0), (1, 2)))
        a(f"ds_write_b64 v20, v[96:97] offset:{2*256}")
        total(80, 3); pack(100, 80, ((0, 0), (0, 1), (1, 1), (2, 2)))
        a(f"ds_write_b128 v21, v[100:103] offset:{2*512}")
        a("s_branch L_expd\nL_exp0:")
        gather(64, 3, 18, 4*512); gather(80, 4, 19, 0)
        total(64, 3); pack(96, 64, ((0, 0), (0, 0), (0, 1), (1, 1), (1, 1), (1, 1), (2, 2), (2, 2)))
        a(f"ds_write_b128 v22, v[96:99] offset:{2*1024}\nds_write_b128 v22, v[100:103] offset:{2*1024+16}")
        total(80, 4); pack(104, 80, ((0, 1), (2, 3)))
        a(f"ds_write_b64 v20, v[104:105]")
        a("L_expd:")
        lds_arrive(C_K)

    stamp(2)
    vKa, vUa, vYa, vPr = 16, 17, 4, 5
    a(f"""s_lshl_b32 s14, {sCh}, 4
s_sub_u32 s14, 16, s14
s_lshl_b32 {sDs}, {sDs}, s14
s_and_b32 {sDs}, {sDs}, {sHI}
s_lshl_b32 {sSd}, {sSd}, s14
s_and_b32 {sSd}, {sSd}, {sHI}
s_cmp_eq_u32 {sHf}, 0
s_cselect_b32 {sDs}, {sDs}, 0
s_cselect_b32 {sSd}, {sSd}, 0
v_cmp_eq_u32 vcc, 0, v1
v_mov_b32 v7, {sDs}
v_mov_b32 v8, {sSd}
v_cndmask_b32 v{vFold}, 0, v7, vcc
v_cndmask_b32 v{vFoldB}, 0, v8, vcc
v_add_f32 v{D}, v{D}, v{vFold}""")
    table_write()
    a(f"""v_and_b32 v6, 3, v1
v_bfe_u32 v7, v1, 2, 2
v_lshrrev_b32 v8, 4, v1
v_add_u32 v9, v6, v7
v_lshlrev_b32 v9, 3, v9
v_lshl_add_u32 v9, v8, 6, v9
s_mul_i32 s14, {sKq}, {KSTR}
s_add_u32 s14, s14, {K0 + 8}
v_add_u32 v{vKa}, s14, v9
v_mul_u32_u24 v9, {USTR_PH}, v6
v_lshl_add_u32 v9, v8, 4, v9
v_lshlrev_b32 v7, 3, v7
v_sub_u32 v9, v9, v7
s_mul_i32 s14, {sKq}, {USTR}
s_add_u32 s14, s14, {U0 + 1016 - 32*31}
v_add_u32 v{vUa}, s14, v9
s_lshl_b32 s14, {sKq}, 13
s_add_u32 s14, s14, {Y0}
v_lshl_add_u32 v{vYa}, v1, 2, s14
s_lshl_b32 s14, {sKq}, 8
s_add_u32 s14, s14, {PR0}
v_lshl_add_u32 v{vPr}, v1, 2, s14
s_mul_i32 s14, {sCh}, {KSTR}
s_lshl_b32 s15, {sHf}, 11
s_add_u32 s14, s14, s15
v_lshl_add_u32 v11, v1, 4, s14
s_waitcnt vmcnt(0)
v_lshlrev_b32 v12, 16, v{SK}
v_add_f32 v12, v12, v{vFoldB}
v_cvt_pk_bf16_f32 v12, v12, v12
v_mov_b32 v13, 0xffff
v_bfi_b32 v{SK}, v13, v12, v{SK}
ds_write_b128 v11, {vr(SK,4)} offset:{K0 + 2*KSTR + 32}
ds_write_b128 v11, {vr(SK+4,4)} offset:{K0 + 2*KSTR + 32 + 1024}""")
    if o["touch"]:
        a(f"s_lshl_b32 s14, {sJ}, 6\ns_lshl_b32 s15, {sKq}, 4\ns_add_u32 s14, s14, s15\nv_and_b32 v11, 15, v1\nv_add_u32 v11, s14, v11\nv_mul_u32_u24 v11, 896, v11\ns_lshl_b32 s14, {sG}, 7\nv_add_u32 v11, s14, v11")
        a(f"global_load_dword v{vDummy}, v11, {pOut}")
    expand()
    lds_wait(C_K, 4, slp=0)
    stamp(3)
    KOP, UOP, ACC, TR, ZR = 192, 64, 24, 8, 58
    a(f"v_mov_b32 v2, v{vKa}\nv_mov_b32 v3, v{vUa}")
    vKa, vUa = 2, 3
    for mu in range(16):
        a(f"ds_read_b64_tr_b16 {vr(KOP+4*mu,2)}, v{vKa} offset:{256*mu}\nds_read_b64_tr_b16 {vr(KOP+4*mu+2,2)}, v{vKa} offset:{256*mu+32}")
    for i in range(3): a(f"v_mov_b32 v{ZR+i}, 0")
    lds_wait(C_U, 4, 6, 7, slp=0)
    if o["mprio"]: a(f"s_setprio {o['mprio']}")
    stamp(4)
    def uload(nu):
        off = 32 * (31 - nu)
        return [f"ds_read_b64 {vr(UOP+4*nu,2)}, v{vUa} offset:{off}", f"ds_read_b64 {vr(UOP+4*nu+2,2)}, v{vUa} offset:{off+8}"]
    NACC = o["nacc"]; NT = 4
    dp = "row_mask:0xf bank_mask:0xf"
    pos = [0]
    def em(t):
        a(t); pos[0] += 1
    done_at = {}
    lastflag = [None]
    def epi(c):
        A = ACC + 4 * (c % NACC)
        cur = TR + 4 * (c % NT); prv = TR + 4 * ((c - 1) % NT)
        pT3 = (ACC + 4 * ((c - 1) % NACC) + 3) if c > 0 else ZR
        pT2 = prv if c > 0 else ZR + 1
        pT1 = prv + 1 if c > 0 else ZR + 2
        L = [((c, 0), f"v_add_f32_dpp v{cur}, v{pT3}, v{A+2} wave_ror:1 {dp}", 1, [(("m", c), 9), ((c - NT + 1, 1), 1), ((c - NT + 1, 3), 1), ((c - NT, 6), 1)]),
             ((c, 2), f"v_add_f32_dpp v{cur}, v{A+3}, v{A+2} wave_shr:1 {dp}", 1, [((c, 0), 1)]),
             ((c, 1), f"v_add_f32_dpp v{cur+1}, v{pT2}, v{A+1} wave_ror:1 {dp}", 1, [((c, 2), 1), ((c - 1, 2), 3)]),
             ((c, 4), f"v_add_f32_dpp v{cur+1}, v{cur}, v{A+1} wave_shr:1 {dp}", 1, [((c, 1), 1), ((c, 2), 3)]),
             ((c, 3), f"v_add_f32_dpp v{cur+2}, v{pT1}, v{A} wave_ror:1 {dp}", 1, [((c, 4), 1), ((c - 1, 4), 3)]),
             ((c, 5), f"v_add_f32_dpp v{cur+2}, v{cur+1}, v{A} wave_shr:1 {dp}", 1, [((c, 3), 1), ((c, 4), 3)]),
             ((c, 6), f"ds_write_b32 v{vYa}, v{cur+2} offset:{256*c}", 2, [((c, 5), 2), ((c - 1, 6), 1)])]
        if c % 2 == 1 or c >= 28:
            dep = [((c, 5), 1)] + ([(lastflag[0], 1)] if lastflag[0] else [])
            L += [((c, 7), f"v_mov_b32_e64 v61, {c+1}", 1, dep), ((c, 8), f"ds_write_b32 v{vPr}, v61", 2, [((c, 7), 2), ((c, 6), 1)])]
            lastflag[0] = (c, 8)
        return L
    def ready(item):
        for key, dist in item[3]:
            if key[0] != "m" and key[0] < 0: continue
            if key not in done_at or pos[0] - done_at[key] < dist: return False
        return True
    queue = []
    def fill(slots):
        while slots > 0:
            pick = None
            for n, it in enumerate(queue[:24]):
                if it[2] <= slots and ready(it): pick = n; break
            if pick is None: return
            it = queue.pop(pick); done_at[it[0]] = pos[0]; em(it[1]); slots -= it[2]
    def drain(pred):
        while any(pred(it) for it in queue):
            n0 = len(queue); fill(2)
            if len(queue) == n0: em("s_nop 0")
    for nu in range(3):
        for t in uload(nu): em(t)
    for c in range(32):
        nm = c // 2 + 1
        if c + 3 < 32:
            tl = uload(c + 3)
            queue[0:0] = [(("u", c, 0), tl[0], 1, []), (("u", c, 1), tl[1], 1, [])]
        old = c - NACC
        if old >= 0: drain(lambda it: it[0][0] == old or it[0] == (old + 1, 0))
        if c >= 1: drain(lambda it: it[0][0] == "u" and it[0][1] <= c - 2)
        for n, mu in enumerate(range(nm - 1, -1, -1)):
            A = ACC + 4 * (c % NACC)
            em(f"v_mfma_f32_16x16x32_bf16 {vr(A,4)}, {vr(UOP+4*(c-2*mu),4)}, {vr(KOP+4*mu,4)}, {'0' if n == 0 else vr(A,4)}")
            if n == nm - 1:
                done_at[("m", c)] = pos[0] - 1; queue.extend(epi(c))
            fill(2)
    drain(lambda it: True)
    stamp(5)
    dump_stamps("K")
    a("s_endpgm")

    def nonce(tag):
        a(f"s_mov_b32 {sSpin}, 0\nL_non{tag}:\nv_readfirstlane_b32 {sNon}, v{NON}\ns_cmp_lg_u32 {sNon}, 0\ns_cbranch_scc1 L_non{tag}_ok")
        a(f"s_sleep 4\nglobal_load_dword v{NON}, v{vZ}, {pDbg} sc1\ns_waitcnt vmcnt(0)\ns_add_u32 {sSpin}, {sSpin}, 1\ns_bitcmp0_b32 {sSpin}, 16\ns_cbranch_scc1 L_non{tag}\nL_non{tag}_ok:")
    def gate():
        a("v_mov_b32 v2, 0")
        for i in range(7): a(f"v_dot2_f32_bf16 v2, v{GU+i}, v{GW+i}, v2")
        for sh in (1, 2, 4, 8): a(f"v_add_f32_dpp v2, v2, v2 row_shr:{sh} row_mask:0xf bank_mask:0xf bound_ctrl:0")
        a("v_add_f32_dpp v2, v2, v2 row_bcast:15 row_mask:0xa bank_mask:0xf")
        a(f"v_cvt_pk_bf16_f32 v2, 0, v2\nv_mul_f32 v2, {hx(f2u(-L2E))}, v2\nv_exp_f32 v2, v2\nv_add_f32 v2, 1.0, v2\nv_rcp_f32 v2, v2")
        a(f"v_readlane_b32 s8, v2, 31\nv_mov_b32 v3, {sNon}\nv_cvt_pk_bf16_f32 v2, s8, v2")
        a("s_mov_b32 exec_lo, 0\ns_mov_b32 exec_hi, 0x80000000")
        a(f"global_store_dwordx2 v{vGa}, v[2:3], {pWs} sc1")
        a("s_mov_b64 exec, -1")
    a("L_sig:\ns_waitcnt vmcnt(0)")
    stamp(3)
    a(f"s_mov_b64 exec, 1\nv_mov_b32 v2, {C_SIG}\nv_mov_b32 v3, 1\nds_add_rtn_u32 v6, v2, v3\ns_mov_b64 exec, -1")
    nonce("a")
    a(f"s_lshl_b32 s8, {sG}, 13\ns_lshl_b32 s9, {sJ}, 7\ns_add_u32 s8, s8, s9\ns_add_u32 s8, s8, {WS_FL}\nv_mov_b32 v2, s8\nv_add_u32 v3, 4096, v2")
    a("s_waitcnt lgkmcnt(0)\nv_readfirstlane_b32 s8, v6\ns_cmp_lg_u32 s8, 3\ns_cbranch_scc1 L_sigd\ns_mov_b64 exec, 1")
    if o["fastflag"]: a(f"global_store_dword v2, v{NON}, {pWs}")
    a(f"global_store_dword v3, v{NON}, {pWs} sc1\ns_mov_b64 exec, -1\nL_sigd:")
    gate()
    a("s_branch L_sigret")
    a("L_tpost:")
    a(f"s_lshl_b32 s8, {sG}, 13\ns_add_u32 s8, s8, {WS_FL}\nv_and_b32 v18, 31, v1\nv_lshl_add_u32 v18, v18, 7, s8\nv_add_u32 v25, 4096, v18")
    vFirst = 18 if o["fastflag"] else 25
    if not o["allpoll"]: a(f"s_cmp_lg_u32 {sW}, 0\ns_cbranch_scc1 L_np0")
    a(f"global_load_dword v19, v{vFirst}, {pWs} sc1\nL_np0:")
    PL, GL = 136, 152
    a(f"""s_lshl_b32 s8, {sP}, 14
v_lshlrev_b32 v10, 4, v0
v_add_u32 v11, {WS_G}, v10
v_add_u32 v10, s8, v10
v_add_u32 v12, 4096, v10
v_add_u32 v13, 8192, v10
v_add_u32 v14, 12288, v10
v_add_u32 v15, 4096, v11
v_and_b32 v2, 3, v0
v_mul_u32_u24 v16, {USTR_PH}, v2
v_bfe_u32 v2, v0, 3, 2
v_mul_u32_u24 v3, {USTR}, v2
v_add_u32 v16, v16, v3
v_bfe_u32 v2, v0, 2, 1
v_lshlrev_b32 v2, 4, v2
v_lshrrev_b32 v3, 5, v0
v_lshl_add_u32 v2, v3, 5, v2
v_sub_u32 v16, v16, v2
v_add_u32 v16, {U0 + 1008 - 768}, v16
v_lshlrev_b32 v17, 4, v0
v_add_u32 v17, {G0}, v17""")
    table_write()
    if not o["allpoll"]: a(f"s_cmp_lg_u32 {sW}, 0\ns_cbranch_scc1 L_nopoll")
    a(f"s_mov_b32 {sSpin}, 0\ns_mov_b32 s9, 0\nL_poll:\ns_waitcnt vmcnt(0)\nv_cmp_eq_u32 vcc, {sNon}, v19\ns_or_b32 s9, s9, vcc_lo\ns_cmp_eq_u32 s9, -1\ns_cbranch_scc1 L_polled")
    if o["sleep"]: a(f"s_sleep {o['sleep']}")
    a(f"s_add_u32 {sSpin}, {sSpin}, 1")
    if o["fastflag"]:
        a(f"s_and_b32 s8, {sSpin}, {o['bper']}\ns_cbranch_scc0 L_pollb\nglobal_load_dword v19, v18, {pWs} sc1\ns_branch L_poll\nL_pollb:")
    a(f"global_load_dword v19, v25, {pWs} sc1\ns_bitcmp0_b32 {sSpin}, 17\ns_cbranch_scc1 L_poll\nL_polled:")
    if not o["allpoll"]:
        lds_arrive(C_POLL)
        a("s_branch L_go\nL_nopoll:")
        lds_wait(C_POLL, 1, slp=0)
        a("L_go:")
    stamp(4)
    for i, v in enumerate((10, 12, 13, 14)): a(f"global_load_dwordx4 {vr(PL+4*i,4)}, v{v}, {pWs} sc1")
    hY, hU, hG, hO, hP = 20, 21, 22, 23, 24
    a(f"""s_lshl_b32 s8, {sW}, 8
v_lshlrev_b32 v2, 2, v1
v_add_u32 v2, s8, v2
v_add_u32 v{hY}, {Y0}, v2
v_add_u32 v{hG}, {G0}, v2
v_and_b32 v2, 3, v1
v_mul_u32_u24 v3, {USTR_PH}, v2
v_lshlrev_b32 v{hP}, 8, v2
v_add_u32 v{hP}, {PR0}, v{hP}
v_lshrrev_b32 v2, 2, v1
v_lshlrev_b32 v2, 1, v2
v_sub_u32 v3, v3, v2
s_lshl_b32 s9, {sW}, 5
s_sub_u32 s9, {U0 + 1022}, s9
v_add_u32 v{hU}, s9, v3
s_lshl_b32 s9, {sW}, 6
v_add_u32 v2, s9, v1
v_mul_u32_u24 v{hO}, 896, v2
s_lshl_b32 s9, {sP}, 2
v_add_u32 v{hO}, s9, v{hO}
v_mov_b32 v30, 0
v_mov_b32 v31, 0""")
    for i, v in enumerate((11, 15)): a(f"global_load_dwordx4 {vr(GL+4*i,4)}, v{v}, {pWs} sc1")
    for i in range(4): a(f"ds_write_b128 v16, {vr(PL+4*i,4)} offset:{256*(3-i)}")
    stamp(5)
    lds_arrive(C_U)
    a(f"s_mov_b32 {sSpin}, 0\nL_gchk:\ns_waitcnt vmcnt(0)")
    a(f"v_cmp_ne_u32 vcc, {sNon}, v{GL+1}\nv_cmp_ne_u32 s[8:9], {sNon}, v{GL+3}\nv_cmp_ne_u32 s[12:13], {sNon}, v{GL+5}\nv_cmp_ne_u32 s[14:15], {sNon}, v{GL+7}")
    a("s_or_b64 s[8:9], s[8:9], vcc\ns_or_b64 s[12:13], s[12:13], s[14:15]\ns_or_b64 s[8:9], s[8:9], s[12:13]\ns_cbranch_scc0 L_gok")
    a("s_sleep 2")
    for i, v in enumerate((11, 15)): a(f"global_load_dwordx4 {vr(GL+4*i,4)}, v{v}, {pWs} sc1")
    a(f"s_add_u32 {sSpin}, {sSpin}, 1\ns_bitcmp0_b32 {sSpin}, 16\ns_cbranch_scc1 L_gchk\ns_waitcnt vmcnt(0)\nL_gok:")
    for i in range(2):
        g = GL + 4*i
        a(f"v_and_b32 v{g+3}, {sHI}, v{g+2}\nv_lshlrev_b32 v{g+2}, 16, v{g+2}\nv_and_b32 v{g+1}, {sHI}, v{g}\nv_lshlrev_b32 v{g}, 16, v{g}")
        a(f"ds_write_b128 v17, {vr(g,4)} offset:{4096*i}")
    lds_arrive(C_G)
    lds_wait(C_G, 4)
    a(f"s_setprio {o['hprio']}")
    a(f"s_add_u32 s9, {sW}, 1\ns_mov_b32 s10, 0")
    a(f"L_help:\ns_mov_b32 {sSpin}, 0\nL_hwait:\nds_read_b32 v3, v{hP}\ns_waitcnt lgkmcnt(0)\nv_cmp_gt_u32 vcc, s9, v3\ns_cbranch_vccz L_hgo")
    if o["lsl"]: a(f"s_sleep {o['lsl']}")
    a(f"s_add_u32 {sSpin}, {sSpin}, 1\ns_bitcmp0_b32 {sSpin}, 19\ns_cbranch_scc1 L_hwait\nL_hgo:")
    if o["stamps"] == 4: a("s_memrealtime s[90:91]\ns_waitcnt lgkmcnt(0)\ns_mov_b32 m0, s10\ns_nop 1\nv_writelane_b32 v41, s90, m0")
    a(f"""ds_read_b32 v28, v{hY} offset:16384
ds_read_b32 v29, v{hY} offset:24576
ds_read_u16_d16_hi v30, v{hU}
ds_read_u16_d16_hi v31, v{hU} offset:{USTR}
ds_read_b32 v26, v{hY}
ds_read_b32 v27, v{hY} offset:8192
ds_read_b32 v25, v{hG}
v_add_u32 v{hY}, 1024, v{hY}
v_add_u32 v{hG}, 1024, v{hG}
v_subrev_u32 v{hU}, 128, v{hU}
s_add_u32 s9, s9, 4
s_add_u32 s10, s10, 1
s_waitcnt lgkmcnt(0)
v_mul_f32 v28, v28, v30
v_mul_f32 v29, v29, v31
v_sub_f32 v26, v26, v28
v_sub_f32 v27, v27, v29
v_fmac_f32 v28, v25, v26
v_fmac_f32 v29, v25, v27
v_cvt_pk_bf16_f32 v32, v28, v29
global_store_dword v{hO}, v32, {pOut}
v_add_u32 v{hO}, {256*896}, v{hO}""")
    if o["stamps"] == 4: a("s_memrealtime s[90:91]\ns_waitcnt lgkmcnt(0)\ns_add_u32 m0, s10, 7\ns_nop 1\nv_writelane_b32 v41, s90, m0")
    a("s_cmp_lt_u32 s10, 8\ns_cbranch_scc1 L_help")
    stamp(6)
    if o["stamps"]:
        a("s_waitcnt vmcnt(0)"); stamp(7)
    a("L_tend:")
    dump_stamps("T")
    a("s_endpgm\nL_g7:")
    gate_loads()
    a("s_waitcnt vmcnt(0)")
    nonce("b")
    gate()
    a("s_branch L_tend")
    a("L_end:\ns_endpgm\nL_codeend:")
    body = a.finish()
    hdr = open("cdna_kernels/" + NAME + ".s.ref").read().split("; Override launch")[0]
    txt = hdr + f"""; One launch: 7 groups of 32 workgroups exchange transposed tiles through d_ws, each workgroup then
; owns two channels (S4 kernel table, two Toeplitz convolutions on MFMA, gated mix).
; @launch grid=(256,1,1) block=(512,1,1) lds={LDS_BYTES}
.amdgcn_target "amdgcn-amd-amdhsa--gfx950"
.text
.globl {NAME}_kernel
.p2align 8
.type {NAME}_kernel,@function
{NAME}_kernel:
{body}.section .rodata,"a"
.p2align 6
.amdhsa_kernel {NAME}_kernel
  .amdhsa_next_free_vgpr 256
  .amdhsa_next_free_sgpr 102
  .amdhsa_accum_offset 256
  .amdhsa_group_segment_fixed_size 0
  .amdhsa_kernarg_size 152
  .amdhsa_user_sgpr_count 2
  .amdhsa_user_sgpr_kernarg_segment_ptr 1
  .amdhsa_system_sgpr_workgroup_id_x 1
.end_amdhsa_kernel
"""
    return txt, a.nops

if __name__ == "__main__":
    out = sys.argv[1]
    kw = {k: int(v) for k, v in (x.split("=") for x in sys.argv[2:])}
    txt, nops = gen(**kw)
    open(out, "w").write(txt)
    print("wrote", out, "lines", txt.count("\n"), "nops", nops, "lds", LDS_BYTES)
```

```python
import sys, struct, math
from asmlib import Asm

NAME = "gated_mix__ssm_conv_s4__ssm_conv_h3__prompt"
DEFAULT = dict(xcdmap=1, stamps=0, sleep=1, tprio=1, hprio=0, mprio=0, touch=0, nacc=8, lsl=1, fastflag=1, probe=0, pwg=0,
               sigpos=18, bper=15, prof=0, upre=3, gdelay=0, pfirst=0, pf=1, upos=1, nt=0)

KSTR = 4160; K0 = 0
USTR_PH = 1088; USTR = 4 * USTR_PH; U0 = 4 * KSTR
G0 = U0 + 4 * USTR
FL0 = G0 + 8192
F_SIG, F_POLL, F_U, F_P, F_G, F_PR = (FL0 + 32 * i for i in range(6))
SC0 = FL0 + 256; SROW = 272; SSTR = 53 * SROW
Y0 = SC0 + 3072; YSTR = SSTR
LDS_BYTES = SC0 + 8 * SSTR
WS_G = 224 * 16384
WS_FL = WS_G + 8192
WS_STAMP = 64 << 20

def f2u(x): return struct.unpack("<I", struct.pack("<f", x))[0]
def f32(x): return struct.unpack("<f", struct.pack("<f", x))[0]
def hx(x): return "0x%08x" % (x & 0xffffffff)
def vr(a, n=1): return f"v{a}" if n == 1 else f"v[{a}:{a+n-1}]"

sG, sJ, sW, sP = "s4", "s5", "s6", "s7"
pU, pAre, pAim, pBre, pBim, pCre, pCim, pLdt = (f"s[{16+2*i}:{17+2*i}]" for i in range(8))
pDs, pQ, pK, pV, pSh, pSk, pSd, pGw = (f"s[{32+2*i}:{33+2*i}]" for i in range(8))
pOut, pDbg, pWs = "s[48:49]", "s[50:51]", "s[52:53]"
srdK = "s[56:59]"
sKq, sCh, sHf, sSig = "s54", "s55", "s60", "s61"
sHI, sSel0, sSel1, sSpin = "s62", "s63", "s64", "s65"
sDt, sDs, sSd, sI2P, sNon, sRole = "s66", "s67", "s68", "s69", "s70", "s71"

PROF = {1: dict(T={"start": 0, "loaded": 1, "issued": 2, "anch": 3, "sigin": 4, "sigout": 5, "chain": 6, "rend": 7},
                K={"start": 0, "params": 1, "anch": 2, "chain": 3, "rend": 4, "pwait": 5, "pdone": 6, "kready": 7}),
        2: dict(T={"start": 0, "rend": 1, "pollstart": 2, "polled": 3, "payload": 4, "gok": 5, "last": 6, "end": 7},
                K={"start": 0, "kready": 1, "kop": 2, "uready": 3, "c8": 4, "c16": 5, "c24": 6, "convend": 7}),
        4: dict(T={"start": 0, "karg": 1, "ldissued": 2, "bar0": 3, "bar1": 4, "k3": 5, "loaded": 6, "issued": 7},
                K={"start": 0, "karg": 1, "ldissued": 2, "bar0": 3, "bar1": 4, "addr": 5, "params": 6, "anch": 7}),
        5: dict(T={"start": 0, "karg": 1, "par": 2, "kis": 3, "vis": 4, "ldissued": 5, "bar0": 6, "k3": 7},
                K={"start": 0, "karg": 1, "ldissued": 2, "bar0": 3, "addr": 4, "params": 5, "anch": 6, "chain": 7}),
        3: dict(T={"start": 0, "loaded": 1, "issued": 2, "sigin": 3, "polled": 4, "payload": 5, "last": 6, "end": 7},
                K={"start": 0, "params": 1, "rend": 2, "kready": 3, "uready": 4, "convend": 5})}

def gen(**kw):
    o = dict(DEFAULT); o.update(kw)
    if o["stamps"] and not o["prof"]: o["prof"] = 3
    a = Asm()
    NT = lambda bit: ' nt' if o['nt'] & bit else ''
    lab = [0]
    sop = "s_memtime" if o["stamps"] == 3 else "s_memrealtime"
    def ps(name, role):
        if not o["stamps"]: return
        tab = PROF[o["prof"]]
        if role in "TK":
            if name in tab[role]: a(f"{sop} s[{72+2*tab[role][name]}:{73+2*tab[role][name]}]")
            return
        it, ik = tab["T"].get(name), tab["K"].get(name)
        if it is None and ik is None: return
        lab[0] += 1; L = f"L_ps{lab[0]}"
        a(f"s_cmp_eq_u32 {sRole}, 1\ns_cbranch_scc1 {L}t")
        if ik is not None: a(f"{sop} s[{72+2*ik}:{73+2*ik}]")
        a(f"s_branch {L}e\n{L}t:")
        if it is not None: a(f"{sop} s[{72+2*it}:{73+2*it}]")
        a(f"{L}e:")
    def dump_stamps(role):
        if not o["stamps"]: return
        a("s_waitcnt lgkmcnt(0)")
        if o["stamps"] == 5:
            i = o["probe"]
            if (role == "T") == (i < 100):
                i %= 100
                a(f"s_cmp_lg_u32 s2, {o['pwg']}\ns_cbranch_scc1 L_end\ns_sub_u32 s8, s{72+2*i}, s72\ns_mul_i32 s8, s8, 20\ns_min_u32 s8, s8, 100000\ns_memrealtime s[10:11]\ns_waitcnt lgkmcnt(0)\ns_add_u32 s8, s8, s10")
                a(f"L_pr{role}:\ns_sleep 4\ns_memrealtime s[10:11]\ns_waitcnt lgkmcnt(0)\ns_sub_u32 s9, s8, s10\ns_cmp_gt_i32 s9, 0\ns_cbranch_scc1 L_pr{role}")
            return
        a(f"s_lshl_b32 s8, s2, 3\ns_add_u32 s8, s8, {sW}\ns_lshl_b32 s8, s8, 6\ns_add_u32 s8, s8, {WS_STAMP}")
        a("s_mov_b64 exec, 1\nv_mov_b32 v2, s8")
        for i in range(8):
            a(f"v_mov_b32 v3, s{72+2*i}\nglobal_store_dword v2, v3, {pWs} offset:{4*i}")
        a("s_waitcnt vmcnt(0)")

    RAW, vPa, vSw, vRa, vRb, vPar = 200, 214, 218, 219, 220, 224
    vMe, vL8, vL4, vOne, vDummy = 226, 227, 228, 229, 57
    def arrive(ev): a(f"ds_write_b32 v{vMe}, v{vOne} offset:{ev - FL0}")
    def wait_set(ev, vidx, vt, slp=0, pre=False):
        lab[0] += 1; L = f"L_w{lab[0]}"
        a(f"s_mov_b32 {sSpin}, 0")
        if not pre: a(f"{L}:\nds_read_b32 v{vt}, v{vidx} offset:{ev - FL0}")
        else: a(f"s_branch {L}_c\n{L}:\nds_read_b32 v{vt}, v{vidx} offset:{ev - FL0}\n{L}_c:")
        a(f"s_waitcnt lgkmcnt(0)\nv_cmp_ne_u32 vcc, 1, v{vt}\ns_cbranch_vccz {L}_ok")
        if slp: a(f"s_sleep {slp}")
        a(f"s_add_u32 {sSpin}, {sSpin}, 1\ns_bitcmp0_b32 {sSpin}, 19\ns_cbranch_scc1 {L}\n{L}_ok:")
    def param_loads():
        for i, p in enumerate((pAre, pAim, pBre, pBim, pCre, pCim)): a(f"global_load_dword v{RAW+i}, v{vPar}, {p}")
        a(f"s_load_dword {sDt}, {pLdt}, s14")
    L2E = math.log2(math.e); L2Eh = f32(L2E); L2El = L2E - L2Eh
    I2P = 1.0 / (2.0 * math.pi); I2Ph = f32(I2P); I2Pl = I2P - I2Ph
    NON, vZ = 63, 4
    def nonce(tag, NON=63):
        a(f"s_mov_b32 {sSpin}, 0\nL_non{tag}:\nv_readfirstlane_b32 {sNon}, v{NON}\ns_cmp_lg_u32 {sNon}, 0\ns_cbranch_scc1 L_non{tag}_ok")
        a(f"s_sleep 4\nglobal_load_dword v{NON}, v{vZ}, {pDbg} sc1\ns_waitcnt vmcnt(0)\ns_add_u32 {sSpin}, {sSpin}, 1\ns_bitcmp0_b32 {sSpin}, 16\ns_cbranch_scc1 L_non{tag}\nL_non{tag}_ok:")
    a("s_cmp_ge_u32 s2, 256\ns_cbranch_scc1 L_end")
    ps("start", "T")
    a(f"""L_pc:
v_lshrrev_b32 v2, 6, v0
s_load_dwordx16 s[16:31], s[0:1], 0
v_readfirstlane_b32 {sW}, v2
s_load_dwordx16 s[32:47], s[0:1], 64
{"s_lshr_b32 s5, s2, 3" if o["xcdmap"] else "s_and_b32 s5, s2, 31"}
s_load_dwordx4 s[48:51], s[0:1], 128
s_load_dwordx2 s[52:53], s[0:1], 144
v_and_b32 v1, 63, v0""")
    a(f"s_and_b32 {sG}, s2, 7" if o["xcdmap"] else f"s_lshr_b32 {sG}, s2, 5")
    a(f"""s_cmp_eq_u32 {sG}, 7
s_cbranch_scc1 L_g7
v_lshlrev_b32 v5, 2, v1
v_mov_b32 v8, 0
ds_write_b32 v5, v8 offset:{FL0}
s_lshl_b32 {sP}, {sG}, 5
s_add_u32 {sP}, {sP}, {sJ}
s_and_b32 {sKq}, {sW}, 3
s_lshr_b32 {sCh}, {sKq}, 1
s_and_b32 {sHf}, {sW}, 1
s_lshl_b32 s11, {sP}, 1
s_add_u32 s11, s11, {sCh}
s_lshl_b32 s14, s11, 9
s_lshl_b32 s15, {sHf}, 8
s_add_u32 s14, s14, s15
v_lshl_add_u32 v{vPar}, v1, 2, s14
s_lshl_b32 s14, {sP}, 2
s_cmp_ge_u32 {sW}, 4
s_cbranch_scc1 L_kpre""")

    vB, vB2, vKA, vSt = 10, 11, 12, 9
    U_, V_, K_, SH = 16, 24, 32, 44
    a(f"""s_lshl_b32 s8, {sCh}, 5
s_lshl_b32 s9, {sJ}, 6
s_add_u32 s8, s8, s9
s_mul_i32 s8, s8, 896
s_lshl_b32 s10, {sHf}, 6
s_lshl_b32 s11, {sG}, 7
s_add_u32 s10, s10, s11
s_add_u32 s8, s8, s10
v_lshrrev_b32 v2, 4, v1
v_and_b32 v3, 15, v1
v_mul_u32_u24 v4, {8*896}, v2
v_lshl_add_u32 v4, v3, 2, v4
v_add_u32 v{vB}, s8, v4
v_add_u32 v{vB2}, {4*896}, v{vB}
v_subrev_u32 v{vKA}, {3*896}, v{vB}
s_lshl_b32 s10, s10, 2
v_lshl_add_u32 v8, v3, 4, s10
s_mov_b32 s58, 1835008
s_mov_b32 s59, 0x20000
s_waitcnt lgkmcnt(0)""")
    ps("karg", "T")
    a(f"s_load_dword {sDt}, {pLdt}, s14")
    ps("par", "T")
    a("s_mov_b32 s56, s36\ns_mov_b32 s57, s37\ns_barrier")
    rows = [((vB, 896*i) if i < 4 else (vB2, 896*(i-4))) for i in range(8)]
    for i in range(3): a(f"buffer_load_dword v{K_+i}, v{vKA}, {srdK}, 0 offen offset:{896*i}{NT(1)}")
    for i, (b, off) in enumerate(rows): a(f"buffer_load_dword v{K_+3+i}, v{b}, {srdK}, 0 offen offset:{off}{NT(1)}")
    ps("kis", "T")
    a(f"global_load_dwordx4 v[{SH}:{SH+3}], v8, {pSh}")
    for i, (b, off) in enumerate(rows): a(f"global_load_dword v{V_+i}, v{b}, {pV} offset:{off}{NT(1)}")
    ps("vis", "T")
    def u_loads():
        for i, (b, off) in enumerate(rows): a(f"global_load_dword v{U_+i}, v{b}, {pU} offset:{off}{NT(2)}")
    def t_params():
        for i, p in enumerate((pAre, pAim, pBre, pBim, pCre, pCim)): a(f"global_load_dword v{RAW+i}, v{vPar}, {p}")
    if o["upos"] == 0: u_loads()
    ps("ldissued", "T")
    a(f"""s_mov_b32 {sSel0}, 0x05040100
s_mov_b32 {sSel1}, 0x07060302
s_lshl_b32 s8, {sG}, 5
s_lshl_b32 s9, {sHf}, 4
s_add_u32 s8, s8, s9
s_lshl_b32 s8, s8, 14
s_lshl_b32 s9, {sJ}, 9
s_add_u32 s8, s8, s9
s_lshl_b32 s9, {sCh}, 6
s_add_u32 s8, s8, s9
v_lshlrev_b32 v{vSt}, 14, v3
v_lshl_add_u32 v{vSt}, v2, 4, v{vSt}
v_add_u32 v{vSt}, s8, v{vSt}
v_mov_b32 v{vZ}, 0
s_mov_b32 {sRole}, 1
s_mov_b32 {sSig}, 2""")
    if o["tprio"]: a(f"s_setprio {o['tprio']}")
    a("s_branch L_setup")

    a(f"""L_kpre:
s_mov_b32 {sRole}, 0
s_mov_b32 {sSig}, 0
s_waitcnt lgkmcnt(0)""")
    ps("karg", "K")
    param_loads()
    a(f"s_load_dword {sDs}, {pDs}, s14\ns_load_dword {sSd}, {pSd}, s14")
    a("s_barrier")
    ps("ldissued", "K")
    a(f"""L_kinit:
v_mov_b32 v8, 0
v_mov_b32 v9, 0
v_mov_b32 v10, 0
v_mov_b32 v11, 0
v_lshrrev_b32 v5, 2, v1
v_mul_u32_u24 v5, {USTR_PH}, v5
v_and_b32 v6, 3, v1
v_lshl_add_u32 v5, v6, 4, v5
ds_write_b128 v5, v[8:11] offset:{U0 + 1024}
v_bfe_u32 v5, v1, 1, 2
v_mul_u32_u24 v5, {KSTR}, v5
v_and_b32 v6, 1, v1
v_lshl_add_u32 v5, v6, 4, v5
ds_write_b128 v5, v[8:11] offset:{K0}""")

    D = 176
    a(f"""L_setup:
s_mov_b32 {sHI}, 0xffff0000
s_add_u32 {sSig}, {sSig}, {sHf}
s_mul_i32 s11, {sCh}, {4*SSTR}
s_add_u32 s11, s11, {SC0}
s_mul_i32 s14, {sSig}, {SSTR}
s_add_u32 s11, s11, s14
v_and_b32 v13, 31, v1
v_lshrrev_b32 v14, 5, v1
v_lshlrev_b32 v15, 5, v13
v_lshl_add_u32 v15, v14, 4, v15
v_add_u32 v{vPa}, s11, v15
v_cmp_eq_u32 vcc, 0, v14
v_lshlrev_b32 v15, 4, v13
v_add_u32 v15, {4*256}, v15
v_lshlrev_b32 v2, 3, v13
v_add_u32 v2, {4*384}, v2
v_cndmask_b32 v3, v2, v15, vcc
v_add_u32 v{vPa+1}, s11, v3
v_add_u32 v15, 8, v15
v_add_u32 v2, 256, v2
v_cndmask_b32 v3, v2, v15, vcc
v_add_u32 v{vPa+2}, s11, v3
v_lshlrev_b32 v15, 2, v13
v_lshl_add_u32 v15, v14, 9, v15
v_add_u32 v15, {4*512}, v15
v_add_u32 v{vPa+3}, s11, v15
v_lshl_add_u32 v{vSw}, v1, 2, s11
v_mul_u32_u24 v15, {SROW}, v13
v_lshl_add_u32 v15, v14, 4, v15
v_add_u32 v{vRa}, s11, v15
v_add_u32 v{vRb}, {21*SROW}, v{vRa}
s_lshl_b32 s14, {sW}, 2
s_add_u32 s14, s14, {FL0}
v_mov_b32 v{vMe}, s14
v_and_b32 v2, 7, v1
v_lshlrev_b32 v2, 2, v2
v_add_u32 v{vL8}, {FL0}, v2
v_and_b32 v2, 12, v2
v_add_u32 v{vL4}, {FL0}, v2
v_mov_b32 v{vOne}, 1""")
    ps("bar0", "B")
    a("s_waitcnt lgkmcnt(0)")
    ps("bar1", "B")
    a(f"""s_lshl_b32 s14, {sCh}, 4
s_sub_u32 s14, 16, s14
s_lshl_b32 {sDt}, {sDt}, s14
s_and_b32 {sDt}, {sDt}, {sHI}
v_mov_b32 v13, {sDt}
v_mul_f32 v14, {hx(f2u(L2Eh))}, v13
v_mov_b32 v2, {hx(f2u(L2Eh))}
v_fma_f32 v15, v13, v2, -v14
v_fmac_f32 v15, {hx(f2u(L2El))}, v13
v_exp_f32 v14, v14
v_mul_f32 v15, {hx(f2u(math.log(2.0)))}, v15
v_fma_f32 v14, v14, v15, v14
v_cvt_pk_bf16_f32 v14, 0, v14
s_mov_b32 {sI2P}, {hx(f2u(I2Ph))}
v_readfirstlane_b32 {sDt}, v14
s_cmp_eq_u32 {sRole}, 0
s_cbranch_scc1 L_kround""")

    KU, WT, AC, VT, PC = 64, 86, 96, 112, 120
    if o["upos"] == 1: u_loads()
    ex = 8 if o["upos"] < 2 else 0
    a(f"s_waitcnt vmcnt({17 + ex})")
    ps("k3", "T")
    for i in range(3): a(f"v_lshlrev_b32 v{KU+2*i}, 16, v{K_+i}\nv_and_b32 v{KU+2*i+1}, {sHI}, v{K_+i}")
    a(f"s_waitcnt vmcnt({8 + ex})")
    for i in range(3, 11): a(f"v_lshlrev_b32 v{KU+2*i}, 16, v{K_+i}\nv_and_b32 v{KU+2*i+1}, {sHI}, v{K_+i}")
    for ch in range(2):
        for t in range(4):
            src = SH + 2*ch + t//2
            a(f"v_lshlrev_b32 v{WT+2*t+ch}, 16, v{src}" if t % 2 == 0 else f"v_and_b32 v{WT+2*t+ch}, {sHI}, v{src}")
    ps("loaded", "T")
    for t in range(4):
        for r in range(8):
            k = KU + 2*(r + 3 - t)
            if t == 0: a(f"v_pk_mul_f32 {vr(AC+2*r,2)}, {vr(k,2)}, {vr(WT,2)}")
            else: a(f"v_pk_fma_f32 {vr(AC+2*r,2)}, {vr(k,2)}, {vr(WT+2*t,2)}, {vr(AC+2*r,2)}")
    if o["upos"] == 2: u_loads()
    t_params()
    a("s_waitcnt vmcnt(14)")
    for r in range(8):
        t = VT + 2*(r % 4)
        a(f"v_lshlrev_b32 v{t}, 16, v{V_+r}\nv_and_b32 v{t+1}, {sHI}, v{V_+r}")
        a(f"v_pk_mul_f32 {vr(AC+2*r,2)}, {vr(AC+2*r,2)}, {vr(t,2)}")
    def transpose2(b0, b1):
        for st, pr in (("32", ((0, 2), (1, 3))), ("16", ((0, 1), (2, 3)))):
            for base in (b0, b1):
                for x, y in pr: a(f"v_permlane{st}_swap_b32 v{base+3-x}, v{base+3-y}")
    for ch in range(2):
        for rho in range(4):
            a(f"v_cvt_pk_bf16_f32 v{PC+8+4*ch+3-rho}, v{AC+2*(rho+4)+ch}, v{AC+2*rho+ch}")
    transpose2(PC + 8, PC + 12)
    for ch in range(2): a(f"global_store_dwordx4 v{vSt}, {vr(PC+8+4*ch,4)}, {pWs} offset:{(2+ch)*128} sc1")
    a("s_waitcnt vmcnt(8)")
    for ch in range(2):
        for rho in range(4):
            a(f"v_perm_b32 v{PC+4*ch+3-rho}, v{U_+rho}, v{U_+rho+4}, {sSel0 if ch == 0 else sSel1}")
    transpose2(PC, PC + 4)
    for ch in range(2): a(f"global_store_dwordx4 v{vSt}, {vr(PC+4*ch,4)}, {pWs} offset:{ch*128} sc1")
    a(f"global_load_dword v{NON}, v{vZ}, {pDbg} sc1")
    ps("issued", "T")
    a("s_waitcnt vmcnt(5)")
    for i in range(6): a(f"v_and_b32 v{8+i}, {sHI}, v{RAW+i}")
    a("s_branch L_round")

    SK = 24
    vKa, vUa, vYa, vPr = 230, 231, 232, 233
    vE8, vE16, vW8, vW16, vW32, vFold, vSkW = 234, 235, 236, 237, 238, 239, 240
    a(f"""L_kround:
v_and_b32 v6, 3, v1
v_bfe_u32 v7, v1, 2, 2
v_lshrrev_b32 v8, 4, v1
v_add_u32 v9, v6, v7
v_lshlrev_b32 v9, 3, v9
v_lshl_add_u32 v9, v8, 6, v9
s_mul_i32 s13, {sKq}, {KSTR}
s_add_u32 s14, s13, {K0 + 8}
v_add_u32 v{vKa}, s14, v9
v_mul_u32_u24 v9, {USTR_PH}, v6
v_lshl_add_u32 v9, v8, 4, v9
v_lshlrev_b32 v7, 3, v7
v_sub_u32 v9, v9, v7
s_mul_i32 s14, {sKq}, {USTR}
s_add_u32 s14, s14, {U0 + 1016 - 32*31}
v_add_u32 v{vUa}, s14, v9
s_mul_i32 s14, {sKq}, {YSTR}
s_add_u32 s14, s14, {Y0}
v_lshl_add_u32 v{vYa}, v1, 2, s14
s_lshl_b32 s14, {sKq}, 2
s_add_u32 s14, s14, {F_PR}
v_mov_b32 v{vPr}, s14
s_add_u32 s13, s13, {K0 + 32}
v_lshl_add_u32 v{vW8}, v1, 3, s13
v_lshl_add_u32 v{vW16}, v1, 4, s13
v_lshl_add_u32 v{vW32}, v1, 5, s13
s_mul_i32 s14, {sHf}, {4*SSTR}
s_add_u32 s14, s14, {SC0}
v_lshl_add_u32 v{vE8}, v1, 3, s14
v_lshl_add_u32 v{vE16}, v1, 4, s14
s_lshl_b32 s14, {sCh}, 4
s_sub_u32 s14, 16, s14
s_lshl_b32 {sDs}, {sDs}, s14
s_and_b32 {sDs}, {sDs}, {sHI}
s_cmp_eq_u32 {sHf}, 0
s_cselect_b32 {sDs}, {sDs}, 0
s_lshl_b32 s14, {sHf}, 4
s_sub_u32 s14, 16, s14
s_lshl_b32 {sSd}, {sSd}, s14
s_and_b32 {sSd}, {sSd}, {sHI}
v_cmp_eq_u32 vcc, 0, v1
v_mov_b32 v7, {sDs}
v_mov_b32 v8, {sSd}
v_cndmask_b32 v{vFold}, 0, v7, vcc
v_cndmask_b32 v{vFold+2}, 0, v8, vcc
s_lshl_b32 s14, {sP}, 1
s_add_u32 s14, s14, {sHf}
s_lshl_b32 s14, s14, 12
v_lshl_add_u32 v{vSkW}, v1, 4, s14""")
    if o["pf"] or o["fastflag"]:
        a(f"s_cmp_lg_u32 {sKq}, 3\ns_cbranch_scc1 L_nopf")
        if o["fastflag"]: a(f"s_lshl_b32 s9, {sG}, 13\ns_lshl_b32 s10, {sJ}, 7\ns_add_u32 s9, s9, s10\ns_add_u32 s9, s9, {WS_FL}\ns_load_dword s92, {pWs}, s9")
        if o["pf"]:
            a(f"s_getpc_b64 s[12:13]\nL_pc2:\ns_lshl_b32 s8, {sJ}, 9\ns_min_u32 s8, s8, L_codeend-L_pc-512\ns_sub_u32 s8, s8, L_pc2-L_pc\ns_ashr_i32 s9, s8, 31\ns_add_u32 s12, s12, s8\ns_addc_u32 s13, s13, s9")
            for i in range(4): a(f"s_load_dword s{93+i}, s[12:13], {128*i}")
        a("L_nopf:")
    ps("addr", "K")
    a(f"""s_waitcnt vmcnt(0)""")
    ps("params", "K")
    for i in range(6): a(f"v_lshlrev_b32 v{8+i}, 16, v{RAW+i}")

    a("L_round:")
    A2, TH, TL = 140, 141, 142
    Z1, Z2, Z4, Z8, Z256, W, X, Yc, Fc = 146, 148, 150, 152, 154, 156, 158, 160, 162
    PK = 166; OA = 64; OB = 80
    a(f"""v_mul_f32 v8, {sDt}, v8
v_mul_f32 v9, {sDt}, v9
v_mul_f32 v{A2}, {hx(f2u(L2Eh))}, v8
v_mul_f32 v{TH}, {sI2P}, v9
v_fma_f32 v{TL}, v9, {sI2P}, -v{TH}
v_fmac_f32 v{TL}, {hx(f2u(I2Pl))}, v9""")
    def cm(d, x, z):
        t = d if d != x else 14
        return (f"v_pk_mul_f32 {vr(t,2)}, {vr(x,2)}, {vr(z,2)} op_sel_hi:[0,1]",
                f"v_pk_fma_f32 {vr(d,2)}, {vr(x,2)}, {vr(z,2)}, {vr(t,2)} op_sel:[1,1,0] op_sel_hi:[1,0,1] neg_lo:[1,0,0]")
    def cmul(d, x, z):
        for t in cm(d, x, z): a(t)
    anchors = ((1, Z1, 136), (8, Z8, 138), (256, Z256, 144))
    for e, Z, Mx in anchors:
        if e == 1: a(f"v_exp_f32 v{Mx}, v{A2}\nv_fract_f32 v{Mx+1}, v{TH}")
        else:
            c = hx(f2u(float(e)))
            a(f"v_mul_f32 v{Mx}, {c}, v{A2}\nv_mul_f32 v{Mx+1}, {c}, v{TH}\nv_exp_f32 v{Mx}, v{Mx}\nv_fract_f32 v{Mx+1}, v{Mx+1}")
    for e, Z, Mx in anchors:
        if e == 1: a(f"v_add_f32 v{Mx+1}, v{Mx+1}, v{TL}")
        else: a(f"v_fmac_f32 v{Mx+1}, {hx(f2u(float(e)))}, v{TL}")
    for e, Z, Mx in anchors: a(f"v_cos_f32 v{Z}, v{Mx+1}\nv_sin_f32 v{Z+1}, v{Mx+1}")
    cmul(W, 12, 10)
    for e, Z, Mx in anchors: a(f"v_pk_mul_f32 {vr(Z,2)}, {vr(Z,2)}, {vr(Mx,2)} op_sel_hi:[1,0]")
    a(f"v_mul_f32 v{W}, {sDt}, v{W}\nv_mul_f32 v{W+1}, {sDt}, v{W+1}")
    cmul(Z2, Z1, Z1)
    a(f"v_mov_b32 v{PK+7}, 0x3f80\nds_write_b32 v{vSw}, v{PK+7} offset:{21*SROW}")
    cmul(Z4, Z2, Z2)
    ps("anch", "B")
    pk = [0]
    def cvt(row, src, neg):
        r = PK + (pk[0] % 8); pk[0] += 1
        return f"v_cvt_pk_bf16_f32 v{r}, v{src}, {'-' if neg else ''}v{src+1}", f"ds_write_b32 v{vSw}, v{r} offset:{row*SROW}"
    steps = [(None, W, None, 0)]; prev = W
    for r in range(1, 8):
        d = X if prev != X else Yc
        steps.append((d, prev, Z1, r)); prev = d
    steps.append((W, W, Z256, 8)); prev = W
    for r in range(9, 12):
        d = X if prev != X else Yc
        steps.append((d, prev, Z2, r)); prev = d
    steps += [(W, W, Z256, 12), (X, W, Z4, 13), (W, W, Z256, 14), (X, W, Z4, 15)]
    steps += [(W, W, Z256, 16 + i) for i in range(5)]
    fsteps = [(None, Z8, None, 22)]; prev = Z8
    for jx in range(2, 22):
        d = Fc if prev != Fc else Fc + 2
        fsteps.append((d, prev, Z8, 21 + jx)); prev = d
    last21 = prev; last20 = Fc if prev != Fc else Fc + 2
    steps.append((Z2, Z8, Z8, None))
    pa, pb = last20, last21
    tail = []
    for jx in range(22, 32, 2):
        da = Z1 if pa != Z1 else X; db = Z4 if pb != Z4 else Yc
        tail.append(((da, pa, Z2, 21 + jx), (db, pb, Z2, 22 + jx))); pa, pb = da, db
    seq = []
    for n in range(max(len(steps), len(fsteps))):
        seq.append([(lst[n], neg) for lst, neg in ((fsteps, False), (steps, True)) if n < len(lst)])
    seq += [[(x, False), (y, False)] for x, y in tail]
    late = []
    for n, grp in enumerate(seq):
        m0, m1, cv, wr = [], [], [], []
        for (d, x, z, row), neg in grp:
            if d is not None:
                p, q = cm(d, x, z); m0.append(p); m1.append(q); x = d
            if row is not None:
                c_, w_ = cvt(row, x, neg); cv.append(c_); wr.append(w_)
        for t in m0 + late[:1] + m1 + late[1:] + cv: a(t)
        late = wr
        if n == o["sigpos"]:
            a(f"s_cmp_eq_u32 {sRole}, 1\ns_cbranch_scc1 L_sig\ns_cmp_lt_u32 {sKq}, 2\ns_cbranch_scc1 L_sigret")
            for i in range(4): a(f"global_load_dwordx4 {vr(SK+4*i,4)}, v{vSkW}, {pSk} offset:{1024*i}{NT(4)}")
            a("L_sigret:")
    for t in late: a(t)
    ps("chain", "B")
    def kmf(q): a(f"v_mfma_f32_32x32x16_bf16 {vr(D,16)}, {vr(OA+4*(q%4),4)}, {vr(OB+4*(q%4),4)}, {vr(D,16) if q else 0}")
    for s in range(8):
        a(f"ds_read_b128 {vr(OA+4*(s%4),4)}, v{vRa} offset:{32*s}\nds_read_b128 {vr(OB+4*(s%4),4)}, v{vRb} offset:{32*s}")
        if s >= 3: kmf(s - 3)
    for q in (5, 6, 7): kmf(q)
    a(f"s_cmp_eq_u32 {sRole}, 1\ns_cbranch_scc1 L_tpost")

    def table_write():
        a(f"ds_write_b128 v{vPa}, {vr(D,4)}\nds_write_b64 v{vPa+1}, {vr(D+4,2)}\nds_write_b64 v{vPa+2}, {vr(D+6,2)}")
        for r in range(4): a(f"ds_write_b32 v{vPa+3}, v{D+8+r} offset:{128*r}")
        arrive(F_P)

    ps("rend", "K")
    a("s_waitcnt vmcnt(4)" if False else "s_nop 7")
    a(f"v_add_f32 v{D}, v{D}, v{vFold}")
    table_write()
    a(f"s_cmp_lt_u32 {sKq}, 2\ns_cbranch_scc1 L_aunit")
    a(f"""s_waitcnt vmcnt(0)
v_lshlrev_b32 v12, 16, v{SK}
v_add_f32 v12, v12, v{vFold+2}
v_cvt_pk_bf16_f32 v12, v12, v12
v_mov_b32 v13, 0xffff
v_bfi_b32 v{SK}, v13, v12, v{SK}""")
    for i in range(4): a(f"ds_write_b128 v{vW16}, {vr(SK+4*i,4)} offset:{1024*i}")
    if o["touch"]:
        a(f"s_lshl_b32 s14, {sJ}, 6\ns_lshl_b32 s15, {sHf}, 5\ns_add_u32 s14, s14, s15\nv_and_b32 v11, 31, v1\nv_add_u32 v11, s14, v11\nv_mul_u32_u24 v11, 896, v11\ns_lshl_b32 s14, {sG}, 7\nv_add_u32 v11, s14, v11")
        a(f"global_load_dword v{vDummy}, v11, {pOut}")
    a("s_branch L_kop\nL_aunit:")
    def gather(dst, n, vaddr, off):
        for q in range(4):
            r = dst + 4*q
            if n == 4: a(f"ds_read_b128 {vr(r,4)}, v{vaddr} offset:{off + q*SSTR}")
            else: a(f"ds_read_b64 {vr(r,2)}, v{vaddr} offset:{off + q*SSTR}\nds_read_b32 v{r+2}, v{vaddr} offset:{off + q*SSTR + 8}")
    def total(dst, n):
        for i in range(n): a(f"v_add_f32 v{dst+i}, v{dst+i}, v{dst+4+i}\nv_add_f32 v{dst+8+i}, v{dst+8+i}, v{dst+12+i}")
        for i in range(n): a(f"v_add_f32 v{dst+i}, v{dst+i}, v{dst+8+i}")
    def pack(dst, src, pat):
        for i, (x, y) in enumerate(pat): a(f"v_cvt_pk_bf16_f32 v{dst+i}, v{src+x}, v{src+y}")
    ps("pwait", "K")
    wait_set(F_P, vL8, 2)
    ps("pdone", "K")
    gather(64, 4, vE16, 0); gather(80, 3, vE8, 4*256)
    total(64, 4); pack(128, 64, ((0, 1), (2, 3)))
    a(f"ds_write_b64 v{vW8}, v[128:129]")
    gather(96, 3, vE8, 4*384)
    total(80, 3); pack(130, 80, ((0, 0), (1, 2)))
    a(f"ds_write_b64 v{vW8}, v[130:131] offset:{2*256}")
    gather(112, 3, vE8, 4*512)
    total(96, 3); pack(132, 96, ((0, 0), (0, 1), (1, 1), (2, 2)))
    a(f"ds_write_b128 v{vW16}, v[132:135] offset:{2*512}")
    total(112, 3); pack(136, 112, ((0, 0), (0, 0), (0, 1), (1, 1), (1, 1), (1, 1), (2, 2), (2, 2)))
    a(f"ds_write_b128 v{vW32}, v[136:139] offset:{2*1024}\nds_write_b128 v{vW32}, v[140:143] offset:{2*1024+16}")
    a("L_kop:")
    ps("kready", "K")
    KOP, UOP, ACC, TR, ZR = 192, 64, 24, 8, 58
    a(f"v_mov_b32 v2, v{vKa}\nv_mov_b32 v3, v{vUa}\nv_mov_b32 v4, v{vYa}\nv_mov_b32 v5, v{vPr}\nv_mov_b32 v6, v{vL4}")
    vKa, vUa, vYa, vPr = 2, 3, 4, 5
    for mu in range(16):
        a(f"ds_read_b64_tr_b16 {vr(KOP+4*mu,2)}, v{vKa} offset:{256*mu}\nds_read_b64_tr_b16 {vr(KOP+4*mu+2,2)}, v{vKa} offset:{256*mu+32}")
    for i in range(3): a(f"v_mov_b32 v{ZR+i}, 0")
    ps("kop", "K")
    wait_set(F_U, 6, 7)
    if o["mprio"]: a(f"s_setprio {o['mprio']}")
    ps("uready", "K")
    def uload(nu):
        off = 32 * (31 - nu)
        return [f"ds_read_b64 {vr(UOP+4*nu,2)}, v{vUa} offset:{off}", f"ds_read_b64 {vr(UOP+4*nu+2,2)}, v{vUa} offset:{off+8}"]
    NACC = o["nacc"]; NTR = 4; UP = o["upre"]
    dp = "row_mask:0xf bank_mask:0xf"
    pos = [0]
    def em(t):
        a(t); pos[0] += 1
    done_at = {}
    lastflag = [None]
    def epi(c):
        A = ACC + 4 * (c % NACC)
        cur = TR + 4 * (c % NTR); prv = TR + 4 * ((c - 1) % NTR)
        pT3 = (ACC + 4 * ((c - 1) % NACC) + 3) if c > 0 else ZR
        pT2 = prv if c > 0 else ZR + 1
        pT1 = prv + 1 if c > 0 else ZR + 2
        L = [((c, 0), f"v_add_f32_dpp v{cur}, v{pT3}, v{A+2} wave_ror:1 {dp}", 1, [(("m", c), 9), ((c - NTR + 1, 1), 1), ((c - NTR + 1, 3), 1), ((c - NTR, 6), 1)]),
             ((c, 2), f"v_add_f32_dpp v{cur}, v{A+3}, v{A+2} wave_shr:1 {dp}", 1, [((c, 0), 1)]),
             ((c, 1), f"v_add_f32_dpp v{cur+1}, v{pT2}, v{A+1} wave_ror:1 {dp}", 1, [((c, 2), 1), ((c - 1, 2), 3)]),
             ((c, 4), f"v_add_f32_dpp v{cur+1}, v{cur}, v{A+1} wave_shr:1 {dp}", 1, [((c, 1), 1), ((c, 2), 3)]),
             ((c, 3), f"v_add_f32_dpp v{cur+2}, v{pT1}, v{A} wave_ror:1 {dp}", 1, [((c, 4), 1), ((c - 1, 4), 3)]),
             ((c, 5), f"v_add_f32_dpp v{cur+2}, v{cur+1}, v{A} wave_shr:1 {dp}", 1, [((c, 3), 1), ((c, 4), 3)]),
             ((c, 6), f"ds_write_b32 v{vYa}, v{cur+2} offset:{256*c}", 2, [((c, 5), 2), ((c - 1, 6), 1)])]
        if c % 2 == 1 or c >= 28:
            dep = [((c, 5), 1)] + ([(lastflag[0], 1)] if lastflag[0] else [])
            L += [((c, 7), f"v_mov_b32_e64 v61, {c+1}", 1, dep), ((c, 8), f"ds_write_b32 v{vPr}, v61", 2, [((c, 7), 2), ((c, 6), 1)])]
            lastflag[0] = (c, 8)
        return L
    def ready(item):
        for key, dist in item[3]:
            if key[0] != "m" and key[0] < 0: continue
            if key not in done_at or pos[0] - done_at[key] < dist: return False
        return True
    queue = []
    def fill(slots):
        while slots > 0:
            pick = None
            for n, it in enumerate(queue[:24]):
                if it[2] <= slots and ready(it): pick = n; break
            if pick is None: return
            it = queue.pop(pick); done_at[it[0]] = pos[0]; em(it[1]); slots -= it[2]
    def drain(pred):
        while any(pred(it) for it in queue):
            n0 = len(queue); fill(2)
            if len(queue) == n0: em("s_nop 0")
    for nu in range(UP):
        for t in uload(nu): em(t)
    for c in range(32):
        nm = c // 2 + 1
        if c in (8, 16, 24): ps(f"c{c}", "K")
        if c + UP < 32:
            tl = uload(c + UP)
            queue[0:0] = [(("u", c, 0), tl[0], 1, []), (("u", c, 1), tl[1], 1, [])]
        old = c - NACC
        if old >= 0: drain(lambda it: it[0][0] == old or it[0] == (old + 1, 0))
        if c >= 1: drain(lambda it: it[0][0] == "u" and it[0][1] <= c - UP + 1)
        for n, mu in enumerate(range(nm - 1, -1, -1)):
            A = ACC + 4 * (c % NACC)
            em(f"v_mfma_f32_16x16x32_bf16 {vr(A,4)}, {vr(UOP+4*(c-2*mu),4)}, {vr(KOP+4*mu,4)}, {'0' if n == 0 else vr(A,4)}")
            if n == nm - 1:
                done_at[("m", c)] = pos[0] - 1; queue.extend(epi(c))
            fill(2)
    drain(lambda it: True)
    ps("convend", "K")
    a("L_kend:")
    dump_stamps("K")
    a("s_endpgm")

    GU, GW = 8, 40
    a(f"""L_g7:
s_lshl_b32 s8, {sJ}, 3
s_add_u32 s8, s8, {sW}
s_lshl_b32 s9, s8, 3
v_lshrrev_b32 v7, 3, v1
v_add_u32 v7, s9, v7
v_and_b32 v6, 7, v1
v_mul_u32_u24 v6, 112, v6
v_mul_u32_u24 v7, 896, v7
v_add_u32 v7, v7, v6
s_lshl_b32 s9, s8, 5
s_add_u32 s9, s9, {WS_G}
v_lshrrev_b32 v5, 4, v1
v_lshl_add_u32 v5, v5, 3, s9
v_mov_b32 v{vZ}, 0
s_waitcnt lgkmcnt(0)""")
    a(f"""s_cmp_lg_u32 s8, 0
s_cbranch_scc1 L_nonon
s_memrealtime s[12:13]
s_mov_b64 exec, 1
v_mov_b32 v3, 0
s_waitcnt lgkmcnt(0)
s_or_b32 s12, s12, 1
v_mov_b32 v2, s12
global_atomic_cmpswap v{vZ}, v[2:3], {pDbg} sc1
s_waitcnt vmcnt(0)
s_mov_b64 exec, -1
L_nonon:""")
    for i in range(7): a(f"global_load_dwordx4 {vr(GW+4*i,4)}, v6, {pGw} offset:{16*i}")
    a(f"global_load_dword v70, v{vZ}, {pDbg} sc1\ns_waitcnt vmcnt(0)")
    nonce("g", 70)
    for i in range(7): a(f"global_load_dwordx4 {vr(GU+4*i,4)}, v7, {pU} offset:{16*i}")
    a("v_mov_b32 v2, 0\nv_mov_b32 v3, 0")
    for i in range(0, 28, 2): a(f"v_dot2_f32_bf16 v2, v{GU+i}, v{GW+i}, v2\nv_dot2_f32_bf16 v3, v{GU+i+1}, v{GW+i+1}, v3")
    a("v_add_f32 v2, v2, v3")
    for sh in (1, 2, 4): a(f"v_add_f32_dpp v2, v2, v2 row_shr:{sh} row_mask:0xf bank_mask:0xf bound_ctrl:0")
    a(f"v_cvt_pk_bf16_f32 v2, 0, v2\nv_mul_f32 v2, {hx(f2u(-L2E))}, v2\nv_exp_f32 v2, v2\nv_add_f32 v2, 1.0, v2\nv_rcp_f32 v2, v2")
    a("v_mov_b32_dpp v3, v2 row_shr:8 row_mask:0xf bank_mask:0xf bound_ctrl:0\nv_cvt_pk_bf16_f32 v2, v3, v2")
    a(f"v_mov_b32 v3, {sNon}\ns_mov_b32 exec_lo, 0x80008000\ns_mov_b32 exec_hi, 0x80008000\nglobal_store_dwordx2 v5, v[2:3], {pWs} sc1\ns_endpgm")

    a("L_sig:")
    ps("sigin", "T")
    a(f"s_waitcnt vmcnt(0)\nds_write_b32 v{vMe}, v{vOne} offset:{F_SIG - FL0}\nds_read_b32 v6, v{vL4} offset:{F_SIG - FL0}")
    nonce("a")
    a(f"s_lshl_b32 s8, {sG}, 13\ns_lshl_b32 s9, {sJ}, 7\ns_add_u32 s8, s8, s9\ns_add_u32 s8, s8, {WS_FL}\nv_mov_b32 v2, s8\nv_add_u32 v3, 4096, v2")
    a("s_waitcnt lgkmcnt(0)\nv_cmp_ne_u32 vcc, 1, v6\ns_cbranch_vccnz L_sigd\ns_mov_b64 exec, 1")
    if o["fastflag"]: a(f"global_store_dword v2, v{NON}, {pWs}")
    a(f"global_store_dword v3, v{NON}, {pWs} sc1\ns_mov_b64 exec, -1\nL_sigd:")
    ps("sigout", "T")
    a("s_branch L_sigret")
    a("L_tpost:")
    ps("rend", "T")
    a(f"s_lshl_b32 s8, {sG}, 13\ns_add_u32 s8, s8, {WS_FL}\nv_and_b32 v18, 31, v1\nv_lshl_add_u32 v18, v18, 7, s8\nv_add_u32 v25, 4096, v18")
    vFirst = 18 if o["fastflag"] else 25
    a(f"s_cmp_lg_u32 {sW}, 0\ns_cbranch_scc1 L_np0\nglobal_load_dword v19, v{vFirst}, {pWs} sc1\nL_np0:")
    PL, GL = 136, 152
    a(f"""s_lshl_b32 s8, {sP}, 14
v_lshlrev_b32 v10, 4, v0
v_add_u32 v11, {WS_G}, v10
v_add_u32 v10, s8, v10""")
    table_write()
    a(f"""v_add_u32 v12, 4096, v10
v_add_u32 v13, 8192, v10
v_add_u32 v14, 12288, v10
v_add_u32 v15, 4096, v11""")
    ps("pollstart", "T")
    a(f"s_cmp_lg_u32 {sW}, 0\ns_cbranch_scc1 L_nopoll")
    a(f"s_mov_b32 {sSpin}, 0\ns_mov_b32 s9, 0\nL_poll:\ns_waitcnt vmcnt(0)\nv_cmp_eq_u32 vcc, {sNon}, v19\ns_or_b32 s9, s9, vcc_lo\ns_cmp_eq_u32 s9, -1\ns_cbranch_scc1 L_polled")
    if o["sleep"]: a(f"s_sleep {o['sleep']}")
    a(f"s_add_u32 {sSpin}, {sSpin}, 1")
    if o["fastflag"]:
        a(f"s_and_b32 s8, {sSpin}, {o['bper']}\ns_cbranch_scc0 L_pollb\nglobal_load_dword v19, v18, {pWs} sc1\ns_branch L_poll\nL_pollb:")
    a(f"global_load_dword v19, v25, {pWs} sc1\ns_bitcmp0_b32 {sSpin}, 17\ns_cbranch_scc1 L_poll\nL_polled:")
    arrive(F_POLL)
    a(f"s_branch L_go\nL_nopoll:\nv_mov_b32 v6, {FL0}")
    wait_set(F_POLL, 6, 7)
    a("L_go:")
    ps("polled", "T")
    for i, v in enumerate((10, 12, 13, 14)): a(f"global_load_dwordx4 {vr(PL+4*i,4)}, v{v}, {pWs} sc1")
    for i, v in enumerate((11, 15)): a(f"global_load_dwordx4 {vr(GL+4*i,4)}, v{v}, {pWs} sc1")
    hY, hU, hG, hO, hP = 20, 21, 22, 23, 24
    a(f"""v_and_b32 v2, 3, v0
v_mul_u32_u24 v16, {USTR_PH}, v2
v_bfe_u32 v2, v0, 3, 2
v_mul_u32_u24 v3, {USTR}, v2
v_add_u32 v16, v16, v3
v_bfe_u32 v2, v0, 2, 1
v_lshlrev_b32 v2, 4, v2
v_lshrrev_b32 v3, 5, v0
v_lshl_add_u32 v2, v3, 5, v2
v_sub_u32 v16, v16, v2
v_add_u32 v16, {U0 + 1008 - 768}, v16
v_lshlrev_b32 v17, 4, v0
v_add_u32 v17, {G0}, v17
s_lshl_b32 s8, {sW}, 8
v_lshlrev_b32 v2, 2, v1
v_add_u32 v2, s8, v2
v_add_u32 v{hY}, {Y0}, v2
v_add_u32 v{hG}, {G0}, v2
v_and_b32 v2, 3, v1
v_mul_u32_u24 v3, {USTR_PH}, v2
v_lshrrev_b32 v2, 2, v1
v_lshlrev_b32 v2, 1, v2
v_sub_u32 v3, v3, v2
s_lshl_b32 s9, {sW}, 5
s_sub_u32 s9, {U0 + 1022}, s9
v_add_u32 v{hU}, s9, v3
s_lshl_b32 s9, {sW}, 6
v_add_u32 v2, s9, v1
v_mul_u32_u24 v{hO}, 896, v2
s_lshl_b32 s9, {sP}, 2
v_add_u32 v{hO}, s9, v{hO}
v_mov_b32 v30, 0
v_mov_b32 v31, 0""")
    for i in range(4): a(f"ds_write_b128 v16, {vr(PL+4*i,4)} offset:{256*(3-i)}")
    arrive(F_U)
    ps("payload", "T")
    a(f"s_setprio {o['hprio']}")
    a(f"s_mov_b32 {sSpin}, 0\nL_gchk:\ns_waitcnt vmcnt(0)")
    a(f"v_cmp_ne_u32 vcc, {sNon}, v{GL+1}\nv_cmp_ne_u32 s[8:9], {sNon}, v{GL+3}\nv_cmp_ne_u32 s[12:13], {sNon}, v{GL+5}\nv_cmp_ne_u32 s[14:15], {sNon}, v{GL+7}")
    a("s_or_b64 s[8:9], s[8:9], vcc\ns_or_b64 s[12:13], s[12:13], s[14:15]\ns_or_b64 s[8:9], s[8:9], s[12:13]\ns_cbranch_scc0 L_gok")
    a("s_sleep 4")
    for i, v in enumerate((11, 15)): a(f"global_load_dwordx4 {vr(GL+4*i,4)}, v{v}, {pWs} sc1")
    a(f"s_add_u32 {sSpin}, {sSpin}, 1\ns_bitcmp0_b32 {sSpin}, 16\ns_cbranch_scc1 L_gchk\ns_waitcnt vmcnt(0)\nL_gok:")
    for i in range(2):
        g = GL + 4*i
        a(f"v_and_b32 v{g+3}, {sHI}, v{g+2}\nv_lshlrev_b32 v{g+2}, 16, v{g+2}\nv_and_b32 v{g+1}, {sHI}, v{g}\nv_lshlrev_b32 v{g}, 16, v{g}")
        a(f"ds_write_b128 v17, {vr(g,4)} offset:{4096*i}")
    arrive(F_G)
    wait_set(F_G, vL4, 7, slp=1)
    ps("gok", "T")
    a(f"s_add_u32 s9, {sW}, 1\ns_mov_b32 s10, 0")
    a(f"L_help:\ns_mov_b32 {sSpin}, 0\nL_hwait:\nds_read_b32 v3, v{vL4} offset:{F_PR - FL0}\ns_waitcnt lgkmcnt(0)\nv_cmp_gt_u32 vcc, s9, v3\ns_cbranch_vccz L_hgo")
    if o["lsl"]: a(f"s_sleep {o['lsl']}")
    a(f"s_add_u32 {sSpin}, {sSpin}, 1\ns_bitcmp0_b32 {sSpin}, 19\ns_cbranch_scc1 L_hwait\nL_hgo:")
    a(f"""ds_read_b32 v28, v{hY} offset:{2*YSTR}
ds_read_b32 v29, v{hY} offset:{3*YSTR}
ds_read_u16_d16_hi v30, v{hU}
ds_read_u16_d16_hi v31, v{hU} offset:{USTR}
ds_read_b32 v26, v{hY}
ds_read_b32 v27, v{hY} offset:{YSTR}
ds_read_b32 v25, v{hG}
v_add_u32 v{hY}, 1024, v{hY}
v_add_u32 v{hG}, 1024, v{hG}
v_subrev_u32 v{hU}, 128, v{hU}
s_add_u32 s9, s9, 4
s_add_u32 s10, s10, 1
s_waitcnt lgkmcnt(0)
v_mul_f32 v28, v28, v30
v_mul_f32 v29, v29, v31
v_sub_f32 v26, v26, v28
v_sub_f32 v27, v27, v29
v_fmac_f32 v28, v25, v26
v_fmac_f32 v29, v25, v27
v_cvt_pk_bf16_f32 v32, v28, v29
global_store_dword v{hO}, v32, {pOut}
v_add_u32 v{hO}, {256*896}, v{hO}
s_cmp_lt_u32 s10, 8
s_cbranch_scc1 L_help""")
    ps("last", "T")
    if o["stamps"]:
        a("s_waitcnt vmcnt(0)"); ps("end", "T")
    a("L_tend:")
    dump_stamps("T")
    a("L_end:\ns_endpgm\nL_codeend:")
    if o.get("noload"):
        import re
        a.lines = [("v_mov_b32_e64 v40, 0" if re.match(r"(buffer_load_dword|global_load_dword) v(1[6-9]|[23][0-9]|4[0-2]),", l) else l) for l in a.lines]
    body = a.finish()
    hdr = open("cdna_kernels/" + NAME + ".s.ref").read().split("; Override launch")[0]
    txt = hdr + f"""; One launch: 7 groups of 32 workgroups exchange transposed tiles through d_ws, each workgroup then
; owns two channels (S4 kernel table, two Toeplitz convolutions on MFMA, gated mix).
; @launch grid=(256,1,1) block=(512,1,1) lds={LDS_BYTES}
.amdgcn_target "amdgcn-amd-amdhsa--gfx950"
.text
.globl {NAME}_kernel
.p2align 8
.type {NAME}_kernel,@function
{NAME}_kernel:
{body}.section .rodata,"a"
.p2align 6
.amdhsa_kernel {NAME}_kernel
  .amdhsa_next_free_vgpr 256
  .amdhsa_next_free_sgpr 102
  .amdhsa_accum_offset 256
  .amdhsa_group_segment_fixed_size 0
  .amdhsa_kernarg_size 152
  .amdhsa_user_sgpr_count 2
  .amdhsa_user_sgpr_kernarg_segment_ptr 1
  .amdhsa_system_sgpr_workgroup_id_x 1
.end_amdhsa_kernel
"""
    return txt, a.nops

if __name__ == "__main__":
    out = sys.argv[1]
    kw = {k: int(v) for k, v in (x.split("=") for x in sys.argv[2:])}
    txt, nops = gen(**kw)
    open(out, "w").write(txt)
    print("wrote", out, "lines", txt.count("\n"), "nops", nops, "lds", LDS_BYTES)
```

```python
import sys, struct, math
from asmlib import Asm

NAME = "gated_mix__ssm_conv_s4__ssm_conv_h3__prompt"
DEFAULT = dict(stamps=0, sleep=1, tprio=1, hprio=0, mprio=0, mdrop=99, nacc=8, lsl=1, fastflag=1, probe=0, pwg=0,
               bper=15, prof=0, upre=3, pf=1, upos=1, nt=0, gmap=0x65743210, allpoll=1, addtid=1, skpos=1, gdelay=0, fsh=13, bsep=1)

FL0 = 0
F_SIG, F_POLL, F_U, F_P, F_G, F_PR = (FL0 + 32 * i for i in range(6))
SC0 = 256; SROW = 272; SSTR = 53 * SROW
KSTR = 4160; K0 = SC0 + 4 * SSTR
USTR_PH = 1088; USTR = 4 * USTR_PH; U0 = K0 + 4 * KSTR
G0 = U0 + 4 * USTR
Y0 = G0 + 8192; YSTR = 8192
LDS_BYTES = Y0 + 4 * YSTR
WS_G = 224 * 16384
WS_FL = WS_G + 8192
WS_STAMP = 64 << 20

def f2u(x): return struct.unpack("<I", struct.pack("<f", x))[0]
def f32(x): return struct.unpack("<f", struct.pack("<f", x))[0]
def hx(x): return "0x%08x" % (x & 0xffffffff)
def vr(a, n=1): return f"v{a}" if n == 1 else f"v[{a}:{a+n-1}]"

sG, sJ, sW, sP = "s4", "s5", "s6", "s7"
pU, pAre, pAim, pBre, pBim, pCre, pCim, pLdt = (f"s[{16+2*i}:{17+2*i}]" for i in range(8))
pDs, pQ, pK, pV, pSh, pSk, pSd, pGw = (f"s[{32+2*i}:{33+2*i}]" for i in range(8))
pOut, pDbg, pWs = "s[48:49]", "s[50:51]", "s[52:53]"
srdK = "s[56:59]"
sKq, sCh, sHf, sRnd = "s54", "s55", "s60", "s61"
sHI, sSel0, sSel1, sSpin = "s62", "s63", "s64", "s65"
sDt, sDs, sSd, sI2P, sNon = "s66", "s67", "s68", "s69", "s70"

PROF = {1: dict(T={"start": 0, "karg": 1, "k3": 2, "loaded": 3, "issued": 4, "acked": 5, "sigout": 6, "polled": 7},
                K={"start": 0, "params": 1, "anch": 2, "chain": 3, "rend": 4, "pwait": 5, "pdone": 6, "kready": 7}),
        3: dict(T={"start": 0, "loaded": 1, "fma": 2, "vok": 3, "kvst": 4, "uok": 5, "issued": 6, "acked": 7},
                K={"start": 0, "params": 1, "anch": 2, "chain": 3, "rend": 4, "pwait": 5, "pdone": 6, "kready": 7}),
        2: dict(T={"start": 0, "issued": 1, "acked": 2, "polled": 3, "payload": 4, "gok": 5, "last": 6, "end": 7},
                K={"start": 0, "params": 1, "rend": 2, "kop": 3, "uready": 4, "c8": 5, "c16": 6, "convend": 7})}

def gen(**kw):
    o = dict(DEFAULT); o.update(kw)
    if o["stamps"] and not o["prof"]: o["prof"] = 2
    a = Asm()
    NT = lambda bit: " nt" if o["nt"] & bit else ""
    lab = [0]
    sop = "s_memtime" if o["stamps"] == 3 else "s_memrealtime"
    def ps(name, role):
        if not o["stamps"]: return
        tab = PROF[o["prof"]]
        if name in tab[role]: a(f"{sop} s[{72+2*tab[role][name]}:{73+2*tab[role][name]}]")
    def dump_stamps(role):
        if not o["stamps"]: return
        a("s_waitcnt lgkmcnt(0)")
        if o["stamps"] == 5:
            i = o["probe"]
            if (role == "T") == (i < 100):
                i %= 100
                a(f"s_cmp_lg_u32 s2, {o['pwg']}\ns_cbranch_scc1 L_end\ns_sub_u32 s8, s{72+2*i}, s72\ns_mul_i32 s8, s8, 20\ns_min_u32 s8, s8, 100000\ns_memrealtime s[10:11]\ns_waitcnt lgkmcnt(0)\ns_add_u32 s8, s8, s10")
                a(f"L_pr{role}:\ns_sleep 4\ns_memrealtime s[10:11]\ns_waitcnt lgkmcnt(0)\ns_sub_u32 s9, s8, s10\ns_cmp_gt_i32 s9, 0\ns_cbranch_scc1 L_pr{role}")
            return
        a(f"s_lshl_b32 s8, s2, 3\ns_add_u32 s8, s8, {sW}\ns_lshl_b32 s8, s8, 6\ns_add_u32 s8, s8, {WS_STAMP}")
        a("s_mov_b64 exec, 1\nv_mov_b32 v2, s8")
        for i in range(8):
            a(f"v_mov_b32 v3, s{72+2*i}\nglobal_store_dword v2, v3, {pWs} offset:{4*i}")
        a("s_waitcnt vmcnt(0)")

    vMe, vL4, vOne, vDummy = 226, 228, 229, 57
    def sync_regs():
        a(f"s_lshl_b32 s14, {sKq}, 2\ns_add_u32 s14, s14, {FL0}\nv_mov_b32 v{vMe}, s14\nv_and_b32 v2, 3, v1\nv_lshlrev_b32 v2, 2, v2\nv_add_u32 v{vL4}, {FL0}, v2\nv_mov_b32 v{vOne}, 1")
    def arrive(ev): a(f"ds_write_b32 v{vMe}, v{vOne} offset:{ev - FL0}")
    def wait_set(ev, vidx, vt, slp=0):
        lab[0] += 1; L = f"L_w{lab[0]}"
        a(f"s_mov_b32 {sSpin}, 0\n{L}:\nds_read_b32 v{vt}, v{vidx} offset:{ev - FL0}")
        a(f"s_waitcnt lgkmcnt(0)\nv_cmp_ne_u32 vcc, 1, v{vt}\ns_cbranch_vccz {L}_ok")
        if slp: a(f"s_sleep {slp}")
        a(f"s_add_u32 {sSpin}, {sSpin}, 1\ns_bitcmp0_b32 {sSpin}, 19\ns_cbranch_scc1 {L}\n{L}_ok:")
    L2E = math.log2(math.e); L2Eh = f32(L2E); L2El = L2E - L2Eh
    I2P = 1.0 / (2.0 * math.pi); I2Ph = f32(I2P); I2Pl = I2P - I2Ph
    NON, vZ = 63, 4
    def nonce(tag, NON=63):
        a(f"s_mov_b32 {sSpin}, 0\nL_non{tag}:\nv_readfirstlane_b32 {sNon}, v{NON}\ns_cmp_lg_u32 {sNon}, 0\ns_cbranch_scc1 L_non{tag}_ok")
        a(f"s_sleep 4\nglobal_load_dword v{NON}, v{vZ}, {pDbg} sc1\ns_waitcnt vmcnt(0)\ns_add_u32 {sSpin}, {sSpin}, 1\ns_bitcmp0_b32 {sSpin}, 16\ns_cbranch_scc1 L_non{tag}\nL_non{tag}_ok:")

    a("s_cmp_ge_u32 s2, 256\ns_cbranch_scc1 L_end")
    ps("start", "T")
    a(f"""L_pc:
s_load_dwordx16 s[32:47], s[0:1], 64
s_load_dwordx16 s[16:31], s[0:1], 0
v_lshrrev_b32 v2, 6, v0
s_load_dwordx4 s[48:51], s[0:1], 128
s_load_dwordx2 s[52:53], s[0:1], 144
v_readfirstlane_b32 {sW}, v2
v_and_b32 v1, 63, v0
s_and_b32 s8, s2, 7
s_lshl_b32 s8, s8, 2
s_lshr_b32 {sG}, {hx(o["gmap"])}, s8
s_and_b32 {sG}, {sG}, 7
s_lshr_b32 {sJ}, s2, 3
s_cmp_eq_u32 {sG}, 7
s_cbranch_scc1 L_g7
v_lshlrev_b32 v5, 2, v1
v_mov_b32 v8, 0
ds_write_b32 v5, v8 offset:{FL0}
s_lshl_b32 {sP}, {sG}, 5
s_add_u32 {sP}, {sP}, {sJ}
s_and_b32 {sKq}, {sW}, 3
s_lshr_b32 {sCh}, {sKq}, 1
s_and_b32 {sHf}, {sW}, 1
s_cmp_ge_u32 {sW}, 4
s_cbranch_scc1 L_kpre""")

    vB, vB2, vKA, vSt = 10, 11, 12, 9
    U_, V_, K_, SH = 16, 24, 32, 44
    a(f"""s_lshl_b32 s8, {sCh}, 5
s_lshl_b32 s9, {sJ}, 6
s_add_u32 s8, s8, s9
s_mul_i32 s8, s8, 896
s_lshl_b32 s10, {sHf}, 6
s_lshl_b32 s11, {sG}, 7
s_add_u32 s10, s10, s11
s_add_u32 s8, s8, s10
v_lshrrev_b32 v2, 4, v1
v_and_b32 v3, 15, v1
v_mul_u32_u24 v4, {8*896}, v2
v_lshl_add_u32 v4, v3, 2, v4
v_add_u32 v{vB}, s8, v4
v_add_u32 v{vB2}, {4*896}, v{vB}
v_subrev_u32 v{vKA}, {3*896}, v{vB}
s_lshl_b32 s10, s10, 2
v_lshl_add_u32 v8, v3, 4, s10
s_mov_b32 s58, 1835008
s_mov_b32 s59, 0x20000
s_waitcnt lgkmcnt(0)
s_mov_b32 s56, s36
s_mov_b32 s57, s37
s_barrier""")
    ps("karg", "T")
    rows = [((vB, 896*i) if i < 4 else (vB2, 896*(i-4))) for i in range(8)]
    for i in range(3): a(f"buffer_load_dword v{K_+i}, v{vKA}, {srdK}, 0 offen offset:{896*i}{NT(1)}")
    for i, (b, off) in enumerate(rows): a(f"buffer_load_dword v{K_+3+i}, v{b}, {srdK}, 0 offen offset:{off}{NT(1)}")
    a(f"global_load_dwordx4 v[{SH}:{SH+3}], v8, {pSh}")
    for i, (b, off) in enumerate(rows): a(f"global_load_dword v{V_+i}, v{b}, {pV} offset:{off}{NT(1)}")
    for i, (b, off) in enumerate(rows): a(f"global_load_dword v{U_+i}, v{b}, {pU} offset:{off}{NT(2)}")
    if o["tprio"]: a(f"s_setprio {o['tprio']}")
    vFA, vFB, vF1 = 18+182, 19+182, 20+182
    vP0, vG0, vUw, vGw = 204, 208, 210, 211
    hY, hU, hG, hO = 212, 213, 214, 215
    a(f"""s_mov_b32 {sHI}, 0xffff0000
s_mov_b32 {sSel0}, 0x05040100
s_mov_b32 {sSel1}, 0x07060302
s_lshl_b32 s8, {sG}, 5
s_lshl_b32 s9, {sHf}, 4
s_add_u32 s8, s8, s9
s_lshl_b32 s8, s8, 14
s_lshl_b32 s9, {sJ}, 9
s_add_u32 s8, s8, s9
s_lshl_b32 s9, {sCh}, 6
s_add_u32 s8, s8, s9
v_lshlrev_b32 v{vSt}, 14, v3
v_lshl_add_u32 v{vSt}, v2, 4, v{vSt}
v_add_u32 v{vSt}, s8, v{vSt}
v_mov_b32 v{vZ}, 0""")
    sync_regs()
    a(f"""s_lshl_b32 s8, {sG}, {o["fsh"]}
s_add_u32 s8, s8, {WS_FL}
v_and_b32 v2, 31, v1
v_lshl_add_u32 v{vFA}, v2, 2, s8
s_lshl_b32 s9, {sJ}, 2
s_add_u32 s9, s8, s9
v_mov_b32 v{vF1}, s9
s_add_u32 s8, s8, 4096
v_lshl_add_u32 v{vFB}, v2, {7 if o["bsep"] else 2}, s8
s_lshl_b32 s9, {sJ}, {7 if o["bsep"] else 2}
s_add_u32 s9, s8, s9
v_mov_b32 v{vF1+1}, s9
s_lshl_b32 s8, {sP}, 14
v_lshlrev_b32 v2, 4, v0
v_add_u32 v{vG0}, {WS_G}, v2
v_add_u32 v{vG0+1}, {WS_G + 4096}, v2
v_add_u32 v{vGw}, {G0}, v2
v_add_u32 v{vP0}, s8, v2
v_add_u32 v{vP0+1}, 4096, v{vP0}
v_add_u32 v{vP0+2}, 8192, v{vP0}
v_add_u32 v{vP0+3}, 12288, v{vP0}
v_and_b32 v2, 3, v0
v_mul_u32_u24 v{vUw}, {USTR_PH}, v2
v_bfe_u32 v2, v0, 3, 2
v_mul_u32_u24 v3, {USTR}, v2
v_add_u32 v{vUw}, v{vUw}, v3
v_bfe_u32 v2, v0, 2, 1
v_lshlrev_b32 v2, 4, v2
v_lshrrev_b32 v3, 5, v0
v_lshl_add_u32 v2, v3, 5, v2
v_sub_u32 v{vUw}, v{vUw}, v2
v_add_u32 v{vUw}, {U0 + 1008 - 768}, v{vUw}
v_lshlrev_b32 v2, 2, v0
v_add_u32 v{hY}, {Y0}, v2
v_add_u32 v{hG}, {G0}, v2
v_mul_u32_u24 v{hO}, 896, v0
s_lshl_b32 s9, {sP}, 2
v_add_u32 v{hO}, s9, v{hO}
v_and_b32 v2, 3, v1
v_mul_u32_u24 v3, {USTR_PH}, v2
v_lshrrev_b32 v2, 2, v0
v_lshlrev_b32 v2, 1, v2
v_sub_u32 v3, v3, v2
v_add_u32 v{hU}, {U0 + 1022}, v3""")
    KU, WT, AC, VT, PC = 64, 86, 96, 112, 120
    a("s_waitcnt vmcnt(25)")
    ps("k3", "T")
    for i in range(3): a(f"v_lshlrev_b32 v{KU+2*i}, 16, v{K_+i}\nv_and_b32 v{KU+2*i+1}, {sHI}, v{K_+i}")
    a("s_waitcnt vmcnt(16)")
    for i in range(3, 11): a(f"v_lshlrev_b32 v{KU+2*i}, 16, v{K_+i}\nv_and_b32 v{KU+2*i+1}, {sHI}, v{K_+i}")
    for ch in range(2):
        for t in range(4):
            src = SH + 2*ch + t//2
            a(f"v_lshlrev_b32 v{WT+2*t+ch}, 16, v{src}" if t % 2 == 0 else f"v_and_b32 v{WT+2*t+ch}, {sHI}, v{src}")
    ps("loaded", "T")
    for t in range(4):
        for r in range(8):
            k = KU + 2*(r + 3 - t)
            if t == 0: a(f"v_pk_mul_f32 {vr(AC+2*r,2)}, {vr(k,2)}, {vr(WT,2)}")
            else: a(f"v_pk_fma_f32 {vr(AC+2*r,2)}, {vr(k,2)}, {vr(WT+2*t,2)}, {vr(AC+2*r,2)}")
    ps("fma", "T")
    a("s_waitcnt vmcnt(8)")
    ps("vok", "T")
    for r in range(8):
        t = VT + 2*(r % 4)
        a(f"v_lshlrev_b32 v{t}, 16, v{V_+r}\nv_and_b32 v{t+1}, {sHI}, v{V_+r}")
        a(f"v_pk_mul_f32 {vr(AC+2*r,2)}, {vr(AC+2*r,2)}, {vr(t,2)}")
    def transpose2(b0, b1):
        for st, pr in (("32", ((0, 2), (1, 3))), ("16", ((0, 1), (2, 3)))):
            for base in (b0, b1):
                for x, y in pr: a(f"v_permlane{st}_swap_b32 v{base+3-x}, v{base+3-y}")
    for ch in range(2):
        for rho in range(4):
            a(f"v_cvt_pk_bf16_f32 v{PC+8+4*ch+3-rho}, v{AC+2*(rho+4)+ch}, v{AC+2*rho+ch}")
    transpose2(PC + 8, PC + 12)
    for ch in range(2): a(f"global_store_dwordx4 v{vSt}, {vr(PC+8+4*ch,4)}, {pWs} offset:{(2+ch)*128} sc1")
    ps("kvst", "T")
    a("s_waitcnt vmcnt(2)")
    ps("uok", "T")
    for ch in range(2):
        for rho in range(4):
            a(f"v_perm_b32 v{PC+4*ch+3-rho}, v{U_+rho}, v{U_+rho+4}, {sSel0 if ch == 0 else sSel1}")
    transpose2(PC, PC + 4)
    for ch in range(2): a(f"global_store_dwordx4 v{vSt}, {vr(PC+4*ch,4)}, {pWs} offset:{ch*128} sc1")
    a(f"global_load_dword v{NON}, v{vZ}, {pDbg} sc1")
    ps("issued", "T")
    a("v_mov_b32 v30, 0\nv_mov_b32 v31, 0\ns_waitcnt vmcnt(0)")
    ps("acked", "T")
    a(f"ds_write_b32 v{vMe}, v{vOne} offset:{F_SIG - FL0}\nds_read_b32 v6, v{vL4} offset:{F_SIG - FL0}")
    nonce("a")
    a("s_waitcnt lgkmcnt(0)\nv_cmp_ne_u32 vcc, 1, v6\ns_cbranch_vccnz L_sigd\ns_mov_b64 exec, 1")
    if o["fastflag"]: a(f"global_store_dword v{vF1}, v{NON}, {pWs}")
    a(f"global_store_dword v{vF1+1}, v{NON}, {pWs} sc1\ns_mov_b64 exec, -1\nL_sigd:")
    ps("sigout", "T")
    if not o["allpoll"]: a(f"s_cmp_lg_u32 {sW}, 0\ns_cbranch_scc1 L_nopoll")
    a(f"s_mov_b32 {sSpin}, 0\ns_mov_b32 s9, 0\nL_poll:\ns_add_u32 {sSpin}, {sSpin}, 1")
    if o["fastflag"]:
        a(f"s_and_b32 s8, {sSpin}, {o['bper']}\ns_cbranch_scc0 L_pollb\nglobal_load_dword v19, v{vFA}, {pWs} sc1\ns_branch L_pollc\nL_pollb:")
    a(f"global_load_dword v19, v{vFB}, {pWs} sc1\nL_pollc:\ns_waitcnt vmcnt(0)\nv_cmp_eq_u32 vcc, {sNon}, v19\ns_or_b32 s9, s9, vcc_lo\ns_cmp_eq_u32 s9, -1\ns_cbranch_scc1 L_polled")
    if o["sleep"]: a(f"s_sleep {o['sleep']}")
    a(f"s_bitcmp0_b32 {sSpin}, 17\ns_cbranch_scc1 L_poll\nL_polled:")
    if not o["allpoll"]:
        arrive(F_POLL)
        a(f"s_branch L_go\nL_nopoll:\nv_mov_b32 v6, {FL0}")
        wait_set(F_POLL, 6, 7)
        a("L_go:")
    ps("polled", "T")
    PL, GL = 136, 152
    for i in range(4): a(f"global_load_dwordx4 {vr(PL+4*i,4)}, v{vP0+i}, {pWs} sc1")
    for i in range(2): a(f"global_load_dwordx4 {vr(GL+4*i,4)}, v{vG0+i}, {pWs} sc1")
    for i in range(4): a(f"ds_write_b128 v{vUw}, {vr(PL+4*i,4)} offset:{256*(3-i)}")
    arrive(F_U)
    ps("payload", "T")
    a(f"s_setprio {o['hprio']}")
    a(f"s_mov_b32 {sSpin}, 0\nL_gchk:\ns_waitcnt vmcnt(0)")
    a(f"v_cmp_ne_u32 vcc, {sNon}, v{GL+1}\nv_cmp_ne_u32 s[8:9], {sNon}, v{GL+3}\nv_cmp_ne_u32 s[12:13], {sNon}, v{GL+5}\nv_cmp_ne_u32 s[14:15], {sNon}, v{GL+7}")
    a("s_or_b64 s[8:9], s[8:9], vcc\ns_or_b64 s[12:13], s[12:13], s[14:15]\ns_or_b64 s[8:9], s[8:9], s[12:13]\ns_cbranch_scc0 L_gok")
    a("s_sleep 4")
    for i in range(2): a(f"global_load_dwordx4 {vr(GL+4*i,4)}, v{vG0+i}, {pWs} sc1")
    a(f"s_add_u32 {sSpin}, {sSpin}, 1\ns_bitcmp0_b32 {sSpin}, 16\ns_cbranch_scc1 L_gchk\ns_waitcnt vmcnt(0)\nL_gok:")
    for i in range(2):
        g = GL + 4*i
        a(f"v_and_b32 v{g+3}, {sHI}, v{g+2}\nv_lshlrev_b32 v{g+2}, 16, v{g+2}\nv_and_b32 v{g+1}, {sHI}, v{g}\nv_lshlrev_b32 v{g}, 16, v{g}")
        a(f"ds_write_b128 v{vGw}, {vr(g,4)} offset:{4096*i}")
    arrive(F_G)
    wait_set(F_G, vL4, 7)
    ps("gok", "T")
    a(f"s_add_u32 s9, {sW}, 1\ns_mov_b32 s10, 0")
    a(f"L_help:\ns_mov_b32 {sSpin}, 0\nL_hwait:\nds_read_b32 v3, v{vL4} offset:{F_PR - FL0}\ns_waitcnt lgkmcnt(0)\nv_cmp_gt_u32 vcc, s9, v3\ns_cbranch_vccz L_hgo")
    if o["lsl"]: a(f"s_sleep {o['lsl']}")
    a(f"s_add_u32 {sSpin}, {sSpin}, 1\ns_bitcmp0_b32 {sSpin}, 19\ns_cbranch_scc1 L_hwait\nL_hgo:")
    a(f"""ds_read_b32 v28, v{hY} offset:{2*YSTR}
ds_read_b32 v29, v{hY} offset:{3*YSTR}
ds_read_u16_d16_hi v30, v{hU}
ds_read_u16_d16_hi v31, v{hU} offset:{USTR}
ds_read_b32 v26, v{hY}
ds_read_b32 v27, v{hY} offset:{YSTR}
ds_read_b32 v25, v{hG}
v_add_u32 v{hY}, 1024, v{hY}
v_add_u32 v{hG}, 1024, v{hG}
v_subrev_u32 v{hU}, 128, v{hU}
s_add_u32 s9, s9, 4
s_add_u32 s10, s10, 1
s_waitcnt lgkmcnt(0)
v_mul_f32 v28, v28, v30
v_mul_f32 v29, v29, v31
v_sub_f32 v26, v26, v28
v_sub_f32 v27, v27, v29
v_fmac_f32 v28, v25, v26
v_fmac_f32 v29, v25, v27
v_cvt_pk_bf16_f32 v32, v28, v29
global_store_dword v{hO}, v32, {pOut}
v_add_u32 v{hO}, {256*896}, v{hO}
s_cmp_lt_u32 s10, 8
s_cbranch_scc1 L_help""")
    ps("last", "T")
    if o["stamps"]:
        a("s_waitcnt vmcnt(0)"); ps("end", "T")
    dump_stamps("T")
    a("s_endpgm")

    RAW, vPa, vSw, vRa, vRb, vPar = 200, 214, 218, 219, 220, 224
    a(f"""L_kpre:
s_lshl_b32 s11, {sP}, 1
s_add_u32 s11, s11, {sCh}
s_lshl_b32 s14, s11, 9
s_lshl_b32 s15, {sHf}, 8
s_add_u32 s14, s14, s15
v_lshl_add_u32 v{vPar}, v1, 2, s14
s_lshl_b32 s14, {sP}, 2
s_waitcnt lgkmcnt(0)""")
    for i, p in enumerate((pAre, pAim, pBre, pBim, pCre, pCim)): a(f"global_load_dword v{RAW+i}, v{vPar}, {p}")
    a(f"s_load_dword {sDt}, {pLdt}, s14\ns_load_dword {sDs}, {pDs}, s14\ns_load_dword {sSd}, {pSd}, s14")
    a(f"""s_barrier
s_mov_b32 {sHI}, 0xffff0000
s_mul_i32 s11, {sKq}, {SSTR}
s_add_u32 s11, s11, {SC0}
s_mov_b32 m0, s11
v_and_b32 v13, 31, v1
v_lshrrev_b32 v14, 5, v1
v_lshl_add_u32 v{vSw}, v1, 2, s11
v_mul_u32_u24 v15, {SROW}, v13
v_lshl_add_u32 v15, v14, 4, v15
v_add_u32 v{vRa}, s11, v15
v_add_u32 v{vRb}, {21*SROW}, v{vRa}
s_lshl_b32 s14, {sCh}, 4
s_sub_u32 s14, 16, s14
s_mov_b32 {sI2P}, {hx(f2u(I2Ph))}
s_mov_b32 {sRnd}, 0
s_waitcnt lgkmcnt(0)
s_lshl_b32 {sDt}, {sDt}, s14
s_and_b32 {sDt}, {sDt}, {sHI}
v_mov_b32 v13, {sDt}
v_mul_f32 v14, {hx(f2u(L2Eh))}, v13
v_mov_b32 v2, {hx(f2u(L2Eh))}
v_fma_f32 v15, v13, v2, -v14
v_fmac_f32 v15, {hx(f2u(L2El))}, v13
v_exp_f32 v14, v14
v_mul_f32 v15, {hx(f2u(math.log(2.0)))}, v15
v_fma_f32 v14, v14, v15, v14
v_cvt_pk_bf16_f32 v14, 0, v14
v_readfirstlane_b32 {sDt}, v14""")
    if o["pf"] or o["fastflag"]:
        a(f"s_cmp_lg_u32 {sKq}, 3\ns_cbranch_scc1 L_nopf")
        if o["fastflag"]: a(f"s_lshl_b32 s9, {sG}, {o['fsh']}\ns_add_u32 s9, s9, {WS_FL}\ns_load_dword s92, {pWs}, s9")
        if o["pf"]:
            a(f"s_getpc_b64 s[12:13]\nL_pc2:\ns_lshl_b32 s8, {sJ}, 9\ns_min_u32 s8, s8, L_codeend-L_pc-512\ns_sub_u32 s8, s8, L_pc2-L_pc\ns_ashr_i32 s9, s8, 31\ns_add_u32 s12, s12, s8\ns_addc_u32 s13, s13, s9")
            for i in range(4): a(f"s_load_dword s{93+i}, s[12:13], {128*i}")
        a("L_nopf:")
    D = 176
    for i in range(16): a(f"v_mov_b32 v{D+i}, 0")
    a("s_waitcnt vmcnt(0)")
    ps("params", "K")
    for i in range(6): a(f"v_lshlrev_b32 v{8+i}, 16, v{RAW+i}")
    SK = 24
    vSkW = 240
    a("L_round:")
    A2, TH, TL = 140, 141, 142
    Z1, Z2, Z4, Z8, Z256, W, X, Yc, Fc = 146, 148, 150, 152, 154, 156, 158, 160, 162
    PK = 166; OA = 64; OB = 80
    a(f"""v_mul_f32 v8, {sDt}, v8
v_mul_f32 v9, {sDt}, v9
v_mul_f32 v{A2}, {hx(f2u(L2Eh))}, v8
v_mul_f32 v{TH}, {sI2P}, v9
v_fma_f32 v{TL}, v9, {sI2P}, -v{TH}
v_fmac_f32 v{TL}, {hx(f2u(I2Pl))}, v9""")
    def cm(d, x, z):
        t = d if d != x else 14
        return (f"v_pk_mul_f32 {vr(t,2)}, {vr(x,2)}, {vr(z,2)} op_sel_hi:[0,1]",
                f"v_pk_fma_f32 {vr(d,2)}, {vr(x,2)}, {vr(z,2)}, {vr(t,2)} op_sel:[1,1,0] op_sel_hi:[1,0,1] neg_lo:[1,0,0]")
    def cmul(d, x, z):
        for t in cm(d, x, z): a(t)
    def swr(r, row): return f"ds_write_addtid_b32 v{r} offset:{row*SROW}" if o["addtid"] else f"ds_write_b32 v{vSw}, v{r} offset:{row*SROW}"
    anchors = ((1, Z1, 136), (8, Z8, 138), (256, Z256, 144))
    for e, Z, Mx in anchors:
        if e == 1: a(f"v_exp_f32 v{Mx}, v{A2}\nv_fract_f32 v{Mx+1}, v{TH}")
        else:
            c = hx(f2u(float(e)))
            a(f"v_mul_f32 v{Mx}, {c}, v{A2}\nv_mul_f32 v{Mx+1}, {c}, v{TH}\nv_exp_f32 v{Mx}, v{Mx}\nv_fract_f32 v{Mx+1}, v{Mx+1}")
    for e, Z, Mx in anchors:
        if e == 1: a(f"v_add_f32 v{Mx+1}, v{Mx+1}, v{TL}")
        else: a(f"v_fmac_f32 v{Mx+1}, {hx(f2u(float(e)))}, v{TL}")
    for e, Z, Mx in anchors: a(f"v_cos_f32 v{Z}, v{Mx+1}\nv_sin_f32 v{Z+1}, v{Mx+1}")
    cmul(W, 12, 10)
    for e, Z, Mx in anchors: a(f"v_pk_mul_f32 {vr(Z,2)}, {vr(Z,2)}, {vr(Mx,2)} op_sel_hi:[1,0]")
    a(f"v_mul_f32 v{W}, {sDt}, v{W}\nv_mul_f32 v{W+1}, {sDt}, v{W+1}")
    cmul(Z2, Z1, Z1)
    a(f"v_mov_b32 v{PK+7}, 0x3f80\n{swr(PK+7, 21)}")
    cmul(Z4, Z2, Z2)
    ps("anch", "K")
    pk = [0]
    def cvt(row, src, neg):
        r = PK + (pk[0] % 8); pk[0] += 1
        return f"v_cvt_pk_bf16_f32 v{r}, v{src}, {'-' if neg else ''}v{src+1}", swr(r, row)
    steps = [(None, W, None, 0)]; prev = W
    for r in range(1, 8):
        d = X if prev != X else Yc
        steps.append((d, prev, Z1, r)); prev = d
    steps.append((W, W, Z256, 8)); prev = W
    for r in range(9, 12):
        d = X if prev != X else Yc
        steps.append((d, prev, Z2, r)); prev = d
    steps += [(W, W, Z256, 12), (X, W, Z4, 13), (W, W, Z256, 14), (X, W, Z4, 15)]
    steps += [(W, W, Z256, 16 + i) for i in range(5)]
    fsteps = [(None, Z8, None, 22)]; prev = Z8
    for jx in range(2, 22):
        d = Fc if prev != Fc else Fc + 2
        fsteps.append((d, prev, Z8, 21 + jx)); prev = d
    last21 = prev; last20 = Fc if prev != Fc else Fc + 2
    steps.append((Z2, Z8, Z8, None))
    pa, pb = last20, last21
    tail = []
    for jx in range(22, 32, 2):
        da = Z1 if pa != Z1 else X; db = Z4 if pb != Z4 else Yc
        tail.append(((da, pa, Z2, 21 + jx), (db, pb, Z2, 22 + jx))); pa, pb = da, db
    seq = []
    for n in range(max(len(steps), len(fsteps))):
        seq.append([(lst[n], neg) for lst, neg in ((fsteps, False), (steps, True)) if n < len(lst)])
    seq += [[(x, False), (y, False)] for x, y in tail]
    late = []
    for n, grp in enumerate(seq):
        m0, m1, cv, wr = [], [], [], []
        for (d, x, z, row), neg in grp:
            if d is not None:
                p, q = cm(d, x, z); m0.append(p); m1.append(q); x = d
            if row is not None:
                c_, w_ = cvt(row, x, neg); cv.append(c_); wr.append(w_)
        for t in m0 + late[:1] + m1 + late[1:] + cv: a(t)
        late = wr
    for t in late: a(t)
    ps("chain", "K")
    def kmf(q): a(f"v_mfma_f32_32x32x16_bf16 {vr(D,16)}, {vr(OA+4*(q%4),4)}, {vr(OB+4*(q%4),4)}, {vr(D,16)}")
    for s in range(8):
        a(f"ds_read_b128 {vr(OA+4*(s%4),4)}, v{vRa} offset:{32*s}\nds_read_b128 {vr(OB+4*(s%4),4)}, v{vRb} offset:{32*s}")
        if s >= 3: kmf(s - 3)
    for q in (5, 6, 7): kmf(q)
    a(f"s_cmp_lg_u32 {sRnd}, 0\ns_cbranch_scc1 L_rdone\ns_mov_b32 {sRnd}, 1")
    for i in range(6): a(f"v_and_b32 v{8+i}, {sHI}, v{RAW+i}")
    a(f"""s_lshl_b32 s14, {sP}, 1
s_add_u32 s14, s14, {sHf}
s_lshl_b32 s14, s14, 12
v_lshl_add_u32 v{vSkW}, v1, 4, s14
s_cmp_lt_u32 {sKq}, 2
s_cbranch_scc1 L_round""")
    def sk_loads():
        for i in range(4): a(f"global_load_dwordx4 {vr(SK+4*i,4)}, v{vSkW}, {pSk} offset:{1024*i}{NT(4)}")
    if o["skpos"] == 1: sk_loads()
    a("s_branch L_round\nL_rdone:")
    ps("rend", "K")
    if o["skpos"] == 2:
        a(f"s_cmp_lt_u32 {sKq}, 2\ns_cbranch_scc1 L_nosk"); sk_loads(); a("L_nosk:")
    vKa, vUa, vYa, vPr = 2, 3, 4, 5
    vE8, vE16, vW8, vW16, vW32, vFold = 234, 235, 236, 237, 238, 239
    a(f"""s_mul_i32 s11, {sKq}, {SSTR}
s_add_u32 s11, s11, {SC0}
v_and_b32 v13, 31, v1
v_lshrrev_b32 v14, 5, v1
v_lshlrev_b32 v15, 5, v13
v_lshl_add_u32 v15, v14, 4, v15
v_add_u32 v{vPa}, s11, v15
v_cmp_eq_u32 vcc, 0, v14
v_lshlrev_b32 v15, 4, v13
v_add_u32 v15, {4*256}, v15
v_lshlrev_b32 v2, 3, v13
v_add_u32 v2, {4*384}, v2
v_cndmask_b32 v3, v2, v15, vcc
v_add_u32 v{vPa+1}, s11, v3
v_add_u32 v15, 8, v15
v_add_u32 v2, 256, v2
v_cndmask_b32 v3, v2, v15, vcc
v_add_u32 v{vPa+2}, s11, v3
v_lshlrev_b32 v15, 2, v13
v_lshl_add_u32 v15, v14, 9, v15
v_add_u32 v15, {4*512}, v15
v_add_u32 v{vPa+3}, s11, v15
s_lshl_b32 s14, {sCh}, 4
s_sub_u32 s14, 16, s14
s_lshl_b32 {sDs}, {sDs}, s14
s_and_b32 {sDs}, {sDs}, {sHI}
s_cmp_eq_u32 {sHf}, 0
s_cselect_b32 {sDs}, {sDs}, 0
v_cmp_eq_u32 vcc, 0, v1
v_mov_b32 v7, {sDs}
s_lshl_b32 s14, {sHf}, 4
s_sub_u32 s14, 16, s14
s_lshl_b32 {sSd}, {sSd}, s14
s_and_b32 {sSd}, {sSd}, {sHI}
v_mov_b32 v8, {sSd}
v_cndmask_b32 v7, 0, v7, vcc
v_cndmask_b32 v{vFold}, 0, v8, vcc
v_add_f32 v{D}, v{D}, v7""")
    sync_regs()
    a(f"ds_write_b128 v{vPa}, {vr(D,4)}\nds_write_b64 v{vPa+1}, {vr(D+4,2)}\nds_write_b64 v{vPa+2}, {vr(D+6,2)}")
    for r in range(4): a(f"ds_write_b32 v{vPa+3}, v{D+8+r} offset:{128*r}")
    arrive(F_P)
    a(f"""s_mul_i32 s13, {sKq}, {KSTR}
s_add_u32 s13, s13, {K0 + 32}
v_lshl_add_u32 v{vW8}, v1, 3, s13
v_lshl_add_u32 v{vW16}, v1, 4, s13
v_lshl_add_u32 v{vW32}, v1, 5, s13
v_mov_b32 v8, 0
v_mov_b32 v9, 0
v_mov_b32 v10, 0
v_mov_b32 v11, 0
s_sub_u32 s14, s13, 32
v_and_b32 v6, 1, v1
v_lshl_add_u32 v6, v6, 4, s14
ds_write_b128 v6, v[8:11]
s_cmp_lt_u32 {sKq}, 2
s_cbranch_scc1 L_aunit
s_waitcnt vmcnt(0)
v_lshlrev_b32 v12, 16, v{SK}
v_add_f32 v12, v12, v{vFold}
v_cvt_pk_bf16_f32 v12, v12, v12
v_mov_b32 v13, 0xffff
v_bfi_b32 v{SK}, v13, v12, v{SK}""")
    for i in range(4): a(f"ds_write_b128 v{vW16}, {vr(SK+4*i,4)} offset:{1024*i}")
    a(f"""s_branch L_kop
L_aunit:
s_mul_i32 s14, {sHf}, {2*SSTR}
s_add_u32 s14, s14, {SC0}
v_lshl_add_u32 v{vE8}, v1, 3, s14
v_lshl_add_u32 v{vE16}, v1, 4, s14""")
    def gather(dst, n, vaddr, off):
        for q in range(2):
            r = dst + 4*q
            if n == 4: a(f"ds_read_b128 {vr(r,4)}, v{vaddr} offset:{off + q*SSTR}")
            else: a(f"ds_read_b64 {vr(r,2)}, v{vaddr} offset:{off + q*SSTR}\nds_read_b32 v{r+2}, v{vaddr} offset:{off + q*SSTR + 8}")
    def total(dst, n):
        for i in range(n): a(f"v_add_f32 v{dst+i}, v{dst+i}, v{dst+4+i}")
    def pack(dst, src, pat):
        for i, (x, y) in enumerate(pat): a(f"v_cvt_pk_bf16_f32 v{dst+i}, v{src+x}, v{src+y}")
    ps("pwait", "K")
    wait_set(F_P, vL4, 2)
    ps("pdone", "K")
    gather(64, 4, vE16, 0); gather(72, 3, vE8, 4*256); gather(80, 3, vE8, 4*384); gather(88, 3, vE8, 4*512)
    total(64, 4); pack(128, 64, ((0, 1), (2, 3)))
    a(f"ds_write_b64 v{vW8}, v[128:129]")
    total(72, 3); pack(130, 72, ((0, 0), (1, 2)))
    a(f"ds_write_b64 v{vW8}, v[130:131] offset:{2*256}")
    total(80, 3); pack(132, 80, ((0, 0), (0, 1), (1, 1), (2, 2)))
    a(f"ds_write_b128 v{vW16}, v[132:135] offset:{2*512}")
    total(88, 3); pack(136, 88, ((0, 0), (0, 0), (0, 1), (1, 1), (1, 1), (1, 1), (2, 2), (2, 2)))
    a(f"ds_write_b128 v{vW32}, v[136:139] offset:{2*1024}\nds_write_b128 v{vW32}, v[140:143] offset:{2*1024+16}")
    a("L_kop:")
    ps("kready", "K")
    KOP, UOP, ACC, TR, ZR = 192, 64, 24, 8, 58
    a(f"""v_and_b32 v6, 3, v1
v_bfe_u32 v7, v1, 2, 2
v_lshrrev_b32 v8, 4, v1
v_add_u32 v9, v6, v7
v_lshlrev_b32 v9, 3, v9
v_lshl_add_u32 v9, v8, 6, v9
s_mul_i32 s14, {sKq}, {KSTR}
s_add_u32 s14, s14, {K0 + 8}
v_add_u32 v{vKa}, s14, v9
v_mov_b32 v6, v{vL4}""")
    for mu in range(16):
        a(f"ds_read_b64_tr_b16 {vr(KOP+4*mu,2)}, v{vKa} offset:{256*mu}\nds_read_b64_tr_b16 {vr(KOP+4*mu+2,2)}, v{vKa} offset:{256*mu+32}")
    a(f"""v_and_b32 v10, 3, v1
v_mul_u32_u24 v9, {USTR_PH}, v10
v_lshl_add_u32 v9, v8, 4, v9
v_lshlrev_b32 v7, 3, v7
v_sub_u32 v9, v9, v7
s_mul_i32 s14, {sKq}, {USTR}
s_add_u32 s14, s14, {U0 + 1016 - 32*31}
v_add_u32 v{vUa}, s14, v9
v_lshrrev_b32 v9, 2, v1
v_and_b32 v9, 3, v9
v_mul_u32_u24 v9, {USTR_PH}, v9
v_lshl_add_u32 v9, v10, 4, v9
s_mul_i32 s14, {sKq}, {USTR}
s_add_u32 s14, s14, {U0 + 1024}
v_add_u32 v9, s14, v9
v_mov_b32 v12, 0
v_mov_b32 v13, 0
v_mov_b32 v14, 0
v_mov_b32 v15, 0
ds_write_b128 v9, v[12:15]
s_lshl_b32 s14, {sKq}, 13
s_add_u32 s14, s14, {Y0}
v_lshl_add_u32 v{vYa}, v1, 2, s14
s_lshl_b32 s14, {sKq}, 2
s_add_u32 s14, s14, {F_PR}
v_mov_b32 v{vPr}, s14""")
    for i in range(3): a(f"v_mov_b32 v{ZR+i}, 0")
    ps("kop", "K")
    wait_set(F_U, 6, 7)
    if o["mprio"]: a(f"s_setprio {o['mprio']}")
    ps("uready", "K")
    def uload(nu):
        off = 32 * (31 - nu)
        return [f"ds_read_b64 {vr(UOP+4*nu,2)}, v{vUa} offset:{off}", f"ds_read_b64 {vr(UOP+4*nu+2,2)}, v{vUa} offset:{off+8}"]
    NACC = o["nacc"]; NTR = 4; UP = o["upre"]
    dp = "row_mask:0xf bank_mask:0xf"
    pos = [0]
    def em(t):
        a(t); pos[0] += 1
    done_at = {}
    lastflag = [None]
    def epi(c):
        A = ACC + 4 * (c % NACC)
        cur = TR + 4 * (c % NTR); prv = TR + 4 * ((c - 1) % NTR)
        pT3 = (ACC + 4 * ((c - 1) % NACC) + 3) if c > 0 else ZR
        pT2 = prv if c > 0 else ZR + 1
        pT1 = prv + 1 if c > 0 else ZR + 2
        L = [((c, 0), f"v_add_f32_dpp v{cur}, v{pT3}, v{A+2} wave_ror:1 {dp}", 1, [(("m", c), 9), ((c - NTR + 1, 1), 1), ((c - NTR + 1, 3), 1), ((c - NTR, 6), 1)]),
             ((c, 2), f"v_add_f32_dpp v{cur}, v{A+3}, v{A+2} wave_shr:1 {dp}", 1, [((c, 0), 1)]),
             ((c, 1), f"v_add_f32_dpp v{cur+1}, v{pT2}, v{A+1} wave_ror:1 {dp}", 1, [((c, 2), 1), ((c - 1, 2), 3)]),
             ((c, 4), f"v_add_f32_dpp v{cur+1}, v{cur}, v{A+1} wave_shr:1 {dp}", 1, [((c, 1), 1), ((c, 2), 3)]),
             ((c, 3), f"v_add_f32_dpp v{cur+2}, v{pT1}, v{A} wave_ror:1 {dp}", 1, [((c, 4), 1), ((c - 1, 4), 3)]),
             ((c, 5), f"v_add_f32_dpp v{cur+2}, v{cur+1}, v{A} wave_shr:1 {dp}", 1, [((c, 3), 1), ((c, 4), 3)]),
             ((c, 6), f"ds_write_b32 v{vYa}, v{cur+2} offset:{256*c}", 2, [((c, 5), 2), ((c - 1, 6), 1)])]
        if c % 2 == 1 or c >= 28:
            dep = [((c, 5), 1)] + ([(lastflag[0], 1)] if lastflag[0] else [])
            L += [((c, 7), f"v_mov_b32_e64 v61, {c+1}", 1, dep), ((c, 8), f"ds_write_b32 v{vPr}, v61", 2, [((c, 7), 2), ((c, 6), 1)])]
            lastflag[0] = (c, 8)
        return L
    def ready(item):
        for key, dist in item[3]:
            if key[0] != "m" and key[0] < 0: continue
            if key not in done_at or pos[0] - done_at[key] < dist: return False
        return True
    queue = []
    def fill(slots):
        while slots > 0:
            pick = None
            for n, it in enumerate(queue[:24]):
                if it[2] <= slots and ready(it): pick = n; break
            if pick is None: return
            it = queue.pop(pick); done_at[it[0]] = pos[0]; em(it[1]); slots -= it[2]
    def drain(pred):
        while any(pred(it) for it in queue):
            n0 = len(queue); fill(2)
            if len(queue) == n0: em("s_nop 0")
    for nu in range(UP):
        for t in uload(nu): em(t)
    for c in range(32):
        nm = c // 2 + 1
        if c in (8, 16, 24): ps(f"c{c}", "K")
        if c == o["mdrop"]: em("s_setprio 0")
        if c + UP < 32:
            tl = uload(c + UP)
            queue[0:0] = [(("u", c, 0), tl[0], 1, []), (("u", c, 1), tl[1], 1, [])]
        old = c - NACC
        if old >= 0: drain(lambda it: it[0][0] == old or it[0] == (old + 1, 0))
        if c >= 1: drain(lambda it: it[0][0] == "u" and it[0][1] <= c - UP + 1)
        for n, mu in enumerate(range(nm - 1, -1, -1)):
            A = ACC + 4 * (c % NACC)
            em(f"v_mfma_f32_16x16x32_bf16 {vr(A,4)}, {vr(UOP+4*(c-2*mu),4)}, {vr(KOP+4*mu,4)}, {'0' if n == 0 else vr(A,4)}")
            if n == nm - 1:
                done_at[("m", c)] = pos[0] - 1; queue.extend(epi(c))
            fill(2)
    drain(lambda it: True)
    ps("convend", "K")
    dump_stamps("K")
    a("s_endpgm")

    GU, GW = 8, 40
    a(f"""L_g7:
s_lshl_b32 s8, {sJ}, 3
s_add_u32 s8, s8, {sW}
s_lshl_b32 s9, s8, 3
v_lshrrev_b32 v7, 3, v1
v_add_u32 v7, s9, v7
v_and_b32 v6, 7, v1
v_mul_u32_u24 v6, 112, v6
v_mul_u32_u24 v7, 896, v7
v_add_u32 v7, v7, v6
s_lshl_b32 s9, s8, 5
s_add_u32 s9, s9, {WS_G}
v_lshrrev_b32 v5, 4, v1
v_lshl_add_u32 v5, v5, 3, s9
v_mov_b32 v{vZ}, 0
s_waitcnt lgkmcnt(0)
s_cmp_lg_u32 s8, 0
s_cbranch_scc1 L_nonon
s_memrealtime s[12:13]
s_mov_b64 exec, 1
v_mov_b32 v3, 0
s_waitcnt lgkmcnt(0)
s_or_b32 s12, s12, 1
v_mov_b32 v2, s12
global_atomic_cmpswap v{vZ}, v[2:3], {pDbg} sc1
s_waitcnt vmcnt(0)
s_mov_b64 exec, -1
L_nonon:""")
    for i in range(7): a(f"global_load_dwordx4 {vr(GW+4*i,4)}, v6, {pGw} offset:{16*i}")
    a(f"global_load_dword v70, v{vZ}, {pDbg} sc1\ns_waitcnt vmcnt(0)")
    nonce("g", 70)
    if o["gdelay"]: a(f"s_sleep {o['gdelay']}")
    for i in range(7): a(f"global_load_dwordx4 {vr(GU+4*i,4)}, v7, {pU} offset:{16*i}")
    a("v_mov_b32 v2, 0\nv_mov_b32 v3, 0")
    for i in range(0, 28, 2): a(f"v_dot2_f32_bf16 v2, v{GU+i}, v{GW+i}, v2\nv_dot2_f32_bf16 v3, v{GU+i+1}, v{GW+i+1}, v3")
    a("v_add_f32 v2, v2, v3")
    for sh in (1, 2, 4): a(f"v_add_f32_dpp v2, v2, v2 row_shr:{sh} row_mask:0xf bank_mask:0xf bound_ctrl:0")
    a(f"v_cvt_pk_bf16_f32 v2, 0, v2\nv_mul_f32 v2, {hx(f2u(-L2E))}, v2\nv_exp_f32 v2, v2\nv_add_f32 v2, 1.0, v2\nv_rcp_f32 v2, v2")
    a("v_mov_b32_dpp v3, v2 row_shr:8 row_mask:0xf bank_mask:0xf bound_ctrl:0\nv_cvt_pk_bf16_f32 v2, v3, v2")
    a(f"v_mov_b32 v3, {sNon}\ns_mov_b32 exec_lo, 0x80008000\ns_mov_b32 exec_hi, 0x80008000\nglobal_store_dwordx2 v5, v[2:3], {pWs} sc1")
    a("L_end:\ns_endpgm\nL_codeend:")
    body = a.finish()
    hdr = open("cdna_kernels/" + NAME + ".s.ref").read().split("; Override launch")[0]
    txt = hdr + f"""; One launch: 7 groups of 32 workgroups exchange transposed tiles through d_ws, each workgroup then
; owns two channels (S4 kernel table, two Toeplitz convolutions on MFMA, gated mix); an eighth group computes the gate.
; @launch grid=(256,1,1) block=(512,1,1) lds={LDS_BYTES}
.amdgcn_target "amdgcn-amd-amdhsa--gfx950"
.text
.globl {NAME}_kernel
.p2align 8
.type {NAME}_kernel,@function
{NAME}_kernel:
{body}.section .rodata,"a"
.p2align 6
.amdhsa_kernel {NAME}_kernel
  .amdhsa_next_free_vgpr 256
  .amdhsa_next_free_sgpr 102
  .amdhsa_accum_offset 256
  .amdhsa_group_segment_fixed_size 0
  .amdhsa_kernarg_size 152
  .amdhsa_user_sgpr_count 2
  .amdhsa_user_sgpr_kernarg_segment_ptr 1
  .amdhsa_system_sgpr_workgroup_id_x 1
.end_amdhsa_kernel
"""
    return txt, a.nops

if __name__ == "__main__":
    out = sys.argv[1]
    kw = {k: int(v, 0) for k, v in (x.split("=") for x in sys.argv[2:])}
    txt, nops = gen(**kw)
    open(out, "w").write(txt)
    print("wrote", out, "lines", txt.count("\n"), "nops", nops, "lds", LDS_BYTES)
```

```python
import re

TRANS = ("v_exp_f32", "v_log_f32", "v_rcp_f32", "v_rsq_f32", "v_sqrt_f32", "v_sin_f32", "v_cos_f32")
REG = re.compile(r"^-?\|?(v|s|a)(\d+)\|?$")
RNG = re.compile(r"^-?(v|s|a)\[(\d+):(\d+)\]$")

def regs_of(tok):
    tok = tok.strip()
    m = REG.match(tok)
    if m: return {(m.group(1), int(m.group(2)))}
    m = RNG.match(tok)
    if m: return {(m.group(1), i) for i in range(int(m.group(2)), int(m.group(3)) + 1)}
    if tok in ("vcc", "vcc_lo", "vcc_hi"): return {("s", "vcc")}
    if tok == "exec": return {("s", "exec")}
    if tok == "m0": return {("s", "m0")}
    return set()

class Ins:
    def __init__(self, text):
        self.raw = text.endswith(";raw")
        if self.raw: text = text[:-4].rstrip()
        self.text = text
        t = text.split(";")[0].strip()
        self.label = t.endswith(":") and " " not in t
        self.directive = t.startswith(".")
        self.op = "" if (self.label or self.directive or not t) else t.split()[0]
        rest = t[len(self.op):].strip() if self.op else ""
        parts = [p.strip() for p in rest.split(",")] if rest else []
        ops = []
        depth = 0; cur = ""
        for ch in rest:
            if ch == "[": depth += 1
            if ch == "]": depth -= 1
            if ch == "," and depth == 0: ops.append(cur.strip()); cur = ""
            else: cur += ch
        if cur.strip(): ops.append(cur.strip())
        self.mods = ""
        if ops:
            last = ops[-1].split(None, 1)
            ops[-1] = last[0]
            self.mods = last[1] if len(last) > 1 else ""
        self.ops = ops
        op = self.op
        self.is_mfma = op.startswith("v_mfma")
        self.is_valu = op.startswith("v_") and not self.is_mfma
        self.is_ds = op.startswith("ds_")
        self.is_vmem = op.startswith(("global_", "buffer_"))
        self.is_salu = op.startswith("s_")
        self.is_smem = op.startswith(("s_load", "s_memtime", "s_memrealtime"))
        self.is_dpp = "_dpp" in op
        self.is_trans = op.replace("_e32", "") in TRANS
        self.is_dot = op.startswith("v_dot")
        self.is_perml = op.startswith("v_permlane")
        self.is_rdl = op.startswith(("v_readlane", "v_readfirstlane"))
        self.passes = 8 if "32x32x16" in op else 4
        R = [regs_of(o) for o in ops]
        d = set(); s = set()
        self.load_dst = set(); self.store_data = set(); self.srcC = set(); self.srcAB = set()
        if self.is_mfma:
            d = R[0]; self.srcAB = R[1] | R[2]; self.srcC = R[3]; s = self.srcAB | self.srcC
        elif self.is_perml:
            d = R[0] | R[1]; s = R[0] | R[1]
        elif self.is_valu:
            d = set(R[0]); k = 1
            if op.startswith(("v_add_co", "v_sub_co", "v_addc_co")): d |= R[1]; k = 2
            for r in R[k:]: s |= r
            if op.startswith(("v_fmac", "v_dot2c")) or self.is_dpp or "d16" in op: s |= R[0]
            if op.startswith("v_cndmask") and len(ops) == 3: s |= {("s", "vcc")}
            if op.startswith("v_writelane"): s |= R[0]
        elif self.is_ds:
            if op.startswith("ds_read") or "_rtn" in op or "permute" in op or "swizzle" in op:
                d = R[0]; self.load_dst = set(R[0])
                for r in R[1:]: s |= r
                if "d16" in op: s |= R[0]
            else:
                for r in R: s |= r
        elif self.is_vmem:
            load = "_load" in op or ("atomic" in op and "sc0" in self.mods)
            if load and " lds" not in (" " + self.mods):
                d = R[0]; self.load_dst = set(R[0])
                for r in R[1:]: s |= r
            else:
                for r in R: s |= r
                if "_store" in op and ("x4" in op or "x3" in op):
                    self.store_data = R[1] if op.startswith("global") else R[0]
        elif self.is_salu:
            if op.startswith(("s_cmp", "s_cbranch", "s_branch", "s_waitcnt", "s_nop", "s_barrier", "s_sleep", "s_setprio", "s_endpgm", "s_bitcmp")):
                for r in R: s |= r
            elif R:
                d = R[0]
                for r in R[1:]: s |= r
                if "saveexec" in op: d = d | {("s", "exec")}; s |= {("s", "exec")}
        self.d = d; self.s = s
    def states(self):
        if self.op == "s_nop": return int(self.ops[0]) + 1
        return 1 if self.op else 0

def need(p, c):
    n = 0
    pv = {r for r in p.d if r[0] in "va"}
    ps = {r for r in p.d if r[0] == "s"}
    if p.is_valu:
        if c.is_mfma and pv & c.s: n = max(n, 2)
        if c.is_dpp and c.is_valu and pv & regs_of(c.ops[1]): n = max(n, 2)
        if c.is_perml and pv & c.s: n = max(n, 2)
        if c.is_rdl and pv & c.s: n = max(n, 1)
        if p.is_trans and c.is_valu and not c.is_trans and pv & c.s: n = max(n, 1)
        if p.is_trans and c.is_trans and pv & c.s: n = max(n, 1)
        if p.is_dot and (pv & (c.s | c.d)) and not (c.op == p.op and not (pv & (c.s - set(regs_of(c.ops[-1]))))): n = max(n, 3)
        if ps:
            if c.is_valu and ps & c.s: n = max(n, 4 if c.is_rdl or c.op.startswith("v_writelane") else 2)
            if c.is_vmem and ps & c.s: n = max(n, 5)
            if c.is_salu and ps & c.s: n = max(n, 1)
    if p.is_mfma:
        big = p.passes == 8
        if c.is_mfma:
            if p.d & c.srcAB: n = max(n, 12 if big else 8)
            if p.d & c.srcC and not (p.d == c.srcC and p.passes == c.passes): n = max(n, 10 if big else 6)
            if p.d & c.d and not (p.d & c.srcC): n = max(n, 12 if big else 8)
        elif (c.is_valu or c.is_ds or c.is_vmem):
            if p.d & (c.s | c.d): n = max(n, 12 if big else 8)
            if c.is_valu and p.srcC & c.d: n = max(n, 7 if big else 3)
    if p.store_data and (p.store_data & c.d): n = max(n, 2)
    return n

class Asm:
    def __init__(self): self.lines = []; self.nops = 0; self.raw = False
    def __call__(self, text):
        for l in text.split("\n"):
            l = l.strip()
            if l: self.lines.append(l + (" ;raw" if self.raw else ""))
    def finish(self):
        ins = [Ins(l) for l in self.lines]
        out = []
        vm = []; lg = []
        smem = set()
        def emit(i): out.append(i)
        for c in ins:
            if c.label or c.directive or not c.op:
                emit(c); continue
            touch = c.s | c.d
            if c.op == "s_waitcnt":
                t = c.text
                m = re.search(r"vmcnt\((\d+)\)", t)
                if m: vm = vm[len(vm) - int(m.group(1)):] if int(m.group(1)) < len(vm) and int(m.group(1)) > 0 else ([] if int(m.group(1)) == 0 else vm)
                m = re.search(r"lgkmcnt\((\d+)\)", t)
                if m:
                    k = int(m.group(1))
                    lg = lg[len(lg) - k:] if 0 < k < len(lg) else ([] if k == 0 else lg)
                    if k == 0: smem = set()
            elif c.raw:
                vm = []; lg = []
            else:
                w = []
                idx = [n for n, r in enumerate(vm) if r & touch]
                if idx:
                    k = len(vm) - 1 - idx[-1]
                    k = min(k, 63)
                    w.append(f"vmcnt({k})"); vm = vm[len(vm) - k:] if k else []
                if smem & touch:
                    w.append("lgkmcnt(0)"); lg = []; smem = set()
                else:
                    idx = [n for n, r in enumerate(lg) if r & touch]
                    if idx:
                        k = len(lg) - 1 - idx[-1]
                        if smem: k = 0; smem = set()
                        k = min(k, 15)
                        w.append(f"lgkmcnt({k})"); lg = lg[len(lg) - k:] if k else []
                if w: emit(Ins("s_waitcnt " + " ".join(w)))
            req = 0; dist = 0
            for p in reversed(out):
                if dist >= 20: break
                if p.op:
                    n = need(p, c)
                    if n - dist > req: req = n - dist
                    dist += p.states()
            if req > 0:
                self.nops += req
                while req > 0:
                    k = min(req, 16); emit(Ins(f"s_nop {k-1}")); req -= k
            emit(c)
            if c.is_vmem and not c.raw: vm.append(set(c.load_dst))
            if c.is_ds and not c.raw: lg.append(set(c.load_dst))
            if c.is_smem: smem |= c.d
            if c.op in ("s_endpgm", "s_branch"):
                vm = []; lg = []; smem = set()
        txt = []
        for i in out:
            txt.append(i.text if (i.label or i.directive) else "    " + i.text)
        return "\n".join(txt) + "\n"
```

```python
import sys, struct, math
from asmlib import Asm

NAME = "gated_mix__ssm_conv_s4__ssm_conv_h3__prompt"
DEFAULT = dict(stamps=0, sleep=1, tprio=1, hprio=0, mprio=0, mdrop=99, nacc=8, lsl=1, fastflag=1, probe=0, pwg=0,
               bper=63, prof=0, upre=3, pf=1, upos=1, nt=0, gmap=0x65743210, allpoll=1, addtid=1, skpos=1, gdelay=0, fsh=13, bsep=1, skt=1, kpre=4, ovl=1, spf=0, blate=1, bat=16, nohelp=0, noepi=0, pair=0)

FL0 = 0
F_U, F_P, F_PR, F_SK = FL0, FL0 + 128, FL0 + 160, FL0 + 192
SC0 = 256; SROW = 272; SSTR = 53 * SROW
KSTR = 4160; K0 = SC0 + 4 * SSTR
USTR_PH = 1088; USTR = 4 * USTR_PH; U0 = K0 + 4 * KSTR
G0 = U0 + 4 * USTR
Y0 = G0 + 8192; YSTR = 8192
LDS_BYTES = Y0 + 4 * YSTR
WS_G = 224 * 16384
WS_FL = WS_G + 8192
WS_STAMP = 64 << 20

def f2u(x): return struct.unpack("<I", struct.pack("<f", x))[0]
def f32(x): return struct.unpack("<f", struct.pack("<f", x))[0]
def hx(x): return "0x%08x" % (x & 0xffffffff)
def vr(a, n=1): return f"v{a}" if n == 1 else f"v[{a}:{a+n-1}]"

sG, sJ, sW, sP = "s4", "s5", "s6", "s7"
pU, pAre, pAim, pBre, pBim, pCre, pCim, pLdt = (f"s[{16+2*i}:{17+2*i}]" for i in range(8))
pDs, pQ, pK, pV, pSh, pSk, pSd, pGw = (f"s[{32+2*i}:{33+2*i}]" for i in range(8))
pOut, pDbg, pWs = "s[48:49]", "s[50:51]", "s[52:53]"
srdK = "s[56:59]"
sKq, sCh, sHf, sRnd = "s54", "s55", "s60", "s61"
sHI, sSel0, sSel1, sSpin = "s62", "s63", "s64", "s65"
sDt, sDs, sSd, sI2P, sNon = "s66", "s67", "s68", "s69", "s70"

PROF = {1: dict(T={"start": 0, "karg": 1, "k3": 2, "loaded": 3, "issued": 4, "acked": 5, "sigout": 6, "polled": 7},
                K={"start": 0, "params": 1, "anch": 2, "chain": 3, "rend": 4, "pwait": 5, "pdone": 6, "kready": 7}),
        3: dict(T={"start": 0, "loaded": 1, "fma": 2, "vok": 3, "kvst": 4, "uok": 5, "issued": 6, "acked": 7},
                K={"start": 0, "params": 1, "anch": 2, "chain": 3, "rend": 4, "pwait": 5, "pdone": 6, "kready": 7}),
        4: dict(T={"start": 0, "issued": 1, "acked": 2, "polled": 3, "payload": 4, "gok": 5, "last": 6, "end": 7},
                K={"start": 0, "uready": 1, "c4": 2, "c8": 3, "c12": 4, "c16": 5, "c24": 6, "convend": 7}),
        2: dict(T={"start": 0, "issued": 1, "acked": 2, "polled": 3, "payload": 4, "gok": 5, "last": 6, "end": 7},
                K={"start": 0, "params": 1, "rend": 2, "kop": 3, "uready": 4, "c8": 5, "c16": 6, "convend": 7})}

def gen(**kw):
    o = dict(DEFAULT); o.update(kw)
    if o["stamps"] and not o["prof"]: o["prof"] = 2
    a = Asm()
    NT = lambda bit: " nt" if o["nt"] & bit else ""
    lab = [0]
    sop = "s_memtime" if o["stamps"] == 3 else "s_memrealtime"
    def ps(name, role):
        if not o["stamps"]: return
        tab = PROF[o["prof"]]
        if name in tab[role]: a(f"{sop} s[{72+2*tab[role][name]}:{73+2*tab[role][name]}]")
    def dump_stamps(role):
        if not o["stamps"]: return
        a("s_waitcnt lgkmcnt(0)")
        if o["stamps"] == 5:
            i = o["probe"]
            if (role == "T") == (i < 100):
                i %= 100
                a(f"s_cmp_lg_u32 s2, {o['pwg']}\ns_cbranch_scc1 L_end\ns_sub_u32 s8, s{72+2*i}, s72\ns_mul_i32 s8, s8, 20\ns_min_u32 s8, s8, 100000\ns_memrealtime s[10:11]\ns_waitcnt lgkmcnt(0)\ns_add_u32 s8, s8, s10")
                a(f"L_pr{role}:\ns_sleep 4\ns_memrealtime s[10:11]\ns_waitcnt lgkmcnt(0)\ns_sub_u32 s9, s8, s10\ns_cmp_gt_i32 s9, 0\ns_cbranch_scc1 L_pr{role}")
            return
        a(f"s_lshl_b32 s8, s2, 3\ns_add_u32 s8, s8, {sW}\ns_lshl_b32 s8, s8, 6\ns_add_u32 s8, s8, {WS_STAMP}")
        a("s_mov_b64 exec, 1\nv_mov_b32 v2, s8")
        for i in range(8):
            a(f"v_mov_b32 v3, s{72+2*i}\nglobal_store_dword v2, v3, {pWs} offset:{4*i}")
        a("s_waitcnt vmcnt(0)")

    vMe, vL4, vOne, vDummy = 226, 228, 229, 57
    def sync_regs(t=2):
        a(f"s_lshl_b32 s14, {sKq}, 2\ns_add_u32 s14, s14, {FL0}\nv_mov_b32 v{vMe}, s14\nv_and_b32 v{t}, 3, v1\nv_lshlrev_b32 v{t}, 2, v{t}\nv_add_u32 v{vL4}, {FL0}, v{t}\nv_mov_b32 v{vOne}, 1")
    def arrive(ev): a(f"ds_write_b32 v{vMe}, v{vOne} offset:{ev - FL0}")
    def wait_set(ev, vidx, vt, slp=0):
        lab[0] += 1; L = f"L_w{lab[0]}"
        a(f"s_mov_b32 {sSpin}, 0\n{L}:\nds_read_b32 v{vt}, v{vidx} offset:{ev - FL0}")
        a(f"s_waitcnt lgkmcnt(0)\nv_cmp_ne_u32 vcc, 1, v{vt}\ns_cbranch_vccz {L}_ok")
        if slp: a(f"s_sleep {slp}")
        a(f"s_add_u32 {sSpin}, {sSpin}, 1\ns_bitcmp0_b32 {sSpin}, 19\ns_cbranch_scc1 {L}\n{L}_ok:")
    L2E = math.log2(math.e); L2Eh = f32(L2E); L2El = L2E - L2Eh
    I2P = 1.0 / (2.0 * math.pi); I2Ph = f32(I2P); I2Pl = I2P - I2Ph
    NON, vZ = 63, 4
    def nonce(tag, NON=63):
        a(f"s_mov_b32 {sSpin}, 0\nL_non{tag}:\nv_readfirstlane_b32 {sNon}, v{NON}\ns_cmp_lg_u32 {sNon}, 0\ns_cbranch_scc1 L_non{tag}_ok")
        a(f"s_sleep 4\nglobal_load_dword v{NON}, v{vZ}, {pDbg} sc1\ns_waitcnt vmcnt(0)\ns_add_u32 {sSpin}, {sSpin}, 1\ns_bitcmp0_b32 {sSpin}, 16\ns_cbranch_scc1 L_non{tag}\nL_non{tag}_ok:")

    a("s_cmp_ge_u32 s2, 256\ns_cbranch_scc1 L_end")
    ps("start", "T")
    a(f"""L_pc:
s_load_dwordx16 s[32:47], s[0:1], 64
s_load_dwordx16 s[16:31], s[0:1], 0
v_lshrrev_b32 v2, 6, v0
s_load_dwordx4 s[48:51], s[0:1], 128
s_load_dwordx2 s[52:53], s[0:1], 144
v_readfirstlane_b32 {sW}, v2
v_and_b32 v1, 63, v0
s_and_b32 s8, s2, 7
s_lshl_b32 s8, s8, 2
s_lshr_b32 {sG}, {hx(o["gmap"])}, s8
s_and_b32 {sG}, {sG}, 7
s_lshr_b32 {sJ}, s2, 3
s_cmp_eq_u32 {sG}, 7
s_cbranch_scc1 L_g7
v_lshlrev_b32 v5, 2, v1
v_mov_b32 v8, 0
ds_write_b32 v5, v8 offset:{FL0}
s_lshl_b32 {sP}, {sG}, 5
s_add_u32 {sP}, {sP}, {sJ}
s_and_b32 {sKq}, {sW}, 3
s_lshr_b32 {sCh}, {sKq}, 1
s_and_b32 {sHf}, {sW}, 1
s_cmp_ge_u32 {sW}, 4
s_cbranch_scc1 L_kpre""")

    vB, vB2, vKA, vSt = 10, 11, 12, 9
    U_, V_, K_, SH = 16, 24, 32, 44
    a(f"""s_lshl_b32 s8, {sCh}, 5
s_lshl_b32 s9, {sJ}, 6
s_add_u32 s8, s8, s9
s_mul_i32 s8, s8, 896
s_lshl_b32 s10, {sHf}, 6
s_lshl_b32 s11, {sG}, 7
s_add_u32 s10, s10, s11
s_add_u32 s8, s8, s10
v_lshrrev_b32 v2, 4, v1
v_and_b32 v3, 15, v1
v_mul_u32_u24 v4, {8*896}, v2
v_lshl_add_u32 v4, v3, 2, v4
v_add_u32 v{vB}, s8, v4
v_add_u32 v{vB2}, {4*896}, v{vB}
v_subrev_u32 v{vKA}, {3*896}, v{vB}
s_lshl_b32 s10, s10, 2
v_lshl_add_u32 v8, v3, 4, s10
s_mov_b32 s58, 1835008
s_mov_b32 s59, 0x20000
s_waitcnt lgkmcnt(0)
s_mov_b32 s56, s36
s_mov_b32 s57, s37
s_barrier""")
    ps("karg", "T")
    vSk, vSkw, vFd = 216, 217, 218
    rows = [((vB, 896*i) if i < 4 else (vB2, 896*(i-4))) for i in range(8)]
    for i in range(3): a(f"buffer_load_dword v{K_+i}, v{vKA}, {srdK}, 0 offen offset:{896*i}{NT(1)}")
    for i, (b, off) in enumerate(rows): a(f"buffer_load_dword v{K_+3+i}, v{b}, {srdK}, 0 offen offset:{off}{NT(1)}")
    a(f"global_load_dwordx4 v[{SH}:{SH+3}], v8, {pSh}")
    for i, (b, off) in enumerate(rows): a(f"global_load_dword v{V_+i}, v{b}, {pV} offset:{off}{NT(1)}")
    for i, (b, off) in enumerate(rows): a(f"global_load_dword v{U_+i}, v{b}, {pU} offset:{off}{NT(2)}")
    SKT = 48
    def sk_loads(): a(f"global_load_dwordx4 {vr(SKT,4)}, v{vSk}, {pSk}{NT(4)}\nglobal_load_dwordx4 {vr(SKT+4,4)}, v{vSk+3}, {pSk}{NT(4)}")
    a(f"v_lshlrev_b32 v2, 4, v0\ns_lshl_b32 s9, {sP}, 13\nv_add_u32 v{vSk}, s9, v2\nv_add_u32 v{vSk+3}, 4096, v{vSk}\nv_add_u32 v{vSkw}, {K0 + 2*KSTR + 32}, v2\nv_lshrrev_b32 v2, 4, v1")
    X = 2 if o["skt"] == 0 else 0
    if o["skt"] == 0: sk_loads()
    a(f"s_lshl_b32 s14, {sP}, 2\ns_load_dword {sSd}, {pSd}, s14")
    if o["pf"] or o["fastflag"]:
        a(f"s_cmp_lg_u32 {sKq}, 3\ns_cbranch_scc1 L_nopf")
        if o["fastflag"]: a(f"s_lshl_b32 s9, {sG}, 13\ns_and_b32 s10, {sJ}, 3\ns_lshl_b32 s10, s10, 7\ns_add_u32 s9, s9, s10\ns_add_u32 s9, s9, {WS_FL}\ns_load_dword s92, {pWs}, s9")
        if o["pf"]:
            a(f"s_getpc_b64 s[12:13]\nL_pc2:\ns_lshl_b32 s8, {sJ}, 9\ns_min_u32 s8, s8, L_codeend-L_pc-512\ns_sub_u32 s8, s8, L_pc2-L_pc\ns_ashr_i32 s9, s8, 31\ns_add_u32 s12, s12, s8\ns_addc_u32 s13, s13, s9")
            for i in range(4): a(f"s_load_dword s{93+i}, s[12:13], {128*i}")
        a("L_nopf:")
    def sk_touch():
        a(f"s_lshl_b32 s8, {sP}, 13\ns_lshl_b32 s9, {sW}, 11\ns_add_u32 s8, s8, s9\ns_add_u32 s90, s42, s8\ns_addc_u32 s91, s43, 0")
        a.raw = True
        for i in range(14): a(f"s_load_dword s{92 + i % 8}, s[90:91], {128*i}")
        a.raw = False
    if o["spf"] == 1: sk_touch()
    if o["tprio"]: a(f"s_setprio {o['tprio']}")
    vFA, vFB, vF1 = 18+182, 19+182, 20+182
    vP0, vG0, vUw, vGw = 204, 208, 210, 211
    hY, hU, hG, hO = 212, 213, 214, 215
    a(f"""s_mov_b32 {sHI}, 0xffff0000
s_mov_b32 {sSel0}, 0x05040100
s_mov_b32 {sSel1}, 0x07060302
s_lshl_b32 s8, {sG}, 5
s_lshl_b32 s9, {sHf}, 4
s_add_u32 s8, s8, s9
s_lshl_b32 s8, s8, 14
s_lshl_b32 s9, {sJ}, 9
s_add_u32 s8, s8, s9
s_lshl_b32 s9, {sCh}, 6
s_add_u32 s8, s8, s9
v_lshlrev_b32 v{vSt}, 14, v3
v_lshl_add_u32 v{vSt}, v2, 4, v{vSt}
v_add_u32 v{vSt}, s8, v{vSt}
v_mov_b32 v{vZ}, 0""")
    sync_regs()
    a(f"""s_lshl_b32 s8, {sG}, 13
s_add_u32 s8, s8, {WS_FL}
s_lshr_b32 s9, {sJ}, 4
s_lshl_b32 s9, s9, 8
s_add_u32 s9, s9, s8
v_lshl_add_u32 v{vFA}, v1, 2, s9
v_add_u32 v{vFB}, 4096, v{vFA}
s_lshl_b32 s9, {sHf}, 8
s_add_u32 s8, s8, s9
s_lshl_b32 s9, {sJ}, 3
s_add_u32 s8, s8, s9
s_lshl_b32 s9, {sCh}, 2
s_add_u32 s8, s8, s9
v_mov_b32 v{vF1}, s8
v_add_u32 v{vF1+1}, 4096, v{vF1}
s_lshl_b32 s8, {sP}, 14
v_lshlrev_b32 v2, 4, v0
v_add_u32 v{vP0}, s8, v2
v_add_u32 v{vP0+1}, 4096, v{vP0}
v_add_u32 v{vP0+2}, 8192, v{vP0}
v_add_u32 v{vP0+3}, 12288, v{vP0}
v_lshrrev_b32 v2, 4, v1
v_lshlrev_b32 v2, 10, v2
v_and_b32 v3, 15, v1
v_lshl_add_u32 v2, v3, 4, v2
s_lshl_b32 s9, {sW}, 8
v_add_u32 v2, s9, v2
v_add_u32 v{vG0}, {WS_G}, v2
v_add_u32 v{vG0+1}, {WS_G + 4096}, v2
v_add_u32 v{vGw}, {G0}, v2
v_and_b32 v2, 3, v0
v_mul_u32_u24 v{vUw}, {USTR_PH}, v2
v_bfe_u32 v2, v0, 3, 2
v_mul_u32_u24 v3, {USTR}, v2
v_add_u32 v{vUw}, v{vUw}, v3
v_bfe_u32 v2, v0, 2, 1
v_lshlrev_b32 v2, 4, v2
v_lshrrev_b32 v3, 5, v0
v_lshl_add_u32 v2, v3, 5, v2
v_sub_u32 v{vUw}, v{vUw}, v2
v_add_u32 v{vUw}, {U0 + 1008 - 768}, v{vUw}
v_lshlrev_b32 v2, 2, v0
v_add_u32 v{hY}, {Y0}, v2
v_add_u32 v{hG}, {G0}, v2
v_mul_u32_u24 v{hO}, 896, v0
s_lshl_b32 s9, {sP}, 2
v_add_u32 v{hO}, s9, v{hO}
v_and_b32 v2, 3, v1
v_mul_u32_u24 v3, {USTR_PH}, v2
v_lshrrev_b32 v2, 2, v0
v_lshlrev_b32 v2, 1, v2
v_sub_u32 v3, v3, v2
v_add_u32 v{hU}, {U0 + 1022}, v3""")
    KU, WT, AC, VT, PC = 64, 86, 96, 112, 120
    a(f"s_waitcnt vmcnt({25+X})")
    ps("k3", "T")
    for i in range(3): a(f"v_lshlrev_b32 v{KU+2*i}, 16, v{K_+i}\nv_and_b32 v{KU+2*i+1}, {sHI}, v{K_+i}")
    a(f"s_waitcnt vmcnt({16+X})")
    for i in range(3, 11): a(f"v_lshlrev_b32 v{KU+2*i}, 16, v{K_+i}\nv_and_b32 v{KU+2*i+1}, {sHI}, v{K_+i}")
    for ch in range(2):
        for t in range(4):
            src = SH + 2*ch + t//2
            a(f"v_lshlrev_b32 v{WT+2*t+ch}, 16, v{src}" if t % 2 == 0 else f"v_and_b32 v{WT+2*t+ch}, {sHI}, v{src}")
    ps("loaded", "T")
    for t in range(4):
        for r in range(8):
            k = KU + 2*(r + 3 - t)
            if t == 0: a(f"v_pk_mul_f32 {vr(AC+2*r,2)}, {vr(k,2)}, {vr(WT,2)}")
            else: a(f"v_pk_fma_f32 {vr(AC+2*r,2)}, {vr(k,2)}, {vr(WT+2*t,2)}, {vr(AC+2*r,2)}")
    ps("fma", "T")
    a(f"s_waitcnt vmcnt({8+X})")
    ps("vok", "T")
    for r in range(8):
        t = VT + 2*(r % 4)
        a(f"v_lshlrev_b32 v{t}, 16, v{V_+r}\nv_and_b32 v{t+1}, {sHI}, v{V_+r}")
        a(f"v_pk_mul_f32 {vr(AC+2*r,2)}, {vr(AC+2*r,2)}, {vr(t,2)}")
    def transpose2(b0, b1):
        for st, pr in (("32", ((0, 2), (1, 3))), ("16", ((0, 1), (2, 3)))):
            for base in (b0, b1):
                for x, y in pr: a(f"v_permlane{st}_swap_b32 v{base+3-x}, v{base+3-y}")
    for ch in range(2):
        for rho in range(4):
            a(f"v_cvt_pk_bf16_f32 v{PC+8+4*ch+3-rho}, v{AC+2*(rho+4)+ch}, v{AC+2*rho+ch}")
    transpose2(PC + 8, PC + 12)
    for ch in range(2): a(f"global_store_dwordx4 v{vSt}, {vr(PC+8+4*ch,4)}, {pWs} offset:{(2+ch)*128} sc1")
    ps("kvst", "T")
    a(f"s_waitcnt vmcnt({2+X})")
    ps("uok", "T")
    for ch in range(2):
        for rho in range(4):
            a(f"v_perm_b32 v{PC+4*ch+3-rho}, v{U_+rho}, v{U_+rho+4}, {sSel0 if ch == 0 else sSel1}")
    transpose2(PC, PC + 4)
    for ch in range(2): a(f"global_store_dwordx4 v{vSt}, {vr(PC+4*ch,4)}, {pWs} offset:{ch*128} sc1")
    a(f"global_load_dword v{NON}, v{vZ}, {pDbg} sc1")
    if o["skt"] == 1: sk_loads()
    ps("issued", "T")
    if o["spf"] == 2:
        a("s_waitcnt lgkmcnt(0)"); sk_touch()
    a(f"v_cmp_eq_u32 vcc, 0, v0\n{'s_waitcnt lgkmcnt(0)' if o['spf'] != 2 else 's_nop 0'}\nv_mov_b32 v2, {sSd}\nv_cndmask_b32 v{vFd}, 0, v2, vcc")
    a(f"v_mov_b32 v30, 0\nv_mov_b32 v31, 0\nv_lshlrev_b32 v72, 16, v{vFd}\nv_and_b32 v73, {sHI}, v{vFd}\nv_mov_b32 v74, 0xffff")
    def sk_stage():
        for i in range(2):
            r = SKT + 4*i
            a(f"v_lshlrev_b32 v75, 16, v{r}\nv_add_f32 v75, v75, v{72+i}\nv_cvt_pk_bf16_f32 v75, v75, v75\nv_bfi_b32 v{r}, v74, v75, v{r}\nds_write_b128 v{vSkw}, {vr(r,4)} offset:{KSTR*i}")
        arrive(F_SK)
    if o["skt"] == 0:
        a("s_waitcnt vmcnt(5)"); sk_stage()
    a(f"s_waitcnt vmcnt({2 if o['skt'] == 1 else 0})")
    ps("acked", "T")
    nonce("a")
    a.raw = True
    if o["fastflag"]: a(f"s_mov_b64 exec, 1\nglobal_store_dword v{vF1}, v{NON}, {pWs}\ns_mov_b64 exec, -1")
    a(f"global_load_dword v19, v{vFA}, {pWs} sc1")
    def bstore(): a(f"s_mov_b64 exec, 1\nglobal_store_dword v{vF1+1}, v{NON}, {pWs} sc1\ns_mov_b64 exec, -1")
    if not o["blate"]: bstore()
    ps("sigout", "T")
    PL, GL = 136, 152
    sDone = "s3"
    a(f"s_mov_b32 {sSpin}, 0\ns_mov_b32 {sDone}, 0\ns_lshl_b32 s13, {sW}, 2\ns_waitcnt vmcnt({0 if o['blate'] else 1})\nv_cmp_eq_u32 s[10:11], {sNon}, v19")
    if o["skt"] == 1: sk_stage()
    if o["skt"] == 2:
        sk_loads(); a("s_waitcnt vmcnt(0)"); sk_stage()
    def put(b, tag, wait):
        a(f"s_cmp_gt_u32 {sDone}, {b}\ns_cbranch_scc1 L_put{tag}\ns_waitcnt vmcnt({wait})")
        a(f"ds_write_b128 v{vUw}, {vr(PL+4*b,4)} offset:{256*(3-b)}\nds_write_b32 v{vMe}, v{vOne} offset:{F_U - FL0 + 32*b}\ns_mov_b32 {sDone}, {b+1}\nL_put{tag}:")
    a.raw = True
    for i in range(4):
        a(f"s_branch L_chk{i}\nL_poll{i}:" if i == 0 else f"s_branch L_chk{i}\nL_poll{i}:")
        for b in range(i): put(b, f"{i}_{b}", 0)
        a(f"s_add_u32 {sSpin}, {sSpin}, 1")
        if o["blate"]:
            a(f"s_cmp_lg_u32 {sSpin}, {o['bat']}\ns_cbranch_scc1 L_nob{i}"); bstore(); a(f"L_nob{i}:")
        if o["fastflag"]:
            a(f"s_and_b32 s8, {sSpin}, {o['bper']}\ns_cbranch_scc0 L_pollb{i}\nglobal_load_dword v19, v{vFA}, {pWs} sc1\ns_branch L_pollc{i}\nL_pollb{i}:")
        a(f"global_load_dword v19, v{vFB}, {pWs} sc1\nL_pollc{i}:\ns_waitcnt vmcnt(0)\nv_cmp_eq_u32 vcc, {sNon}, v19\ns_or_b64 s[10:11], s[10:11], vcc")
        a(f"s_bitcmp1_b32 {sSpin}, 17\ns_cbranch_scc1 L_iss{i}\nL_chk{i}:")
        a(f"s_lshr_b32 s8, s{10 + i//2}, s13")
        if i % 2: a("s_lshr_b32 s8, s8, 16")
        a(f"s_and_b32 s8, s8, 15\ns_cmp_eq_u32 s8, 15\ns_cbranch_scc0 L_poll{i}\nL_iss{i}:")
        if i == 0: ps("polled", "T")
        a(f"global_load_dwordx4 {vr(PL+4*i,4)}, v{vP0+i}, {pWs} sc1")
    for i in range(2): a(f"global_load_dwordx4 {vr(GL+4*i,4)}, v{vG0+i}, {pWs} sc1")
    if o["blate"]: bstore()
    for b in range(4):
        put(b, f"e_{b}", 5 - b + o["blate"])
        if b == 0: ps("payload", "T")
    a.raw = False
    a(f"s_setprio {o['hprio']}")
    a(f"s_mov_b32 {sSpin}, 0\ns_waitcnt vmcnt({o['blate']})\nL_gchk:")
    a(f"v_cmp_ne_u32 vcc, {sNon}, v{GL+1}\nv_cmp_ne_u32 s[8:9], {sNon}, v{GL+3}\nv_cmp_ne_u32 s[12:13], {sNon}, v{GL+5}\nv_cmp_ne_u32 s[14:15], {sNon}, v{GL+7}")
    a("s_or_b64 s[8:9], s[8:9], vcc\ns_or_b64 s[12:13], s[12:13], s[14:15]\ns_or_b64 s[8:9], s[8:9], s[12:13]\ns_cbranch_scc0 L_gok")
    a("s_sleep 4")
    for i in range(2): a(f"global_load_dwordx4 {vr(GL+4*i,4)}, v{vG0+i}, {pWs} sc1")
    a(f"s_waitcnt vmcnt(0)\ns_add_u32 {sSpin}, {sSpin}, 1\ns_bitcmp0_b32 {sSpin}, 16\ns_cbranch_scc1 L_gchk\nL_gok:")
    for i in range(2):
        g = GL + 4*i
        a(f"v_and_b32 v{g+3}, {sHI}, v{g+2}\nv_lshlrev_b32 v{g+2}, 16, v{g+2}\nv_and_b32 v{g+1}, {sHI}, v{g}\nv_lshlrev_b32 v{g}, 16, v{g}")
        a(f"ds_write_b128 v{vGw}, {vr(g,4)} offset:{4096*i}")
    ps("gok", "T")
    if o["nohelp"]: a("s_branch L_hend")
    a(f"s_add_u32 s9, {sW}, 1\ns_mov_b32 s10, 0")
    a(f"L_help:\ns_mov_b32 {sSpin}, 0\nL_hwait:\nds_read_b32 v3, v{vL4} offset:{F_PR - FL0}\ns_waitcnt lgkmcnt(0)\nv_cmp_gt_u32 vcc, s9, v3\ns_cbranch_vccz L_hgo")
    if o["lsl"]: a(f"s_sleep {o['lsl']}")
    a(f"s_add_u32 {sSpin}, {sSpin}, 1\ns_bitcmp0_b32 {sSpin}, 19\ns_cbranch_scc1 L_hwait\nL_hgo:")
    a(f"""ds_read_b32 v28, v{hY} offset:{2*YSTR}
ds_read_b32 v29, v{hY} offset:{3*YSTR}
ds_read_u16_d16_hi v30, v{hU}
ds_read_u16_d16_hi v31, v{hU} offset:{USTR}
ds_read_b32 v26, v{hY}
ds_read_b32 v27, v{hY} offset:{YSTR}
ds_read_b32 v25, v{hG}
v_add_u32 v{hY}, 1024, v{hY}
v_add_u32 v{hG}, 1024, v{hG}
v_subrev_u32 v{hU}, 128, v{hU}
s_add_u32 s9, s9, 4
s_add_u32 s10, s10, 1
s_waitcnt lgkmcnt(0)
v_mul_f32 v28, v28, v30
v_mul_f32 v29, v29, v31
v_sub_f32 v26, v26, v28
v_sub_f32 v27, v27, v29
v_fmac_f32 v28, v25, v26
v_fmac_f32 v29, v25, v27
v_cvt_pk_bf16_f32 v32, v28, v29
global_store_dword v{hO}, v32, {pOut}
v_add_u32 v{hO}, {256*896}, v{hO}
s_cmp_lt_u32 s10, 8
s_cbranch_scc1 L_help""")
    a("L_hend:")
    ps("last", "T")
    if o["stamps"]:
        a("s_waitcnt vmcnt(0)"); ps("end", "T")
    dump_stamps("T")
    a("s_endpgm")

    RAW, vPa, vSw, vRa, vRb, vPar = 200, 214, 218, 219, 220, 224
    a(f"""L_kpre:
s_lshl_b32 s11, {sP}, 1
s_add_u32 s11, s11, {sCh}
s_lshl_b32 s14, s11, 9
s_lshl_b32 s15, {sHf}, 8
s_add_u32 s14, s14, s15
v_lshl_add_u32 v{vPar}, v1, 2, s14
s_lshl_b32 s14, {sP}, 2
s_waitcnt lgkmcnt(0)""")
    a(f"""s_add_u32 s8, s2, {sKq}
s_cmp_lg_u32 s8, 0
s_cbranch_scc1 L_nonon
s_memrealtime s[12:13]
s_mov_b64 exec, 1
v_mov_b32 v3, 0
v_mov_b32 v4, 0
s_waitcnt lgkmcnt(0)
s_or_b32 s12, s12, 1
v_mov_b32 v2, s12
global_atomic_cmpswap v4, v[2:3], {pDbg} sc1
s_mov_b64 exec, -1
L_nonon:""")
    for i, p in enumerate((pAre, pAim, pBre, pBim, pCre, pCim)): a(f"global_load_dword v{RAW+i}, v{vPar}, {p}")
    a(f"s_load_dword {sDt}, {pLdt}, s14\ns_load_dword {sDs}, {pDs}, s14")
    a(f"""s_barrier
s_mov_b32 {sHI}, 0xffff0000
s_mul_i32 s11, {sKq}, {SSTR}
s_add_u32 s11, s11, {SC0}
s_mov_b32 m0, s11
v_and_b32 v13, 31, v1
v_lshrrev_b32 v14, 5, v1
v_lshl_add_u32 v{vSw}, v1, 2, s11
v_mul_u32_u24 v15, {SROW}, v13
v_lshl_add_u32 v15, v14, 4, v15
v_add_u32 v{vRa}, s11, v15
v_add_u32 v{vRb}, {21*SROW}, v{vRa}
s_mov_b32 {sI2P}, {hx(f2u(I2Ph))}
s_mov_b32 {sRnd}, 0""")
    vKa, vUa, vYa, vPr = 2, 3, 4, 5
    vE8, vE16, vW8, vW16, vW32, vFold = 234, 235, 236, 237, 238, 239
    a(f"""s_mul_i32 s11, {sKq}, {SSTR}
s_add_u32 s11, s11, {SC0}
v_and_b32 v13, 31, v1
v_lshrrev_b32 v14, 5, v1
v_lshlrev_b32 v15, 5, v13
v_lshl_add_u32 v15, v14, 4, v15
v_add_u32 v{vPa}, s11, v15
v_cmp_eq_u32 vcc, 0, v14
v_lshlrev_b32 v15, 4, v13
v_add_u32 v15, {4*256}, v15
v_lshlrev_b32 v12, 3, v13
v_add_u32 v12, {4*384}, v12
v_cndmask_b32 v11, v12, v15, vcc
v_add_u32 v{vPa+1}, s11, v11
v_add_u32 v15, 8, v15
v_add_u32 v12, 256, v12
v_cndmask_b32 v11, v12, v15, vcc
v_add_u32 v{vPa+2}, s11, v11
v_lshlrev_b32 v15, 2, v13
v_lshl_add_u32 v15, v14, 9, v15
v_add_u32 v15, {4*512}, v15
v_add_u32 v{vPa+3}, s11, v15""")
    sync_regs(13)
    a(f"""s_mul_i32 s13, {sKq}, {KSTR}
s_add_u32 s13, s13, {K0 + 32}
v_lshl_add_u32 v{vW8}, v1, 3, s13
v_lshl_add_u32 v{vW16}, v1, 4, s13
v_lshl_add_u32 v{vW32}, v1, 5, s13
v_mov_b32 v8, 0
v_mov_b32 v9, 0
v_mov_b32 v10, 0
v_mov_b32 v11, 0
s_sub_u32 s14, s13, 32
v_and_b32 v6, 1, v1
v_lshl_add_u32 v6, v6, 4, s14
ds_write_b128 v6, v[8:11]
s_mul_i32 s14, {sHf}, {2*SSTR}
s_add_u32 s14, s14, {SC0}
v_lshl_add_u32 v{vE8}, v1, 3, s14
v_lshl_add_u32 v{vE16}, v1, 4, s14
v_and_b32 v6, 3, v1
v_bfe_u32 v7, v1, 2, 2
v_lshrrev_b32 v12, 4, v1
v_add_u32 v13, v6, v7
v_lshlrev_b32 v13, 3, v13
v_lshl_add_u32 v13, v12, 6, v13
s_sub_u32 s14, s13, 24
v_add_u32 v{vKa}, s14, v13
v_mul_u32_u24 v14, {USTR_PH}, v6
v_lshl_add_u32 v14, v12, 4, v14
v_lshlrev_b32 v13, 3, v7
v_sub_u32 v14, v14, v13
s_mul_i32 s15, {sKq}, {USTR}
s_add_u32 s14, s15, {U0 + 1016 - 32*31}
v_add_u32 v{vUa}, s14, v14
v_mul_u32_u24 v14, {USTR_PH}, v7
v_lshl_add_u32 v14, v6, 4, v14
s_add_u32 s14, s15, {U0 + 1024}
v_add_u32 v14, s14, v14
ds_write_b128 v14, v[8:11]
s_lshl_b32 s14, {sKq}, 13
s_add_u32 s14, s14, {Y0}
v_lshl_add_u32 v{vYa}, v1, 2, s14
s_lshl_b32 s14, {sKq}, 2
s_add_u32 s14, s14, {F_PR}
v_mov_b32 v{vPr}, s14""")
    D = 176
    for i in range(16): a(f"v_mov_b32 v{D+i}, 0")
    a(f"""v_mov_b32 v12, 0x3f80
s_lshl_b32 s14, {sCh}, 4
s_sub_u32 s14, 16, s14
v_cmp_eq_u32 vcc, 0, v1
v_mov_b32 v11, {hx(f2u(L2Eh))}
ds_write_b32 v{vSw}, v12 offset:{21*SROW}
s_waitcnt lgkmcnt(0)
s_lshl_b32 {sDt}, {sDt}, s14
s_and_b32 {sDt}, {sDt}, {sHI}
v_mov_b32 v13, {sDt}
v_mul_f32 v14, {hx(f2u(L2Eh))}, v13
v_fma_f32 v15, v13, v11, -v14
v_fmac_f32 v15, {hx(f2u(L2El))}, v13
v_exp_f32 v14, v14
v_mul_f32 v15, {hx(f2u(math.log(2.0)))}, v15
s_lshl_b32 {sDs}, {sDs}, s14
v_fma_f32 v14, v14, v15, v14
s_and_b32 {sDs}, {sDs}, {sHI}
v_cvt_pk_bf16_f32 v14, 0, v14
s_cmp_eq_u32 {sHf}, 0
s_cselect_b32 {sDs}, {sDs}, 0
v_readfirstlane_b32 {sDt}, v14
v_mov_b32 v7, {sDs}
v_cndmask_b32 v{vFold}, 0, v7, vcc""")
    a("s_waitcnt vmcnt(0)")
    ps("params", "K")
    for i in range(6): a(f"v_lshlrev_b32 v{8+i}, 16, v{RAW+i}")
    SK = 24
    vSkW = 240
    A2, TH, TL = 140, 141, 142
    Z1, Z2, Z4, Z8, Z256, W, X, Yc, Fc = 146, 148, 150, 152, 154, 156, 158, 160, 162
    PK = 166; OA = 64; OB = 80
    def cm(d, x, z):
        t = d if d != x else 14
        return (f"v_pk_mul_f32 {vr(t,2)}, {vr(x,2)}, {vr(z,2)} op_sel_hi:[0,1]",
                f"v_pk_fma_f32 {vr(d,2)}, {vr(x,2)}, {vr(z,2)}, {vr(t,2)} op_sel:[1,1,0] op_sel_hi:[1,0,1] neg_lo:[1,0,0]")
    def cmul(d, x, z):
        for t in cm(d, x, z): a(t)
    def swr(r, row): return f"ds_write_addtid_b32 v{r} offset:{row*SROW}" if o["addtid"] else f"ds_write_b32 v{vSw}, v{r} offset:{row*SROW}"
    anchors = ((1, Z1, 136), (8, Z8, 138), (256, Z256, 144))
    def anchor_scalar():
        L = [f"v_mul_f32 v8, {sDt}, v8", f"v_mul_f32 v9, {sDt}, v9", f"v_mul_f32 v{A2}, {hx(f2u(L2Eh))}, v8", f"v_mul_f32 v{TH}, {sI2P}, v9",
             f"v_fma_f32 v{TL}, v9, {sI2P}, -v{TH}", f"v_fmac_f32 v{TL}, {hx(f2u(I2Pl))}, v9"]
        for e, Z, Mx in anchors:
            if e == 1: L += [f"v_exp_f32 v{Mx}, v{A2}", f"v_fract_f32 v{Mx+1}, v{TH}"]
            else:
                c = hx(f2u(float(e)))
                L += [f"v_mul_f32 v{Mx}, {c}, v{A2}", f"v_mul_f32 v{Mx+1}, {c}, v{TH}", f"v_exp_f32 v{Mx}, v{Mx}", f"v_fract_f32 v{Mx+1}, v{Mx+1}"]
        for e, Z, Mx in anchors:
            L += [f"v_add_f32 v{Mx+1}, v{Mx+1}, v{TL}" if e == 1 else f"v_fmac_f32 v{Mx+1}, {hx(f2u(float(e)))}, v{TL}"]
        for e, Z, Mx in anchors: L += [f"v_cos_f32 v{Z}, v{Mx+1}", f"v_sin_f32 v{Z+1}, v{Mx+1}"]
        return L
    for t in anchor_scalar(): a(t)
    a("L_round:")
    cmul(W, 12, 10)
    for e, Z, Mx in anchors: a(f"v_pk_mul_f32 {vr(Z,2)}, {vr(Z,2)}, {vr(Mx,2)} op_sel_hi:[1,0]")
    a(f"v_mul_f32 v{W}, {sDt}, v{W}\nv_mul_f32 v{W+1}, {sDt}, v{W+1}")
    cmul(Z2, Z1, Z1)
    cmul(Z4, Z2, Z2)
    ps("anch", "K")
    pk = [0]
    def cvt(row, src, neg):
        r = PK + (pk[0] % 8); pk[0] += 1
        return f"v_cvt_pk_bf16_f32 v{r}, v{src}, {'-' if neg else ''}v{src+1}", swr(r, row)
    steps = [(None, W, None, 0)]; prev = W
    for r in range(1, 8):
        d = X if prev != X else Yc
        steps.append((d, prev, Z1, r)); prev = d
    steps.append((W, W, Z256, 8)); prev = W
    for r in range(9, 12):
        d = X if prev != X else Yc
        steps.append((d, prev, Z2, r)); prev = d
    steps += [(W, W, Z256, 12), (X, W, Z4, 13), (W, W, Z256, 14), (X, W, Z4, 15)]
    steps += [(W, W, Z256, 16 + i) for i in range(5)]
    fsteps = [(None, Z8, None, 22)]; prev = Z8
    for jx in range(2, 22):
        d = Fc if prev != Fc else Fc + 2
        fsteps.append((d, prev, Z8, 21 + jx)); prev = d
    last21 = prev; last20 = Fc if prev != Fc else Fc + 2
    steps.append((Z2, Z8, Z8, None))
    pa, pb = last20, last21
    tail = []
    for jx in range(22, 32, 2):
        da = Z1 if pa != Z1 else X; db = Z4 if pb != Z4 else Yc
        tail.append(((da, pa, Z2, 21 + jx), (db, pb, Z2, 22 + jx))); pa, pb = da, db
    seq = []
    for n in range(max(len(steps), len(fsteps))):
        seq.append([(lst[n], neg) for lst, neg in ((fsteps, False), (steps, True)) if n < len(lst)])
    seq += [[(x, False), (y, False)] for x, y in tail]
    late = []
    for n, grp in enumerate(seq):
        m0, m1, cv, wr = [], [], [], []
        for (d, x, z, row), neg in grp:
            if d is not None:
                p, q = cm(d, x, z); m0.append(p); m1.append(q); x = d
            if row is not None:
                c_, w_ = cvt(row, x, neg); cv.append(c_); wr.append(w_)
        for t in m0 + late[:1] + m1 + late[1:] + cv: a(t)
        late = wr
    for t in late: a(t)
    ps("chain", "K")
    def kmf(q): a(f"v_mfma_f32_32x32x16_bf16 {vr(D,16)}, {vr(OA+4*(q%4),4)}, {vr(OB+4*(q%4),4)}, {vr(D,16)}")
    def mphase(fill):
        fill = list(fill)
        def some(n):
            for _ in range(n):
                if fill: a(fill.pop(0))
        for q in range(8):
            a(f"ds_read_b128 {vr(OA+4*(q%4),4)}, v{vRa} offset:{32*q}\nds_read_b128 {vr(OB+4*(q%4),4)}, v{vRb} offset:{32*q}")
            if q == 2: some(6)
            if q >= 3: kmf(q - 3); some(3)
        for q in (5, 6, 7): kmf(q); some(4)
        some(99)
    a(f"s_cmp_lg_u32 {sRnd}, 0\ns_cbranch_scc1 L_last\ns_mov_b32 {sRnd}, 1")
    mphase([f"v_and_b32 v{8+i}, {sHI}, v{RAW+i}" for i in range(6)] + anchor_scalar())
    a("s_branch L_round\nL_last:")
    mphase([])
    ps("rend", "K")
    a(f"s_nop 7\nv_add_f32 v{D}, v{D}, v{vFold}")
    a(f"ds_write_b128 v{vPa}, {vr(D,4)}\nds_write_b64 v{vPa+1}, {vr(D+4,2)}\nds_write_b64 v{vPa+2}, {vr(D+6,2)}")
    for r in range(4): a(f"ds_write_b32 v{vPa+3}, v{D+8+r} offset:{128*r}")
    arrive(F_P)
    a(f"s_cmp_lt_u32 {sKq}, 2\ns_cbranch_scc1 L_aunit")
    wait_set(F_SK, vL4, 7)
    a("s_branch L_kop\nL_aunit:")
    def gather(dst, n, vaddr, off):
        for q in range(2):
            r = dst + 4*q
            if n == 4: a(f"ds_read_b128 {vr(r,4)}, v{vaddr} offset:{off + q*SSTR}")
            else: a(f"ds_read_b64 {vr(r,2)}, v{vaddr} offset:{off + q*SSTR}\nds_read_b32 v{r+2}, v{vaddr} offset:{off + q*SSTR + 8}")
    def total(dst, n):
        for i in range(n): a(f"v_add_f32 v{dst+i}, v{dst+i}, v{dst+4+i}")
    def pack(dst, src, pat):
        for i, (x, y) in enumerate(pat): a(f"v_cvt_pk_bf16_f32 v{dst+i}, v{src+x}, v{src+y}")
    ps("pwait", "K")
    wait_set(F_P, vL4, 7)
    ps("pdone", "K")
    gather(64, 4, vE16, 0); gather(72, 3, vE8, 4*256); gather(80, 3, vE8, 4*384); gather(88, 3, vE8, 4*512)
    total(64, 4); pack(128, 64, ((0, 1), (2, 3)))
    a(f"ds_write_b64 v{vW8}, v[128:129]")
    total(72, 3); pack(130, 72, ((0, 0), (1, 2)))
    a(f"ds_write_b64 v{vW8}, v[130:131] offset:{2*256}")
    total(80, 3); pack(132, 80, ((0, 0), (0, 1), (1, 1), (2, 2)))
    a(f"ds_write_b128 v{vW16}, v[132:135] offset:{2*512}")
    total(88, 3); pack(136, 88, ((0, 0), (0, 0), (0, 1), (1, 1), (1, 1), (1, 1), (2, 2), (2, 2)))
    a(f"ds_write_b128 v{vW32}, v[136:139] offset:{2*1024}\nds_write_b128 v{vW32}, v[140:143] offset:{2*1024+16}")
    a("L_kop:")
    ps("kready", "K")
    KOP, UOP, ACC, TR, ZR = 192, 64, 24, 8, 58
    a(f"v_mov_b32 v6, v{vL4}")
    def kload(mu): return [f"ds_read_b64_tr_b16 {vr(KOP+4*mu,2)}, v{vKa} offset:{256*mu}", f"ds_read_b64_tr_b16 {vr(KOP+4*mu+2,2)}, v{vKa} offset:{256*mu+32}"]
    KPRE = o["kpre"]
    for mu in range(KPRE):
        for t in kload(mu): a(t)
    for i in range(3): a(f"v_mov_b32 v{ZR+i}, 0")
    ps("kop", "K")
    wait_set(F_U, 6, 7)
    if o["mprio"]: a(f"s_setprio {o['mprio']}")
    ps("uready", "K")
    def uload(nu):
        off = 32 * (31 - nu)
        return [f"ds_read_b64 {vr(UOP+4*nu,2)}, v{vUa} offset:{off}", f"ds_read_b64 {vr(UOP+4*nu+2,2)}, v{vUa} offset:{off+8}"]
    NACC = o["nacc"]; NTR = 4; UP = o["upre"]
    dp = "row_mask:0xf bank_mask:0xf"
    pos = [0]
    def em(t):
        a(t); pos[0] += 1
    done_at = {}
    lastflag = [None]
    def epi(c):
        A = ACC + 4 * (c % NACC)
        cur = TR + 4 * (c % NTR); prv = TR + 4 * ((c - 1) % NTR)
        pT3 = (ACC + 4 * ((c - 1) % NACC) + 3) if c > 0 else ZR
        pT2 = prv if c > 0 else ZR + 1
        pT1 = prv + 1 if c > 0 else ZR + 2
        L = [((c, 0), f"v_add_f32_dpp v{cur}, v{pT3}, v{A+2} wave_ror:1 {dp}", 1, [(("m", c), 9), ((c - NTR + 1, 1), 1), ((c - NTR + 1, 3), 1), ((c - NTR, 6), 1)]),
             ((c, 2), f"v_add_f32_dpp v{cur}, v{A+3}, v{A+2} wave_shr:1 {dp}", 1, [((c, 0), 1)]),
             ((c, 1), f"v_add_f32_dpp v{cur+1}, v{pT2}, v{A+1} wave_ror:1 {dp}", 1, [((c, 2), 1), ((c - 1, 2), 3)]),
             ((c, 4), f"v_add_f32_dpp v{cur+1}, v{cur}, v{A+1} wave_shr:1 {dp}", 1, [((c, 1), 1), ((c, 2), 3)]),
             ((c, 3), f"v_add_f32_dpp v{cur+2}, v{pT1}, v{A} wave_ror:1 {dp}", 1, [((c, 4), 1), ((c - 1, 4), 3)]),
             ((c, 5), f"v_add_f32_dpp v{cur+2}, v{cur+1}, v{A} wave_shr:1 {dp}", 1, [((c, 3), 1), ((c, 4), 3)]),
             ((c, 6), f"ds_write_b32 v{vYa}, v{cur+2} offset:{256*c}", 2, [((c, 5), 2), ((c - 1, 6), 1)])]
        if c % 2 == 1 or c >= 28:
            dep = [((c, 5), 1)] + ([(lastflag[0], 1)] if lastflag[0] else [])
            L += [((c, 7), f"v_mov_b32_e64 v61, {c+1}", 1, dep), ((c, 8), f"ds_write_b32 v{vPr}, v61", 2, [((c, 7), 2), ((c, 6), 1)])]
            lastflag[0] = (c, 8)
        return L
    def ready(item):
        for key, dist in item[3]:
            if key[0] != "m" and key[0] < 0: continue
            if key not in done_at or pos[0] - done_at[key] < dist: return False
        return True
    queue = []
    def fill(slots):
        while slots > 0:
            pick = None
            for n, it in enumerate(queue[:24]):
                if it[2] <= slots and ready(it): pick = n; break
            if pick is None: return
            it = queue.pop(pick); done_at[it[0]] = pos[0]; em(it[1]); slots -= it[2]
    def drain(pred):
        while any(pred(it) for it in queue):
            n0 = len(queue); fill(2)
            if len(queue) == n0: em("s_nop 0")
    STEP = 2 if o["pair"] else 1
    if o["pair"]: UP = 2
    U0N = 4 if o["pair"] else UP
    for nu in range(U0N):
        for t in uload(nu): em(t)
    for c in range(0, 32, STEP):
        nm = c // 2 + 1
        blocks = list(range(c, c + STEP))
        if c in (4, 8, 12, 16, 24): ps(f"c{c}", "K")
        if c == o["mdrop"]: em("s_setprio 0")
        if (c + UP) % 8 == 0 and c + UP < 32:
            bi = (c + UP) // 8
            drain(lambda it: it[0][0] == "f")
            em(f"v_cmp_ne_u32 vcc, 1, v7"); em(f"s_cbranch_vccnz L_us{bi}"); a(f"L_ub{bi}:")
        new = []
        for x in blocks:
            if U0N <= x + UP < 32:
                tl = uload(x + UP)
                new += [(("u", x, 0), tl[0], 1, []), (("u", x, 1), tl[1], 1, [])]
        mu_next = (c + 4) // 2
        if c % 2 == 0 and KPRE <= mu_next < 16:
            tl = kload(mu_next)
            new += [(("k", mu_next, 0), tl[0], 1, []), (("k", mu_next, 1), tl[1], 1, [])]
        if (c + UP + 2) % 8 == 0 and c + UP + 2 < 32:
            bi = (c + UP + 2) // 8
            new = [(("f", c), f"ds_read_b32 v7, v6 offset:{F_U - FL0 + 32*bi}", 1, [])] + new
        queue[0:0] = new
        if c % 2 == 0: drain(lambda it: it[0][0] == "k" and it[0][1] <= c // 2 + 1)
        for x in blocks:
            old = x - NACC
            if old >= 0: drain(lambda it: it[0][0] == old or it[0] == (old + 1, 0))
        drain(lambda it: it[0][0] == "u" and it[0][1] + UP <= blocks[-1] + 2)
        for n, mu in enumerate(range(nm - 1, -1, -1)):
            for x in blocks:
                A = ACC + 4 * (x % NACC)
                em(f"v_mfma_f32_16x16x32_bf16 {vr(A,4)}, {vr(UOP+4*(x-2*mu),4)}, {vr(KOP+4*mu,4)}, {'0' if n == 0 else vr(A,4)}")
                if n == nm - 1:
                    done_at[("m", x)] = pos[0] - 1
                    if not o["noepi"]: queue.extend(epi(x))
                fill(2)
    drain(lambda it: True)
    ps("convend", "K")
    dump_stamps("K")
    a("s_endpgm")
    for bi in range(1, 4):
        a(f"L_us{bi}:")
        wait_set(F_U + 32*bi, 6, 7)
        a(f"s_branch L_ub{bi}")

    GU, GW = 8, 40
    a(f"""L_g7:
s_lshl_b32 s8, {sJ}, 3
s_add_u32 s8, s8, {sW}
s_lshl_b32 s9, s8, 3
v_lshrrev_b32 v7, 3, v1
v_add_u32 v7, s9, v7
v_and_b32 v6, 7, v1
v_mul_u32_u24 v6, 112, v6
v_mul_u32_u24 v7, 896, v7
v_add_u32 v7, v7, v6
s_lshl_b32 s9, s8, 5
s_add_u32 s9, s9, {WS_G}
v_lshrrev_b32 v5, 4, v1
v_lshl_add_u32 v5, v5, 3, s9
v_mov_b32 v{vZ}, 0
s_waitcnt lgkmcnt(0)""")
    for i in range(7): a(f"global_load_dwordx4 {vr(GW+4*i,4)}, v6, {pGw} offset:{16*i}")
    a(f"global_load_dword v70, v{vZ}, {pDbg} sc1\ns_waitcnt vmcnt(0)")
    nonce("g", 70)
    if o["gdelay"]: a(f"s_sleep {o['gdelay']}")
    for i in range(7): a(f"global_load_dwordx4 {vr(GU+4*i,4)}, v7, {pU} offset:{16*i}")
    a("v_mov_b32 v2, 0\nv_mov_b32 v3, 0")
    for i in range(0, 28, 2): a(f"v_dot2_f32_bf16 v2, v{GU+i}, v{GW+i}, v2\nv_dot2_f32_bf16 v3, v{GU+i+1}, v{GW+i+1}, v3")
    a("v_add_f32 v2, v2, v3")
    for sh in (1, 2, 4): a(f"v_add_f32_dpp v2, v2, v2 row_shr:{sh} row_mask:0xf bank_mask:0xf bound_ctrl:0")
    a(f"v_cvt_pk_bf16_f32 v2, 0, v2\nv_mul_f32 v2, {hx(f2u(-L2E))}, v2\nv_exp_f32 v2, v2\nv_add_f32 v2, 1.0, v2\nv_rcp_f32 v2, v2")
    a("v_mov_b32_dpp v3, v2 row_shr:8 row_mask:0xf bank_mask:0xf bound_ctrl:0\nv_cvt_pk_bf16_f32 v2, v3, v2")
    a(f"v_mov_b32 v3, {sNon}\ns_mov_b32 exec_lo, 0x80008000\ns_mov_b32 exec_hi, 0x80008000\nglobal_store_dwordx2 v5, v[2:3], {pWs} sc1")
    a("L_end:\ns_endpgm\nL_codeend:")
    body = a.finish()
    hdr = open("cdna_kernels/" + NAME + ".s.ref").read().split("; Override launch")[0]
    txt = hdr + f"""; One launch: 7 groups of 32 workgroups exchange transposed tiles through d_ws, each workgroup then
; owns two channels (S4 kernel table, two Toeplitz convolutions on MFMA, gated mix); an eighth group computes the gate.
; @launch grid=(256,1,1) block=(512,1,1) lds={LDS_BYTES}
.amdgcn_target "amdgcn-amd-amdhsa--gfx950"
.text
.globl {NAME}_kernel
.p2align 8
.type {NAME}_kernel,@function
{NAME}_kernel:
{body}.section .rodata,"a"
.p2align 6
.amdhsa_kernel {NAME}_kernel
  .amdhsa_next_free_vgpr 256
  .amdhsa_next_free_sgpr 102
  .amdhsa_accum_offset 256
  .amdhsa_group_segment_fixed_size 0
  .amdhsa_kernarg_size 152
  .amdhsa_user_sgpr_count 2
  .amdhsa_user_sgpr_kernarg_segment_ptr 1
  .amdhsa_system_sgpr_workgroup_id_x 1
.end_amdhsa_kernel
"""
    return txt, a.nops

if __name__ == "__main__":
    out = sys.argv[1]
    kw = {k: int(v, 0) for k, v in (x.split("=") for x in sys.argv[2:])}
    txt, nops = gen(**kw)
    open(out, "w").write(txt)
    print("wrote", out, "lines", txt.count("\n"), "nops", nops, "lds", LDS_BYTES)
```

```python
import sys, struct, math
from asmlib import Asm
from alignpass import align

NAME = "gated_mix__ssm_conv_s4__ssm_conv_h3__prompt"
DEFAULT = dict(stamps=0, sleep=1, tprio=1, hprio=0, mprio=0, mdrop=99, nacc=8, lsl=1, fastflag=1, probe=0, pwg=0,
               bper=63, prof=0, upre=3, pf=1, upos=1, nt=0, gmap=0x65743210, allpoll=1, addtid=1, skpos=1, gdelay=0, fsh=13, bsep=1, skt=1, kpre=4, ovl=1, spf=0, blate=1, bat=16, nohelp=0, noepi=0, pair=0, skipst=0, gearly=0, spec=3, al=1, pfv=0)

FL0 = 0
F_U, F_P, F_PR, F_SK = FL0, FL0 + 128, FL0 + 160, FL0 + 192
SC0 = 256; SROW = 272; SSTR = 53 * SROW
KSTR = 4160; K0 = SC0 + 4 * SSTR
USTR_PH = 1088; USTR = 4 * USTR_PH; U0 = K0 + 4 * KSTR
G0 = U0 + 4 * USTR
Y0 = G0 + 8192; YSTR = 8192
LDS_BYTES = Y0 + 4 * YSTR
WS_G = 224 * 16384
WS_FL = WS_G + 8192
WS_STAMP = 64 << 20

def f2u(x): return struct.unpack("<I", struct.pack("<f", x))[0]
def f32(x): return struct.unpack("<f", struct.pack("<f", x))[0]
def hx(x): return "0x%08x" % (x & 0xffffffff)
def vr(a, n=1): return f"v{a}" if n == 1 else f"v[{a}:{a+n-1}]"

sG, sJ, sW, sP = "s4", "s5", "s6", "s7"
pU, pAre, pAim, pBre, pBim, pCre, pCim, pLdt = (f"s[{16+2*i}:{17+2*i}]" for i in range(8))
pDs, pQ, pK, pV, pSh, pSk, pSd, pGw = (f"s[{32+2*i}:{33+2*i}]" for i in range(8))
pOut, pDbg, pWs = "s[48:49]", "s[50:51]", "s[52:53]"
srdK = "s[56:59]"
sKq, sCh, sHf, sRnd = "s54", "s55", "s60", "s61"
sHI, sSel0, sSel1, sSpin = "s62", "s63", "s64", "s65"
sDt, sDs, sSd, sI2P, sNon = "s66", "s67", "s68", "s69", "s70"

PROF = {1: dict(T={"start": 0, "karg": 1, "k3": 2, "loaded": 3, "issued": 4, "acked": 5, "sigout": 6, "polled": 7},
                K={"start": 0, "params": 1, "anch": 2, "chain": 3, "rend": 4, "pwait": 5, "pdone": 6, "kready": 7}),
        3: dict(T={"start": 0, "loaded": 1, "fma": 2, "vok": 3, "kvst": 4, "uok": 5, "issued": 6, "acked": 7},
                K={"start": 0, "params": 1, "anch": 2, "chain": 3, "rend": 4, "pwait": 5, "pdone": 6, "kready": 7}),
        4: dict(T={"start": 0, "issued": 1, "acked": 2, "polled": 3, "payload": 4, "gok": 5, "last": 6, "end": 7},
                K={"start": 0, "uready": 1, "c4": 2, "c8": 3, "c12": 4, "c16": 5, "c24": 6, "convend": 7}),
        9: dict(T={"start": 0, "end": 7}, K={"start": 0}),
        2: dict(T={"start": 0, "issued": 1, "acked": 2, "polled": 3, "payload": 4, "gok": 5, "last": 6, "end": 7},
                K={"start": 0, "params": 1, "rend": 2, "kop": 3, "uready": 4, "c8": 5, "c16": 6, "convend": 7})}

def gen(**kw):
    o = dict(DEFAULT); o.update(kw)
    if o["stamps"] and not o["prof"]: o["prof"] = 2
    a = Asm()
    NT = lambda bit: " nt" if o["nt"] & bit else ""
    lab = [0]
    sop = "s_memtime" if o["stamps"] == 3 else "s_memrealtime"
    def ps(name, role):
        if not o["stamps"]: return
        tab = PROF[o["prof"]]
        if name in tab[role]: a(f"{sop} s[{72+2*tab[role][name]}:{73+2*tab[role][name]}]")
    def dump_stamps(role):
        if not o["stamps"]: return
        a("s_waitcnt lgkmcnt(0)")
        if o["stamps"] == 5:
            i = o["probe"]
            if (role == "T") == (i < 100):
                i %= 100
                a(f"s_cmp_lg_u32 s2, {o['pwg']}\ns_cbranch_scc1 L_end\ns_sub_u32 s8, s{72+2*i}, s72\ns_mul_i32 s8, s8, 20\ns_min_u32 s8, s8, 100000\ns_memrealtime s[10:11]\ns_waitcnt lgkmcnt(0)\ns_add_u32 s8, s8, s10")
                a(f"L_pr{role}:\ns_sleep 4\ns_memrealtime s[10:11]\ns_waitcnt lgkmcnt(0)\ns_sub_u32 s9, s8, s10\ns_cmp_gt_i32 s9, 0\ns_cbranch_scc1 L_pr{role}")
            return
        a(f"s_lshl_b32 s8, s2, 3\ns_add_u32 s8, s8, {sW}\ns_lshl_b32 s8, s8, 6\ns_add_u32 s8, s8, {WS_STAMP}")
        a("s_mov_b64 exec, 1\nv_mov_b32 v2, s8")
        for i in range(8):
            a(f"v_mov_b32 v3, s{72+2*i}\nglobal_store_dword v2, v3, {pWs} offset:{4*i}")
        a("s_waitcnt vmcnt(0)")

    vMe, vL4, vOne, vDummy = 226, 228, 229, 57
    def sync_regs(t=2):
        a(f"s_lshl_b32 s14, {sKq}, 2\ns_add_u32 s14, s14, {FL0}\nv_mov_b32 v{vMe}, s14\nv_and_b32 v{t}, 3, v1\nv_lshlrev_b32 v{t}, 2, v{t}\nv_add_u32 v{vL4}, {FL0}, v{t}\nv_mov_b32 v{vOne}, 1")
    def arrive(ev): a(f"ds_write_b32 v{vMe}, v{vOne} offset:{ev - FL0}")
    def wait_set(ev, vidx, vt, slp=0):
        lab[0] += 1; L = f"L_w{lab[0]}"
        a(f"s_mov_b32 {sSpin}, 0\n{L}:\nds_read_b32 v{vt}, v{vidx} offset:{ev - FL0}")
        a(f"s_waitcnt lgkmcnt(0)\nv_cmp_ne_u32 vcc, 1, v{vt}\ns_cbranch_vccz {L}_ok")
        if slp: a(f"s_sleep {slp}")
        a(f"s_add_u32 {sSpin}, {sSpin}, 1\ns_bitcmp0_b32 {sSpin}, 19\ns_cbranch_scc1 {L}\n{L}_ok:")
    L2E = math.log2(math.e); L2Eh = f32(L2E); L2El = L2E - L2Eh
    I2P = 1.0 / (2.0 * math.pi); I2Ph = f32(I2P); I2Pl = I2P - I2Ph
    NON, vZ = 63, 4
    def nonce(tag, NON=63):
        a(f"s_mov_b32 {sSpin}, 0\nL_non{tag}:\nv_readfirstlane_b32 {sNon}, v{NON}\ns_cmp_lg_u32 {sNon}, 0\ns_cbranch_scc1 L_non{tag}_ok")
        a(f"s_sleep 4\nglobal_load_dword v{NON}, v{vZ}, {pDbg} sc1\ns_waitcnt vmcnt(0)\ns_add_u32 {sSpin}, {sSpin}, 1\ns_bitcmp0_b32 {sSpin}, 16\ns_cbranch_scc1 L_non{tag}\nL_non{tag}_ok:")

    a("s_cmp_ge_u32 s2, 256\ns_cbranch_scc1 L_end")
    ps("start", "T")
    a(f"""L_pc:
s_load_dwordx16 s[32:47], s[0:1], 64
s_load_dwordx16 s[16:31], s[0:1], 0
v_lshrrev_b32 v2, 6, v0
s_load_dwordx4 s[48:51], s[0:1], 128
s_load_dwordx2 s[52:53], s[0:1], 144
v_readfirstlane_b32 {sW}, v2
v_and_b32 v1, 63, v0""")
    if o["pfv"]:
        n = o["pfv"]
        a(f"s_cmp_lg_u32 {sW}, 7\ns_cbranch_scc1 L_npv\ns_getpc_b64 s[12:13]\nL_pc3:\ns_lshr_b32 s8, s2, 3\ns_mul_i32 s8, s8, {128 * 4}\ns_and_b32 s8, s8, {16384 - 128 * n}\nv_and_b32 v3, {n - 1}, v0\nv_lshl_add_u32 v3, v3, 7, s8\nv_min_u32 v3, L_codeend-L_pc-4, v3\ns_sub_u32 s12, s12, L_pc3-L_pc\ns_subb_u32 s13, s13, 0\nglobal_load_dword v{vDummy}, v3, s[12:13]\nL_npv:")
    a(f"""
s_and_b32 s8, s2, 7
s_lshl_b32 s8, s8, 2
s_lshr_b32 {sG}, {hx(o["gmap"])}, s8
s_and_b32 {sG}, {sG}, 7
s_lshr_b32 {sJ}, s2, 3
s_cmp_eq_u32 {sG}, 7
s_cbranch_scc1 L_g7
v_lshlrev_b32 v5, 2, v1
v_mov_b32 v8, 0
ds_write_b32 v5, v8 offset:{FL0}
s_lshl_b32 {sP}, {sG}, 5
s_add_u32 {sP}, {sP}, {sJ}
s_and_b32 {sKq}, {sW}, 3
s_lshr_b32 {sCh}, {sKq}, 1
s_and_b32 {sHf}, {sW}, 1
s_cmp_ge_u32 {sW}, 4
s_cbranch_scc1 L_kpre""")

    vB, vB2, vKA, vSt = 10, 11, 12, 9
    U_, V_, K_, SH = 16, 24, 32, 44
    a(f"""s_lshl_b32 s8, {sCh}, 5
s_lshl_b32 s9, {sJ}, 6
s_add_u32 s8, s8, s9
s_mul_i32 s8, s8, 896
s_lshl_b32 s10, {sHf}, 6
s_lshl_b32 s11, {sG}, 7
s_add_u32 s10, s10, s11
s_add_u32 s8, s8, s10
v_lshrrev_b32 v2, 4, v1
v_and_b32 v3, 15, v1
v_mul_u32_u24 v4, {8*896}, v2
v_lshl_add_u32 v4, v3, 2, v4
v_add_u32 v{vB}, s8, v4
v_add_u32 v{vB2}, {4*896}, v{vB}
v_subrev_u32 v{vKA}, {3*896}, v{vB}
s_lshl_b32 s10, s10, 2
v_lshl_add_u32 v8, v3, 4, s10
s_mov_b32 s58, 1835008
s_mov_b32 s59, 0x20000
s_waitcnt lgkmcnt(0)
s_mov_b32 s56, s36
s_mov_b32 s57, s37
s_barrier""")
    ps("karg", "T")
    vSk, vSkw, vFd = 216, 217, 218
    rows = [((vB, 896*i) if i < 4 else (vB2, 896*(i-4))) for i in range(8)]
    for i in range(3): a(f"buffer_load_dword v{K_+i}, v{vKA}, {srdK}, 0 offen offset:{896*i}{NT(1)}")
    for i, (b, off) in enumerate(rows): a(f"buffer_load_dword v{K_+3+i}, v{b}, {srdK}, 0 offen offset:{off}{NT(1)}")
    a(f"global_load_dwordx4 v[{SH}:{SH+3}], v8, {pSh}")
    for i, (b, off) in enumerate(rows): a(f"global_load_dword v{V_+i}, v{b}, {pV} offset:{off}{NT(1)}")
    for i, (b, off) in enumerate(rows): a(f"global_load_dword v{U_+i}, v{b}, {pU} offset:{off}{NT(2)}")
    SKT = 48
    def sk_loads(): a(f"global_load_dwordx4 {vr(SKT,4)}, v{vSk}, {pSk}{NT(4)}\nglobal_load_dwordx4 {vr(SKT+4,4)}, v{vSk+3}, {pSk}{NT(4)}")
    a(f"v_lshlrev_b32 v2, 4, v0\ns_lshl_b32 s9, {sP}, 13\nv_add_u32 v{vSk}, s9, v2\nv_add_u32 v{vSk+3}, 4096, v{vSk}\nv_add_u32 v{vSkw}, {K0 + 2*KSTR + 32}, v2\nv_lshrrev_b32 v2, 4, v1")
    X = 2 if o["skt"] == 0 else 0
    if o["skt"] == 0: sk_loads()
    a(f"s_lshl_b32 s14, {sP}, 2\ns_load_dword {sSd}, {pSd}, s14")
    if o["pf"] or o["fastflag"]:
        a(f"s_cmp_lg_u32 {sKq}, 3\ns_cbranch_scc1 L_nopf")
        if o["fastflag"]: a(f"s_lshl_b32 s9, {sG}, 13\ns_and_b32 s10, {sJ}, 3\ns_lshl_b32 s10, s10, 7\ns_add_u32 s9, s9, s10\ns_add_u32 s9, s9, {WS_FL}\ns_load_dword s92, {pWs}, s9")
        if o["pf"]:
            a(f"s_getpc_b64 s[12:13]\nL_pc2:\ns_lshl_b32 s8, {sJ}, 9\ns_min_u32 s8, s8, L_codeend-L_pc-512\ns_sub_u32 s8, s8, L_pc2-L_pc\ns_ashr_i32 s9, s8, 31\ns_add_u32 s12, s12, s8\ns_addc_u32 s13, s13, s9")
            for i in range(4): a(f"s_load_dword s{93+i}, s[12:13], {128*i}")
        a("L_nopf:")
    def sk_touch():
        a(f"s_lshl_b32 s8, {sP}, 13\ns_lshl_b32 s9, {sW}, 11\ns_add_u32 s8, s8, s9\ns_add_u32 s90, s42, s8\ns_addc_u32 s91, s43, 0")
        a.raw = True
        for i in range(14): a(f"s_load_dword s{92 + i % 8}, s[90:91], {128*i}")
        a.raw = False
    if o["spf"] == 1: sk_touch()
    if o["tprio"]: a(f"s_setprio {o['tprio']}")
    vFA, vFB, vF1 = 18+182, 19+182, 20+182
    vP0, vG0, vUw, vGw = 204, 208, 210, 211
    hY, hU, hG, hO = 212, 213, 214, 215
    a(f"""s_mov_b32 {sHI}, 0xffff0000
s_mov_b32 {sSel0}, 0x05040100
s_mov_b32 {sSel1}, 0x07060302
s_lshl_b32 s8, {sG}, 5
s_lshl_b32 s9, {sHf}, 4
s_add_u32 s8, s8, s9
s_lshl_b32 s8, s8, 14
s_lshl_b32 s9, {sJ}, 9
s_add_u32 s8, s8, s9
s_lshl_b32 s9, {sCh}, 6
s_add_u32 s8, s8, s9
v_lshlrev_b32 v{vSt}, 14, v3
v_lshl_add_u32 v{vSt}, v2, 4, v{vSt}
v_add_u32 v{vSt}, s8, v{vSt}
v_mov_b32 v{vZ}, 0""")
    sync_regs()
    a(f"""s_lshl_b32 s8, {sG}, 13
s_add_u32 s8, s8, {WS_FL}
s_lshr_b32 s9, {sJ}, 4
s_lshl_b32 s9, s9, 8
s_add_u32 s9, s9, s8
v_lshl_add_u32 v{vFA}, v1, 2, s9
v_add_u32 v{vFB}, 4096, v{vFA}
s_lshl_b32 s9, {sHf}, 8
s_add_u32 s8, s8, s9
s_lshl_b32 s9, {sJ}, 3
s_add_u32 s8, s8, s9
s_lshl_b32 s9, {sCh}, 2
s_add_u32 s8, s8, s9
v_mov_b32 v{vF1}, s8
v_add_u32 v{vF1+1}, 4096, v{vF1}
s_lshl_b32 s8, {sP}, 14
v_lshlrev_b32 v2, 4, v0
v_add_u32 v{vP0}, s8, v2
v_add_u32 v{vP0+1}, 4096, v{vP0}
v_add_u32 v{vP0+2}, 8192, v{vP0}
v_add_u32 v{vP0+3}, 12288, v{vP0}
v_lshrrev_b32 v2, 4, v1
v_lshlrev_b32 v2, 10, v2
v_and_b32 v3, 15, v1
v_lshl_add_u32 v2, v3, 4, v2
s_lshl_b32 s9, {sW}, 8
v_add_u32 v2, s9, v2
v_add_u32 v{vG0}, {WS_G}, v2
v_add_u32 v{vG0+1}, {WS_G + 4096}, v2
v_add_u32 v{vGw}, {G0}, v2
v_and_b32 v2, 3, v0
v_mul_u32_u24 v{vUw}, {USTR_PH}, v2
v_bfe_u32 v2, v0, 3, 2
v_mul_u32_u24 v3, {USTR}, v2
v_add_u32 v{vUw}, v{vUw}, v3
v_bfe_u32 v2, v0, 2, 1
v_lshlrev_b32 v2, 4, v2
v_lshrrev_b32 v3, 5, v0
v_lshl_add_u32 v2, v3, 5, v2
v_sub_u32 v{vUw}, v{vUw}, v2
v_add_u32 v{vUw}, {U0 + 1008 - 768}, v{vUw}
v_lshlrev_b32 v2, 2, v0
v_add_u32 v{hY}, {Y0}, v2
v_add_u32 v{hG}, {G0}, v2
v_mul_u32_u24 v{hO}, 896, v0
s_lshl_b32 s9, {sP}, 2
v_add_u32 v{hO}, s9, v{hO}
v_and_b32 v2, 3, v1
v_mul_u32_u24 v3, {USTR_PH}, v2
v_lshrrev_b32 v2, 2, v0
v_lshlrev_b32 v2, 1, v2
v_sub_u32 v3, v3, v2
v_add_u32 v{hU}, {U0 + 1022}, v3""")
    KU, WT, AC, VT, PC = 64, 86, 96, 112, 120
    a(f"s_waitcnt vmcnt({25+X})")
    ps("k3", "T")
    for i in range(3): a(f"v_lshlrev_b32 v{KU+2*i}, 16, v{K_+i}\nv_and_b32 v{KU+2*i+1}, {sHI}, v{K_+i}")
    a(f"s_waitcnt vmcnt({16+X})")
    for i in range(3, 11): a(f"v_lshlrev_b32 v{KU+2*i}, 16, v{K_+i}\nv_and_b32 v{KU+2*i+1}, {sHI}, v{K_+i}")
    for ch in range(2):
        for t in range(4):
            src = SH + 2*ch + t//2
            a(f"v_lshlrev_b32 v{WT+2*t+ch}, 16, v{src}" if t % 2 == 0 else f"v_and_b32 v{WT+2*t+ch}, {sHI}, v{src}")
    ps("loaded", "T")
    for t in range(4):
        for r in range(8):
            k = KU + 2*(r + 3 - t)
            if t == 0: a(f"v_pk_mul_f32 {vr(AC+2*r,2)}, {vr(k,2)}, {vr(WT,2)}")
            else: a(f"v_pk_fma_f32 {vr(AC+2*r,2)}, {vr(k,2)}, {vr(WT+2*t,2)}, {vr(AC+2*r,2)}")
    ps("fma", "T")
    a(f"s_waitcnt vmcnt({8+X})")
    ps("vok", "T")
    for r in range(8):
        t = VT + 2*(r % 4)
        a(f"v_lshlrev_b32 v{t}, 16, v{V_+r}\nv_and_b32 v{t+1}, {sHI}, v{V_+r}")
        a(f"v_pk_mul_f32 {vr(AC+2*r,2)}, {vr(AC+2*r,2)}, {vr(t,2)}")
    def transpose2(b0, b1):
        for st, pr in (("32", ((0, 2), (1, 3))), ("16", ((0, 1), (2, 3)))):
            for base in (b0, b1):
                for x, y in pr: a(f"v_permlane{st}_swap_b32 v{base+3-x}, v{base+3-y}")
    for ch in range(2):
        for rho in range(4):
            a(f"v_cvt_pk_bf16_f32 v{PC+8+4*ch+3-rho}, v{AC+2*(rho+4)+ch}, v{AC+2*rho+ch}")
    transpose2(PC + 8, PC + 12)
    for ch in range(2): a(f"global_store_dwordx4 v{vSt}, {vr(PC+8+4*ch,4)}, {pWs} offset:{(2+ch)*128} sc1")
    ps("kvst", "T")
    a(f"s_waitcnt vmcnt({2+X})")
    ps("uok", "T")
    for ch in range(2):
        for rho in range(4):
            a(f"v_perm_b32 v{PC+4*ch+3-rho}, v{U_+rho}, v{U_+rho+4}, {sSel0 if ch == 0 else sSel1}")
    transpose2(PC, PC + 4)
    for ch in range(2): a(f"global_store_dwordx4 v{vSt}, {vr(PC+4*ch,4)}, {pWs} offset:{ch*128} sc1")
    a(f"global_load_dword v{NON}, v{vZ}, {pDbg} sc1")
    if o["skt"] == 1: sk_loads()
    ps("issued", "T")
    if o["spf"] == 2:
        a("s_waitcnt lgkmcnt(0)"); sk_touch()
    a(f"v_cmp_eq_u32 vcc, 0, v0\n{'s_waitcnt lgkmcnt(0)' if o['spf'] != 2 else 's_nop 0'}\nv_mov_b32 v2, {sSd}\nv_cndmask_b32 v{vFd}, 0, v2, vcc")
    a(f"v_mov_b32 v30, 0\nv_mov_b32 v31, 0\nv_lshlrev_b32 v72, 16, v{vFd}\nv_and_b32 v73, {sHI}, v{vFd}\nv_mov_b32 v74, 0xffff")
    def sk_stage():
        for i in range(2):
            r = SKT + 4*i
            a(f"v_lshlrev_b32 v75, 16, v{r}\nv_add_f32 v75, v75, v{72+i}\nv_cvt_pk_bf16_f32 v75, v75, v75\nv_bfi_b32 v{r}, v74, v75, v{r}\nds_write_b128 v{vSkw}, {vr(r,4)} offset:{KSTR*i}")
        arrive(F_SK)
    if o["skt"] == 0:
        a("s_waitcnt vmcnt(5)"); sk_stage()
    a(f"s_waitcnt vmcnt({2 if o['skt'] == 1 else 0})")
    ps("acked", "T")
    nonce("a")
    a.raw = True
    if o["fastflag"]: a(f"s_mov_b64 exec, 1\nglobal_store_dword v{vF1}, v{NON}, {pWs}\ns_mov_b64 exec, -1")
    a(f"global_load_dword v19, v{vFA}, {pWs} sc1")
    def bstore(): a(f"s_mov_b64 exec, 1\nglobal_store_dword v{vF1+1}, v{NON}, {pWs} sc1\ns_mov_b64 exec, -1")
    if not o["blate"]: bstore()
    ps("sigout", "T")
    PL, GL = 136, 152
    sDone = "s3"
    a(f"s_mov_b32 {sSpin}, 0\ns_mov_b32 {sDone}, 0\ns_lshl_b32 s13, {sW}, 2\ns_waitcnt vmcnt({0 if o['blate'] else 1})\nv_cmp_eq_u32 s[10:11], {sNon}, v19")
    if o["skt"] == 1: sk_stage()
    if o["skt"] == 2:
        sk_loads(); a("s_waitcnt vmcnt(0)"); sk_stage()
    def put(b, tag, wait):
        a(f"s_cmp_gt_u32 {sDone}, {b}\ns_cbranch_scc1 L_put{tag}\ns_waitcnt vmcnt({wait})")
        a(f"ds_write_b128 v{vUw}, {vr(PL+4*b,4)} offset:{256*(3-b)}\nds_write_b32 v{vMe}, v{vOne} offset:{F_U - FL0 + 32*b}\ns_mov_b32 {sDone}, {b+1}\nL_put{tag}:")
    a.raw = True
    for i in range(4):
        a(f"s_branch L_chk{i}\nL_poll{i}:" if i == 0 else f"s_branch L_chk{i}\nL_poll{i}:")
        for b in range(i): put(b, f"{i}_{b}", 0)
        a(f"s_add_u32 {sSpin}, {sSpin}, 1")
        if o["blate"]:
            a(f"s_cmp_lg_u32 {sSpin}, {o['bat']}\ns_cbranch_scc1 L_nob{i}"); bstore(); a(f"L_nob{i}:")
        if o["fastflag"]:
            a(f"s_and_b32 s8, {sSpin}, {o['bper']}\ns_cbranch_scc0 L_pollb{i}\nglobal_load_dword v19, v{vFA}, {pWs} sc1\ns_branch L_pollc{i}\nL_pollb{i}:")
        a(f"global_load_dword v19, v{vFB}, {pWs} sc1\nL_pollc{i}:\ns_waitcnt vmcnt(0)\nv_cmp_eq_u32 vcc, {sNon}, v19\ns_or_b64 s[10:11], s[10:11], vcc")
        a(f"s_bitcmp1_b32 {sSpin}, 17\ns_cbranch_scc1 L_iss{i}\nL_chk{i}:")
        a(f"s_lshr_b32 s8, s{10 + i//2}, s13")
        if i % 2: a("s_lshr_b32 s8, s8, 16")
        a(f"s_and_b32 s8, s8, 15\ns_cmp_eq_u32 s8, 15\ns_cbranch_scc0 L_poll{i}\nL_iss{i}:")
        if i == 0: ps("polled", "T")
        a(f"global_load_dwordx4 {vr(PL+4*i,4)}, v{vP0+i}, {pWs} sc1")
    for i in range(2): a(f"global_load_dwordx4 {vr(GL+4*i,4)}, v{vG0+i}, {pWs} sc1")
    if o["blate"]: bstore()
    for b in range(4):
        put(b, f"e_{b}", 5 - b + o["blate"])
        if b == 0: ps("payload", "T")
    a.raw = False
    a(f"s_setprio {o['hprio']}")
    a(f"s_mov_b32 {sSpin}, 0\ns_waitcnt vmcnt({o['blate']})\nL_gchk:")
    a(f"v_cmp_ne_u32 vcc, {sNon}, v{GL+1}\nv_cmp_ne_u32 s[8:9], {sNon}, v{GL+3}\nv_cmp_ne_u32 s[12:13], {sNon}, v{GL+5}\nv_cmp_ne_u32 s[14:15], {sNon}, v{GL+7}")
    a("s_or_b64 s[8:9], s[8:9], vcc\ns_or_b64 s[12:13], s[12:13], s[14:15]\ns_or_b64 s[8:9], s[8:9], s[12:13]\ns_cbranch_scc0 L_gok")
    a("s_sleep 4")
    for i in range(2): a(f"global_load_dwordx4 {vr(GL+4*i,4)}, v{vG0+i}, {pWs} sc1")
    a(f"s_waitcnt vmcnt(0)\ns_add_u32 {sSpin}, {sSpin}, 1\ns_bitcmp0_b32 {sSpin}, 16\ns_cbranch_scc1 L_gchk\nL_gok:")
    for i in range(2):
        g = GL + 4*i
        a(f"v_and_b32 v{g+3}, {sHI}, v{g+2}\nv_lshlrev_b32 v{g+2}, 16, v{g+2}\nv_and_b32 v{g+1}, {sHI}, v{g}\nv_lshlrev_b32 v{g}, 16, v{g}")
        a(f"ds_write_b128 v{vGw}, {vr(g,4)} offset:{4096*i}")
    ps("gok", "T")
    if o["nohelp"]: a("s_branch L_hend")
    a(f"s_add_u32 s9, {sW}, 1\ns_mov_b32 s10, 0")
    a(f"L_help:\ns_mov_b32 {sSpin}, 0\nL_hwait:\nds_read_b32 v3, v{vL4} offset:{F_PR - FL0}\ns_waitcnt lgkmcnt(0)\nv_cmp_gt_u32 vcc, s9, v3\ns_cbranch_vccz L_hgo")
    if o["lsl"]: a(f"s_sleep {o['lsl']}")
    a(f"s_add_u32 {sSpin}, {sSpin}, 1\ns_bitcmp0_b32 {sSpin}, 19\ns_cbranch_scc1 L_hwait\nL_hgo:")
    a(f"""ds_read_b32 v28, v{hY} offset:{2*YSTR}
ds_read_b32 v29, v{hY} offset:{3*YSTR}
ds_read_u16_d16_hi v30, v{hU}
ds_read_u16_d16_hi v31, v{hU} offset:{USTR}
ds_read_b32 v26, v{hY}
ds_read_b32 v27, v{hY} offset:{YSTR}
ds_read_b32 v25, v{hG}
v_add_u32 v{hY}, 1024, v{hY}
v_add_u32 v{hG}, 1024, v{hG}
v_subrev_u32 v{hU}, 128, v{hU}
s_add_u32 s9, s9, 4
s_add_u32 s10, s10, 1
s_waitcnt lgkmcnt(0)
v_mul_f32 v28, v28, v30
v_mul_f32 v29, v29, v31
v_sub_f32 v26, v26, v28
v_sub_f32 v27, v27, v29
v_fmac_f32 v28, v25, v26
v_fmac_f32 v29, v25, v27
v_cvt_pk_bf16_f32 v32, v28, v29
{"s_cmp_le_u32 s10, %d" % o["skipst"] if o["skipst"] else ""}
{"s_cbranch_scc1 L_nost" if o["skipst"] else ""}
global_store_dword v{hO}, v32, {pOut}
L_nost:
v_add_u32 v{hO}, {256*896}, v{hO}
s_cmp_lt_u32 s10, {7 if o["spec"] & 2 else 8}
s_cbranch_scc1 L_help""")
    if o["spec"] & 2:
        a.raw = True
        a(f"""ds_read_u16_d16_hi v30, v{hU}
ds_read_u16_d16_hi v31, v{hU} offset:{USTR}
ds_read_b32 v25, v{hG}
s_mov_b32 {sSpin}, 0
L_lw:
ds_read_b32 v3, v{vL4} offset:{F_PR - FL0}
ds_read_b32 v28, v{hY} offset:{2*YSTR}
ds_read_b32 v29, v{hY} offset:{3*YSTR}
ds_read_b32 v26, v{hY}
ds_read_b32 v27, v{hY} offset:{YSTR}
s_waitcnt lgkmcnt(4)
v_cmp_gt_u32 vcc, s9, v3
s_cbranch_vccz L_lgo
s_waitcnt lgkmcnt(0)
s_add_u32 {sSpin}, {sSpin}, 1
s_bitcmp0_b32 {sSpin}, 19
s_cbranch_scc1 L_lw
L_lgo:
s_waitcnt lgkmcnt(2)
v_mul_f32 v28, v28, v30
v_mul_f32 v29, v29, v31
s_waitcnt lgkmcnt(0)
v_sub_f32 v26, v26, v28
v_sub_f32 v27, v27, v29
v_fmac_f32 v28, v25, v26
v_fmac_f32 v29, v25, v27
v_cvt_pk_bf16_f32 v32, v28, v29
global_store_dword v{hO}, v32, {pOut}""")
        a.raw = False
    a("L_hend:")
    ps("last", "T")
    if o["stamps"]:
        a("s_waitcnt vmcnt(0)"); ps("end", "T")
    dump_stamps("T")
    a("s_endpgm")

    RAW, vPa, vSw, vRa, vRb, vPar = 200, 214, 218, 219, 220, 224
    a(f"""L_kpre:
s_lshl_b32 s11, {sP}, 1
s_add_u32 s11, s11, {sCh}
s_lshl_b32 s14, s11, 9
s_lshl_b32 s15, {sHf}, 8
s_add_u32 s14, s14, s15
v_lshl_add_u32 v{vPar}, v1, 2, s14
s_lshl_b32 s14, {sP}, 2
s_waitcnt lgkmcnt(0)""")
    a(f"""s_add_u32 s8, s2, {sKq}
s_cmp_lg_u32 s8, 0
s_cbranch_scc1 L_nonon
s_memrealtime s[12:13]
s_mov_b64 exec, 1
v_mov_b32 v3, 0
v_mov_b32 v4, 0
s_waitcnt lgkmcnt(0)
s_or_b32 s12, s12, 1
v_mov_b32 v2, s12
global_atomic_cmpswap v4, v[2:3], {pDbg} sc1
s_mov_b64 exec, -1
L_nonon:""")
    for i, p in enumerate((pAre, pAim, pBre, pBim, pCre, pCim)): a(f"global_load_dword v{RAW+i}, v{vPar}, {p}")
    a(f"s_load_dword {sDt}, {pLdt}, s14\ns_load_dword {sDs}, {pDs}, s14")
    a(f"""s_barrier
s_mov_b32 {sHI}, 0xffff0000
s_mul_i32 s11, {sKq}, {SSTR}
s_add_u32 s11, s11, {SC0}
s_mov_b32 m0, s11
v_and_b32 v13, 31, v1
v_lshrrev_b32 v14, 5, v1
v_lshl_add_u32 v{vSw}, v1, 2, s11
v_mul_u32_u24 v15, {SROW}, v13
v_lshl_add_u32 v15, v14, 4, v15
v_add_u32 v{vRa}, s11, v15
v_add_u32 v{vRb}, {21*SROW}, v{vRa}
s_mov_b32 {sI2P}, {hx(f2u(I2Ph))}
s_mov_b32 {sRnd}, 0""")
    D = 176
    a(f"""v_mov_b32 v12, 0x3f80
s_lshl_b32 s14, {sCh}, 4
s_sub_u32 s14, 16, s14
v_mov_b32 v11, {hx(f2u(L2Eh))}
ds_write_b32 v{vSw}, v12 offset:{21*SROW}
s_waitcnt lgkmcnt(0)
s_lshl_b32 {sDt}, {sDt}, s14
s_and_b32 {sDt}, {sDt}, {sHI}
v_mov_b32 v13, {sDt}
v_mul_f32 v14, {hx(f2u(L2Eh))}, v13
v_fma_f32 v15, v13, v11, -v14
v_fmac_f32 v15, {hx(f2u(L2El))}, v13
v_exp_f32 v14, v14
v_mul_f32 v15, {hx(f2u(math.log(2.0)))}, v15
s_lshl_b32 {sDs}, {sDs}, s14
v_fma_f32 v14, v14, v15, v14
s_and_b32 {sDs}, {sDs}, {sHI}
v_cvt_pk_bf16_f32 v14, 0, v14
s_cmp_eq_u32 {sHf}, 0
s_cselect_b32 {sDs}, {sDs}, 0
v_readfirstlane_b32 {sDt}, v14""")
    a("s_waitcnt vmcnt(0)")
    ps("params", "K")
    for i in range(6): a(f"v_lshlrev_b32 v{8+i}, 16, v{RAW+i}")
    SK = 24
    vSkW = 240
    A2, TH, TL = 140, 141, 142
    Z1, Z2, Z4, Z8, Z256, W, X, Yc, Fc = 146, 148, 150, 152, 154, 156, 158, 160, 162
    PK = 166; OA = 64; OB = 80
    def cm(d, x, z):
        t = d if d != x else 14
        return (f"v_pk_mul_f32 {vr(t,2)}, {vr(x,2)}, {vr(z,2)} op_sel_hi:[0,1]",
                f"v_pk_fma_f32 {vr(d,2)}, {vr(x,2)}, {vr(z,2)}, {vr(t,2)} op_sel:[1,1,0] op_sel_hi:[1,0,1] neg_lo:[1,0,0]")
    def cmul(d, x, z):
        for t in cm(d, x, z): a(t)
    def swr(r, row): return f"ds_write_addtid_b32 v{r} offset:{row*SROW}" if o["addtid"] else f"ds_write_b32 v{vSw}, v{r} offset:{row*SROW}"
    anchors = ((1, Z1, 136), (8, Z8, 138), (256, Z256, 144))
    def anchor_scalar():
        L = [f"v_mul_f32 v8, {sDt}, v8", f"v_mul_f32 v9, {sDt}, v9", f"v_mul_f32 v{A2}, {hx(f2u(L2Eh))}, v8", f"v_mul_f32 v{TH}, {sI2P}, v9",
             f"v_fma_f32 v{TL}, v9, {sI2P}, -v{TH}", f"v_fmac_f32 v{TL}, {hx(f2u(I2Pl))}, v9"]
        for e, Z, Mx in anchors:
            if e == 1: L += [f"v_exp_f32 v{Mx}, v{A2}", f"v_fract_f32 v{Mx+1}, v{TH}"]
            else:
                c = hx(f2u(float(e)))
                L += [f"v_mul_f32 v{Mx}, {c}, v{A2}", f"v_mul_f32 v{Mx+1}, {c}, v{TH}", f"v_exp_f32 v{Mx}, v{Mx}", f"v_fract_f32 v{Mx+1}, v{Mx+1}"]
        for e, Z, Mx in anchors:
            L += [f"v_add_f32 v{Mx+1}, v{Mx+1}, v{TL}" if e == 1 else f"v_fmac_f32 v{Mx+1}, {hx(f2u(float(e)))}, v{TL}"]
        for e, Z, Mx in anchors: L += [f"v_cos_f32 v{Z}, v{Mx+1}", f"v_sin_f32 v{Z+1}, v{Mx+1}"]
        return L
    for t in anchor_scalar(): a(t)
    a("L_round:")
    cmul(W, 12, 10)
    for e, Z, Mx in anchors: a(f"v_pk_mul_f32 {vr(Z,2)}, {vr(Z,2)}, {vr(Mx,2)} op_sel_hi:[1,0]")
    a(f"v_mul_f32 v{W}, {sDt}, v{W}\nv_mul_f32 v{W+1}, {sDt}, v{W+1}")
    cmul(Z2, Z1, Z1)
    cmul(Z4, Z2, Z2)
    ps("anch", "K")
    pk = [0]
    def cvt(row, src, neg):
        r = PK + (pk[0] % 8); pk[0] += 1
        return f"v_cvt_pk_bf16_f32 v{r}, v{src}, {'-' if neg else ''}v{src+1}", swr(r, row)
    steps = [(None, W, None, 0)]; prev = W
    for r in range(1, 8):
        d = X if prev != X else Yc
        steps.append((d, prev, Z1, r)); prev = d
    steps.append((W, W, Z256, 8)); prev = W
    for r in range(9, 12):
        d = X if prev != X else Yc
        steps.append((d, prev, Z2, r)); prev = d
    steps += [(W, W, Z256, 12), (X, W, Z4, 13), (W, W, Z256, 14), (X, W, Z4, 15)]
    steps += [(W, W, Z256, 16 + i) for i in range(5)]
    fsteps = [(None, Z8, None, 22)]; prev = Z8
    for jx in range(2, 22):
        d = Fc if prev != Fc else Fc + 2
        fsteps.append((d, prev, Z8, 21 + jx)); prev = d
    last21 = prev; last20 = Fc if prev != Fc else Fc + 2
    steps.append((Z2, Z8, Z8, None))
    pa, pb = last20, last21
    tail = []
    for jx in range(22, 32, 2):
        da = Z1 if pa != Z1 else X; db = Z4 if pb != Z4 else Yc
        tail.append(((da, pa, Z2, 21 + jx), (db, pb, Z2, 22 + jx))); pa, pb = da, db
    seq = []
    for n in range(max(len(steps), len(fsteps))):
        seq.append([(lst[n], neg) for lst, neg in ((fsteps, False), (steps, True)) if n < len(lst)])
    seq += [[(x, False), (y, False)] for x, y in tail]
    late = []
    for n, grp in enumerate(seq):
        m0, m1, cv, wr = [], [], [], []
        for (d, x, z, row), neg in grp:
            if d is not None:
                p, q = cm(d, x, z); m0.append(p); m1.append(q); x = d
            if row is not None:
                c_, w_ = cvt(row, x, neg); cv.append(c_); wr.append(w_)
        for t in m0 + late[:1] + m1 + late[1:] + cv: a(t)
        late = wr
    for t in late: a(t)
    ps("chain", "K")
    first = [True]
    def kmf(q): a(f"v_mfma_f32_32x32x16_bf16 {vr(D,16)}, {vr(OA+4*(q%4),4)}, {vr(OB+4*(q%4),4)}, {0 if (q == 0 and first[0]) else vr(D,16)}")
    def mphase(fill, head=6, mid=3, tail=4):
        fill = list(fill)
        def some(n):
            for _ in range(n):
                if fill: a(fill.pop(0))
        for q in range(8):
            a(f"ds_read_b128 {vr(OA+4*(q%4),4)}, v{vRa} offset:{32*q}\nds_read_b128 {vr(OB+4*(q%4),4)}, v{vRb} offset:{32*q}")
            if q == 2: some(head)
            if q >= 3: kmf(q - 3); some(mid)
        for q in (5, 6, 7): kmf(q); some(tail)
        some(99)
    a(f"s_cmp_lg_u32 {sRnd}, 0\ns_cbranch_scc1 L_last\ns_mov_b32 {sRnd}, 1")
    mphase([f"v_and_b32 v{8+i}, {sHI}, v{RAW+i}" for i in range(6)] + anchor_scalar())
    a("s_branch L_round\nL_last:")
    first[0] = False
    keep = a.lines; a.lines = []
    vKa, vUa, vYa, vPr = 2, 3, 4, 5
    vE8, vE16, vW8, vW16, vW32, vFold = 234, 235, 236, 237, 238, 239
    a(f"""s_mul_i32 s11, {sKq}, {SSTR}
s_add_u32 s11, s11, {SC0}
v_and_b32 v13, 31, v1
v_lshrrev_b32 v14, 5, v1
v_lshlrev_b32 v15, 5, v13
v_lshl_add_u32 v15, v14, 4, v15
v_add_u32 v{vPa}, s11, v15
v_cmp_eq_u32 vcc, 0, v14
v_lshlrev_b32 v15, 4, v13
v_add_u32 v15, {4*256}, v15
v_lshlrev_b32 v12, 3, v13
v_add_u32 v12, {4*384}, v12
v_cndmask_b32 v11, v12, v15, vcc
v_add_u32 v{vPa+1}, s11, v11
v_add_u32 v15, 8, v15
v_add_u32 v12, 256, v12
v_cndmask_b32 v11, v12, v15, vcc
v_add_u32 v{vPa+2}, s11, v11
v_lshlrev_b32 v15, 2, v13
v_lshl_add_u32 v15, v14, 9, v15
v_add_u32 v15, {4*512}, v15
v_add_u32 v{vPa+3}, s11, v15""")
    sync_regs(13)
    a(f"""s_mul_i32 s13, {sKq}, {KSTR}
s_add_u32 s13, s13, {K0 + 32}
v_lshl_add_u32 v{vW8}, v1, 3, s13
v_lshl_add_u32 v{vW16}, v1, 4, s13
v_lshl_add_u32 v{vW32}, v1, 5, s13
v_mov_b32 v8, 0
v_mov_b32 v9, 0
v_mov_b32 v10, 0
v_mov_b32 v11, 0
s_sub_u32 s14, s13, 32
v_and_b32 v6, 1, v1
v_lshl_add_u32 v6, v6, 4, s14
ds_write_b128 v6, v[8:11]
s_mul_i32 s14, {sHf}, {2*SSTR}
s_add_u32 s14, s14, {SC0}
v_lshl_add_u32 v{vE8}, v1, 3, s14
v_lshl_add_u32 v{vE16}, v1, 4, s14
v_and_b32 v6, 3, v1
v_bfe_u32 v7, v1, 2, 2
v_lshrrev_b32 v12, 4, v1
v_add_u32 v13, v6, v7
v_lshlrev_b32 v13, 3, v13
v_lshl_add_u32 v13, v12, 6, v13
s_sub_u32 s14, s13, 24
v_add_u32 v{vKa}, s14, v13
v_mul_u32_u24 v14, {USTR_PH}, v6
v_lshl_add_u32 v14, v12, 4, v14
v_lshlrev_b32 v13, 3, v7
v_sub_u32 v14, v14, v13
s_mul_i32 s15, {sKq}, {USTR}
s_add_u32 s14, s15, {U0 + 1016 - 32*31}
v_add_u32 v{vUa}, s14, v14
v_mul_u32_u24 v14, {USTR_PH}, v7
v_lshl_add_u32 v14, v6, 4, v14
s_add_u32 s14, s15, {U0 + 1024}
v_add_u32 v14, s14, v14
ds_write_b128 v14, v[8:11]
s_lshl_b32 s14, {sKq}, 13
s_add_u32 s14, s14, {Y0}
v_lshl_add_u32 v{vYa}, v1, 2, s14
s_lshl_b32 s14, {sKq}, 2
s_add_u32 s14, s14, {F_PR}
v_mov_b32 v{vPr}, s14""")
    a(f"v_cmp_eq_u32 vcc, 0, v1\nv_mov_b32 v7, {sDs}\ns_nop 0\nv_cndmask_b32 v{vFold}, 0, v7, vcc")
    moved = a.lines; a.lines = keep
    mphase(moved, head=14, mid=6, tail=8)
    ps("rend", "K")
    a(f"v_add_f32 v{D}, v{D}, v{vFold}")
    a(f"ds_write_b128 v{vPa}, {vr(D,4)}\nds_write_b64 v{vPa+1}, {vr(D+4,2)}\nds_write_b64 v{vPa+2}, {vr(D+6,2)}")
    for r in range(4): a(f"ds_write_b32 v{vPa+3}, v{D+8+r} offset:{128*r}")
    arrive(F_P)
    a(f"s_cmp_lt_u32 {sKq}, 2\ns_cbranch_scc1 L_aunit")
    wait_set(F_SK, vL4, 7)
    a("s_branch L_kop\nL_aunit:")
    def gather(dst, n, vaddr, off):
        for q in range(2):
            r = dst + 4*q
            if n == 4: a(f"ds_read_b128 {vr(r,4)}, v{vaddr} offset:{off + q*SSTR}")
            else: a(f"ds_read_b64 {vr(r,2)}, v{vaddr} offset:{off + q*SSTR}\nds_read_b32 v{r+2}, v{vaddr} offset:{off + q*SSTR + 8}")
    def total(dst, n):
        for i in range(n): a(f"v_add_f32 v{dst+i}, v{dst+i}, v{dst+4+i}")
    def pack(dst, src, pat):
        for i, (x, y) in enumerate(pat): a(f"v_cvt_pk_bf16_f32 v{dst+i}, v{src+x}, v{src+y}")
    ps("pwait", "K")
    wait_set(F_P, vL4, 7)
    ps("pdone", "K")
    gather(64, 4, vE16, 0); gather(72, 3, vE8, 4*256); gather(80, 3, vE8, 4*384); gather(88, 3, vE8, 4*512)
    total(64, 4); pack(128, 64, ((0, 1), (2, 3)))
    a(f"ds_write_b64 v{vW8}, v[128:129]")
    total(72, 3); pack(130, 72, ((0, 0), (1, 2)))
    a(f"ds_write_b64 v{vW8}, v[130:131] offset:{2*256}")
    total(80, 3); pack(132, 80, ((0, 0), (0, 1), (1, 1), (2, 2)))
    a(f"ds_write_b128 v{vW16}, v[132:135] offset:{2*512}")
    total(88, 3); pack(136, 88, ((0, 0), (0, 0), (0, 1), (1, 1), (1, 1), (1, 1), (2, 2), (2, 2)))
    a(f"ds_write_b128 v{vW32}, v[136:139] offset:{2*1024}\nds_write_b128 v{vW32}, v[140:143] offset:{2*1024+16}")
    a("L_kop:")
    ps("kready", "K")
    KOP, UOP, ACC, TR, ZR = 192, 64, 24, 8, 58
    a(f"v_mov_b32 v6, v{vL4}")
    def kload(mu): return [f"ds_read_b64_tr_b16 {vr(KOP+4*mu,2)}, v{vKa} offset:{256*mu}", f"ds_read_b64_tr_b16 {vr(KOP+4*mu+2,2)}, v{vKa} offset:{256*mu+32}"]
    KPRE = o["kpre"]
    for mu in range(KPRE):
        for t in kload(mu): a(t)
    for i in range(3): a(f"v_mov_b32 v{ZR+i}, 0")
    ps("kop", "K")
    def uload(nu):
        off = 32 * (31 - nu)
        return [f"ds_read_b64 {vr(UOP+4*nu,2)}, v{vUa} offset:{off}", f"ds_read_b64 {vr(UOP+4*nu+2,2)}, v{vUa} offset:{off+8}"]
    SPEC_U = o["spec"] & 1
    if SPEC_U:
        a.raw = True
        a(f"s_mov_b32 {sSpin}, 0\nL_u0:\nds_read_b32 v7, v6 offset:{F_U - FL0}")
        for nu in range(o["upre"]):
            for t in uload(nu): a(t)
        a(f"s_waitcnt lgkmcnt({2*o['upre']})\nv_cmp_ne_u32 vcc, 1, v7\ns_cbranch_vccz L_u0_ok\ns_waitcnt lgkmcnt(0)\ns_add_u32 {sSpin}, {sSpin}, 1\ns_bitcmp0_b32 {sSpin}, 19\ns_cbranch_scc1 L_u0\nL_u0_ok:\ns_waitcnt lgkmcnt({2*o['upre'] - 2})")
        a.raw = False
    else:
        wait_set(F_U, 6, 7)
    if o["mprio"]: a(f"s_setprio {o['mprio']}")
    ps("uready", "K")
    NACC = o["nacc"]; NTR = 4; UP = o["upre"]
    dp = "row_mask:0xf bank_mask:0xf"
    pos = [0]
    def em(t):
        a(t); pos[0] += 1
    done_at = {}
    lastflag = [None]
    def epi(c):
        A = ACC + 4 * (c % NACC)
        cur = TR + 4 * (c % NTR); prv = TR + 4 * ((c - 1) % NTR)
        pT3 = (ACC + 4 * ((c - 1) % NACC) + 3) if c > 0 else ZR
        pT2 = prv if c > 0 else ZR + 1
        pT1 = prv + 1 if c > 0 else ZR + 2
        L = [((c, 0), f"v_add_f32_dpp v{cur}, v{pT3}, v{A+2} wave_ror:1 {dp}", 1, [(("m", c), 9), ((c - NTR + 1, 1), 1), ((c - NTR + 1, 3), 1), ((c - NTR, 6), 1)]),
             ((c, 2), f"v_add_f32_dpp v{cur}, v{A+3}, v{A+2} wave_shr:1 {dp}", 1, [((c, 0), 1)]),
             ((c, 1), f"v_add_f32_dpp v{cur+1}, v{pT2}, v{A+1} wave_ror:1 {dp}", 1, [((c, 2), 1), ((c - 1, 2), 3)]),
             ((c, 4), f"v_add_f32_dpp v{cur+1}, v{cur}, v{A+1} wave_shr:1 {dp}", 1, [((c, 1), 1), ((c, 2), 3)]),
             ((c, 3), f"v_add_f32_dpp v{cur+2}, v{pT1}, v{A} wave_ror:1 {dp}", 1, [((c, 4), 1), ((c - 1, 4), 3)]),
             ((c, 5), f"v_add_f32_dpp v{cur+2}, v{cur+1}, v{A} wave_shr:1 {dp}", 1, [((c, 3), 1), ((c, 4), 3)]),
             ((c, 6), f"ds_write_b32 v{vYa}, v{cur+2} offset:{256*c}", 2, [((c, 5), 2), ((c - 1, 6), 1)])]
        if c % 2 == 1 or c >= 28:
            dep = [((c, 5), 1)] + ([(lastflag[0], 1)] if lastflag[0] else [])
            L += [((c, 7), f"v_mov_b32_e64 v61, {c+1}", 1, dep), ((c, 8), f"ds_write_b32 v{vPr}, v61", 2, [((c, 7), 2), ((c, 6), 1)])]
            lastflag[0] = (c, 8)
        return L
    def ready(item):
        for key, dist in item[3]:
            if key[0] != "m" and key[0] < 0: continue
            if key not in done_at or pos[0] - done_at[key] < dist: return False
        return True
    queue = []
    def fill(slots):
        while slots > 0:
            pick = None
            for n, it in enumerate(queue[:24]):
                if it[2] <= slots and ready(it): pick = n; break
            if pick is None: return
            it = queue.pop(pick); done_at[it[0]] = pos[0]; em(it[1]); slots -= it[2]
    def drain(pred):
        while any(pred(it) for it in queue):
            n0 = len(queue); fill(2)
            if len(queue) == n0: em("s_nop 0")
    STEP = 2 if o["pair"] else 1
    if o["pair"]: UP = 2
    U0N = 4 if o["pair"] else UP
    for nu in range(U0N):
        if not SPEC_U:
            for t in uload(nu): em(t)
    for c in range(0, 32, STEP):
        nm = c // 2 + 1
        blocks = list(range(c, c + STEP))
        if c in (4, 8, 12, 16, 24): ps(f"c{c}", "K")
        if c == o["mdrop"]: em("s_setprio 0")
        if (c + UP) % 8 == 0 and c + UP < 32:
            bi = (c + UP) // 8
            drain(lambda it: it[0][0] == "f")
            em(f"v_cmp_ne_u32 vcc, 1, v7"); em(f"s_cbranch_vccnz L_us{bi}"); a(f"L_ub{bi}:")
        new = []
        for x in blocks:
            if U0N <= x + UP < 32:
                tl = uload(x + UP)
                new += [(("u", x, 0), tl[0], 1, []), (("u", x, 1), tl[1], 1, [])]
        mu_next = (c + 4) // 2
        if c % 2 == 0 and KPRE <= mu_next < 16:
            tl = kload(mu_next)
            new += [(("k", mu_next, 0), tl[0], 1, []), (("k", mu_next, 1), tl[1], 1, [])]
        if (c + UP + 2) % 8 == 0 and c + UP + 2 < 32:
            bi = (c + UP + 2) // 8
            new = [(("f", c), f"ds_read_b32 v7, v6 offset:{F_U - FL0 + 32*bi}", 1, [])] + new
        queue[0:0] = new
        if c % 2 == 0: drain(lambda it: it[0][0] == "k" and it[0][1] <= c // 2 + 1)
        for x in blocks:
            old = x - NACC
            if old >= 0: drain(lambda it: it[0][0] == old or it[0] == (old + 1, 0))
        drain(lambda it: it[0][0] == "u" and it[0][1] + UP <= blocks[-1] + 2)
        if SPEC_U and c == 1: em("s_waitcnt lgkmcnt(4)")
        if SPEC_U and c == 2: em("s_waitcnt lgkmcnt(4)")
        for n, mu in enumerate(range(nm - 1, -1, -1)):
            for x in blocks:
                A = ACC + 4 * (x % NACC)
                em(f"v_mfma_f32_16x16x32_bf16 {vr(A,4)}, {vr(UOP+4*(x-2*mu),4)}, {vr(KOP+4*mu,4)}, {'0' if n == 0 else vr(A,4)}")
                if n == nm - 1:
                    done_at[("m", x)] = pos[0] - 1
                    if not o["noepi"]: queue.extend(epi(x))
                fill(2)
    drain(lambda it: True)
    ps("convend", "K")
    dump_stamps("K")
    a("s_endpgm")
    for bi in range(1, 4):
        a(f"L_us{bi}:")
        wait_set(F_U + 32*bi, 6, 7)
        a(f"s_branch L_ub{bi}")

    GU, GW = 8, 40
    a(f"""L_g7:
s_lshl_b32 s8, {sJ}, 3
s_add_u32 s8, s8, {sW}
s_lshl_b32 s9, s8, 3
v_lshrrev_b32 v7, 3, v1
v_add_u32 v7, s9, v7
v_and_b32 v6, 7, v1
v_mul_u32_u24 v6, 112, v6
v_mul_u32_u24 v7, 896, v7
v_add_u32 v7, v7, v6
s_lshl_b32 s9, s8, 5
s_add_u32 s9, s9, {WS_G}
v_lshrrev_b32 v5, 4, v1
v_lshl_add_u32 v5, v5, 3, s9
v_mov_b32 v{vZ}, 0
s_waitcnt lgkmcnt(0)""")
    for i in range(7): a(f"global_load_dwordx4 {vr(GW+4*i,4)}, v6, {pGw} offset:{16*i}")
    if not o["gearly"]:
        a(f"global_load_dword v70, v{vZ}, {pDbg} sc1\ns_waitcnt vmcnt(0)")
        nonce("g", 70)
    if o["gdelay"]: a(f"s_sleep {o['gdelay']}")
    for i in range(7): a(f"global_load_dwordx4 {vr(GU+4*i,4)}, v7, {pU} offset:{16*i}")
    if o["gearly"]: a(f"global_load_dword v70, v{vZ}, {pDbg} sc1")
    a("v_mov_b32 v2, 0\nv_mov_b32 v3, 0")
    for i in range(0, 28, 2): a(f"v_dot2_f32_bf16 v2, v{GU+i}, v{GW+i}, v2\nv_dot2_f32_bf16 v3, v{GU+i+1}, v{GW+i+1}, v3")
    a("v_add_f32 v2, v2, v3")
    for sh in (1, 2, 4): a(f"v_add_f32_dpp v2, v2, v2 row_shr:{sh} row_mask:0xf bank_mask:0xf bound_ctrl:0")
    a(f"v_cvt_pk_bf16_f32 v2, 0, v2\nv_mul_f32 v2, {hx(f2u(-L2E))}, v2\nv_exp_f32 v2, v2\nv_add_f32 v2, 1.0, v2\nv_rcp_f32 v2, v2")
    a("v_mov_b32_dpp v3, v2 row_shr:8 row_mask:0xf bank_mask:0xf bound_ctrl:0\nv_cvt_pk_bf16_f32 v2, v3, v2")
    if o["gearly"]:
        a("s_waitcnt vmcnt(0)")
        nonce("g", 70)
    a(f"v_mov_b32 v3, {sNon}\ns_mov_b32 exec_lo, 0x80008000\ns_mov_b32 exec_hi, 0x80008000\nglobal_store_dwordx2 v5, v[2:3], {pWs} sc1")
    a("L_end:\ns_endpgm\nL_codeend:")
    body = a.finish()
    if o["al"]:
        body, nn, nw = align(body, lambda b: f'.amdgcn_target "amdgcn-amd-amdhsa--gfx950"\n.text\n{NAME}_kernel:\n{b}')
        print("alignment: padded", nn, "widened", nw)
    hdr = open("cdna_kernels/" + NAME + ".s.ref").read().split("; Override launch")[0]
    txt = hdr + f"""; One launch: 7 groups of 32 workgroups exchange transposed tiles through d_ws, each workgroup then
; owns two channels (S4 kernel table, two Toeplitz convolutions on MFMA, gated mix); an eighth group computes the gate.
; @launch grid=(256,1,1) block=(512,1,1) lds={LDS_BYTES}
.amdgcn_target "amdgcn-amd-amdhsa--gfx950"
.text
.globl {NAME}_kernel
.p2align 8
.type {NAME}_kernel,@function
{NAME}_kernel:
{body}.section .rodata,"a"
.p2align 6
.amdhsa_kernel {NAME}_kernel
  .amdhsa_next_free_vgpr 256
  .amdhsa_next_free_sgpr 102
  .amdhsa_accum_offset 256
  .amdhsa_group_segment_fixed_size 0
  .amdhsa_kernarg_size 152
  .amdhsa_user_sgpr_count 2
  .amdhsa_user_sgpr_kernarg_segment_ptr 1
  .amdhsa_system_sgpr_workgroup_id_x 1
.end_amdhsa_kernel
"""
    return txt, a.nops

if __name__ == "__main__":
    out = sys.argv[1]
    kw = {k: int(v, 0) for k, v in (x.split("=") for x in sys.argv[2:])}
    txt, nops = gen(**kw)
    open(out, "w").write(txt)
    print("wrote", out, "lines", txt.count("\n"), "nops", nops, "lds", LDS_BYTES)
```

```python
import sys, struct, math
from asmlib import Asm
from alignpass import align

NAME = "gated_mix__ssm_conv_s4__ssm_conv_h3__prompt"
DEFAULT = dict(stamps=0, sleep=1, tprio=1, hprio=0, mprio=0, mdrop=99, nacc=8, lsl=1, fastflag=1, probe=0, pwg=0,
               bper=63, prof=0, upre=3, pf=0, upos=1, nt=0, gmap=0x65743210, allpoll=1, addtid=1, skpos=1, gdelay=0, fsh=13, bsep=1, skt=1, kpre=8, ovl=1, spf=0, blate=1, bat=16, nohelp=0, noepi=0, pair=0, skipst=0, gearly=0, spec=3, al=2, pfv=1, kin=1, gsk=0, jit=0, parlate=0, u0n=3, fl0=0, ost=0)

FL0 = 0
F_U, F_P, F_PR, F_SK = FL0, FL0 + 128, FL0 + 160, FL0 + 192
SC0 = 256; SROW = 272; SSTR = 53 * SROW
KSTR = 4160; K0 = SC0 + 4 * SSTR
USTR_PH = 1088; USTR = 4 * USTR_PH; U0 = K0 + 4 * KSTR
G0 = U0 + 4 * USTR
Y0 = G0 + 8192; YSTR = 8192
LDS_BYTES = Y0 + 4 * YSTR
WS_G = 224 * 16384
WS_FL = WS_G + 8192
WS_STAMP = 64 << 20

def f2u(x): return struct.unpack("<I", struct.pack("<f", x))[0]
def f32(x): return struct.unpack("<f", struct.pack("<f", x))[0]
def hx(x): return "0x%08x" % (x & 0xffffffff)
def vr(a, n=1): return f"v{a}" if n == 1 else f"v[{a}:{a+n-1}]"

sG, sJ, sW, sP = "s4", "s5", "s6", "s7"
pU, pAre, pAim, pBre, pBim, pCre, pCim, pLdt = (f"s[{16+2*i}:{17+2*i}]" for i in range(8))
pDs, pQ, pK, pV, pSh, pSk, pSd, pGw = (f"s[{32+2*i}:{33+2*i}]" for i in range(8))
pOut, pDbg, pWs = "s[48:49]", "s[50:51]", "s[52:53]"
srdK = "s[56:59]"
sKq, sCh, sHf, sRnd = "s54", "s55", "s60", "s61"
sHI, sSel0, sSel1, sSpin = "s62", "s63", "s64", "s65"
sDt, sDs, sSd, sI2P, sNon = "s66", "s67", "s68", "s69", "s70"

PROF = {1: dict(T={"start": 0, "karg": 1, "k3": 2, "loaded": 3, "issued": 4, "acked": 5, "sigout": 6, "polled": 7},
                K={"start": 0, "params": 1, "anch": 2, "chain": 3, "rend": 4, "pwait": 5, "pdone": 6, "kready": 7}),
        3: dict(T={"start": 0, "loaded": 1, "fma": 2, "vok": 3, "kvst": 4, "uok": 5, "issued": 6, "acked": 7},
                K={"start": 0, "params": 1, "anch": 2, "chain": 3, "rend": 4, "pwait": 5, "pdone": 6, "kready": 7}),
        4: dict(T={"start": 0, "issued": 1, "acked": 2, "polled": 3, "payload": 4, "gok": 5, "last": 6, "end": 7},
                K={"start": 0, "uready": 1, "c4": 2, "c8": 3, "c12": 4, "c16": 5, "c24": 6, "convend": 7}),
        9: dict(T={"start": 0, "end": 7}, K={"start": 0}),
        2: dict(T={"start": 0, "issued": 1, "acked": 2, "polled": 3, "payload": 4, "gok": 5, "last": 6, "end": 7},
                K={"start": 0, "params": 1, "rend": 2, "kop": 3, "uready": 4, "c8": 5, "c16": 6, "convend": 7})}

def gen(**kw):
    o = dict(DEFAULT); o.update(kw)
    if o["stamps"] and not o["prof"]: o["prof"] = 2
    a = Asm()
    NT = lambda bit: " nt" if o["nt"] & bit else ""
    lab = [0]
    sop = "s_memtime" if o["stamps"] == 3 else "s_memrealtime"
    def ps(name, role):
        if not o["stamps"]: return
        tab = PROF[o["prof"]]
        if name in tab[role]: a(f"{sop} s[{72+2*tab[role][name]}:{73+2*tab[role][name]}]")
    def dump_stamps(role):
        if not o["stamps"]: return
        a("s_waitcnt lgkmcnt(0)")
        if o["stamps"] == 5:
            i = o["probe"]
            if (role == "T") == (i < 100):
                i %= 100
                a(f"s_cmp_lg_u32 s2, {o['pwg']}\ns_cbranch_scc1 L_end\ns_sub_u32 s8, s{72+2*i}, s72\ns_mul_i32 s8, s8, 20\ns_min_u32 s8, s8, 100000\ns_memrealtime s[10:11]\ns_waitcnt lgkmcnt(0)\ns_add_u32 s8, s8, s10")
                a(f"L_pr{role}:\ns_sleep 4\ns_memrealtime s[10:11]\ns_waitcnt lgkmcnt(0)\ns_sub_u32 s9, s8, s10\ns_cmp_gt_i32 s9, 0\ns_cbranch_scc1 L_pr{role}")
            return
        a(f"s_lshl_b32 s8, s2, 3\ns_add_u32 s8, s8, {sW}\ns_lshl_b32 s8, s8, 6\ns_add_u32 s8, s8, {WS_STAMP}")
        a("s_mov_b64 exec, 1\nv_mov_b32 v2, s8")
        for i in range(8):
            a(f"v_mov_b32 v3, s{72+2*i}\nglobal_store_dword v2, v3, {pWs} offset:{4*i}")
        a("s_waitcnt vmcnt(0)")

    vMe, vL4, vOne, vDummy = 226, 228, 229, 57
    def sync_regs(t=2):
        a(f"s_lshl_b32 s14, {sKq}, 2\ns_add_u32 s14, s14, {FL0}\nv_mov_b32 v{vMe}, s14\nv_and_b32 v{t}, 3, v1\nv_lshlrev_b32 v{t}, 2, v{t}\nv_add_u32 v{vL4}, {FL0}, v{t}\nv_mov_b32 v{vOne}, 1")
    site = [0]
    def jitter():
        if not o["jit"]: return
        site[0] += 1; lab[0] += 1; L = f"L_j{lab[0]}"
        a(f"s_mul_i32 s98, s2, {0x9E37 + 2*site[0]}\ns_mul_i32 s99, {sW}, {0x2F1B + 6*site[0]}\ns_add_u32 s98, s98, s99\ns_add_u32 s98, s98, {o['jit'] * 7919 + site[0] * 131}\ns_lshr_b32 s98, s98, 5\ns_and_b32 s98, s98, 31\ns_cmp_gt_u32 s98, 7\ns_cbranch_scc1 {L}e\n{L}:\ns_sleep 20\ns_sub_u32 s98, s98, 1\ns_cmp_gt_i32 s98, 0\ns_cbranch_scc1 {L}\n{L}e:")
    def arrive(ev): a(f"ds_write_b32 v{vMe}, v{vOne} offset:{ev - FL0}")
    def wait_set(ev, vidx, vt, slp=0):
        lab[0] += 1; L = f"L_w{lab[0]}"
        a(f"s_mov_b32 {sSpin}, 0\n{L}:\nds_read_b32 v{vt}, v{vidx} offset:{ev - FL0}")
        a(f"s_waitcnt lgkmcnt(0)\nv_cmp_ne_u32 vcc, 1, v{vt}\ns_cbranch_vccz {L}_ok")
        if slp: a(f"s_sleep {slp}")
        a(f"s_add_u32 {sSpin}, {sSpin}, 1\ns_bitcmp0_b32 {sSpin}, 19\ns_cbranch_scc1 {L}\n{L}_ok:")
    L2E = math.log2(math.e); L2Eh = f32(L2E); L2El = L2E - L2Eh
    I2P = 1.0 / (2.0 * math.pi); I2Ph = f32(I2P); I2Pl = I2P - I2Ph
    NON, vZ = 63, 4
    def nonce(tag, NON=63):
        a(f"s_mov_b32 {sSpin}, 0\nL_non{tag}:\nv_readfirstlane_b32 {sNon}, v{NON}\ns_cmp_lg_u32 {sNon}, 0\ns_cbranch_scc1 L_non{tag}_ok")
        a(f"s_sleep 4\nglobal_load_dword v{NON}, v{vZ}, {pDbg} sc1\ns_waitcnt vmcnt(0)\ns_add_u32 {sSpin}, {sSpin}, 1\ns_bitcmp0_b32 {sSpin}, 16\ns_cbranch_scc1 L_non{tag}\nL_non{tag}_ok:")

    a("s_cmp_ge_u32 s2, 256\ns_cbranch_scc1 L_end")
    ps("start", "T")
    a("L_pc:")
    if o["pfv"]:
        a(f"""s_getpc_b64 s[12:13]
L_pc3:
s_lshr_b32 {sJ}, s2, 3
v_bfe_u32 v3, v0, 6, 2
s_lshl_b32 s8, {sJ}, 9
s_load_dwordx16 s[32:47], s[0:1], 64
v_lshl_add_u32 v3, v3, 7, s8
v_min_u32 v3, L_codeend-L_pc3-4, v3
global_load_dword v{vDummy}, v3, s[12:13]""")
    else:
        a("s_load_dwordx16 s[32:47], s[0:1], 64")
    a(f"""s_load_dwordx16 s[16:31], s[0:1], 0
v_lshrrev_b32 v2, 6, v0
s_load_dwordx4 s[48:51], s[0:1], 128
s_load_dwordx2 s[52:53], s[0:1], 144
v_readfirstlane_b32 {sW}, v2
v_and_b32 v1, 63, v0
s_and_b32 s8, s2, 7
s_lshl_b32 s8, s8, 2
s_lshr_b32 {sG}, {hx(o["gmap"])}, s8
s_and_b32 {sG}, {sG}, 7
{"" if o["pfv"] else "s_lshr_b32 s5, s2, 3"}
s_cmp_eq_u32 {sG}, 7
s_cbranch_scc1 L_g7
v_lshlrev_b32 v5, 2, v1
v_mov_b32 v8, 0
ds_write_b32 v5, v8 offset:{FL0}
s_lshl_b32 {sP}, {sG}, 5
s_add_u32 {sP}, {sP}, {sJ}
s_and_b32 {sKq}, {sW}, 3
s_lshr_b32 {sCh}, {sKq}, 1
s_and_b32 {sHf}, {sW}, 1
s_cmp_ge_u32 {sW}, 4""")
    RAW, vPa, vSw, vRa, vRb, vPar = 200, 214, 218, 219, 220, 224
    def par_loads():
        for i, p in enumerate((pAre, pAim, pBre, pBim, pCre, pCim)): a(f"global_load_dword v{RAW+i}, v{vPar}, {p}")
    def kpre():
        a(f"""L_kpre:
s_lshl_b32 s11, {sP}, 1
s_add_u32 s11, s11, {sCh}
s_lshl_b32 s14, s11, 9
s_lshl_b32 s15, {sHf}, 8
s_add_u32 s14, s14, s15
v_lshl_add_u32 v{vPar}, v1, 2, s14
s_lshl_b32 s14, {sP}, 2
s_waitcnt lgkmcnt(0)""")
        a(f"s_add_u32 s8, s2, {sKq}\ns_cmp_eq_u32 s8, 0\ns_cbranch_scc1 L_mknon\nL_nonon:")
        if not o["parlate"]: par_loads()
        a(f"s_load_dword {sDt}, {pLdt}, s14\ns_load_dword {sDs}, {pDs}, s14")
    if o["kin"]:
        a("s_cbranch_scc0 L_tpre")
        kpre()
        a("s_barrier\ns_branch L_kmain2\nL_tpre:")
    else:
        a("s_cbranch_scc1 L_kpre")

    vB, vB2, vKA, vSt = 10, 11, 12, 9
    U_, V_, K_, SH = 16, 24, 32, 44
    a(f"""s_lshl_b32 s8, {sCh}, 5
s_lshl_b32 s9, {sJ}, 6
s_add_u32 s8, s8, s9
s_mul_i32 s8, s8, 896
s_lshl_b32 s10, {sHf}, 6
s_lshl_b32 s11, {sG}, 7
s_add_u32 s10, s10, s11
s_add_u32 s8, s8, s10
v_lshrrev_b32 v2, 4, v1
v_and_b32 v3, 15, v1
v_mul_u32_u24 v4, {8*896}, v2
v_lshl_add_u32 v4, v3, 2, v4
v_add_u32 v{vB}, s8, v4
v_add_u32 v{vB2}, {4*896}, v{vB}
v_subrev_u32 v{vKA}, {3*896}, v{vB}
s_lshl_b32 s10, s10, 2
v_lshl_add_u32 v8, v3, 4, s10
s_mov_b32 s58, 1835008
s_mov_b32 s59, 0x20000
s_waitcnt lgkmcnt(0)
s_mov_b32 s56, s36
s_mov_b32 s57, s37
s_barrier""")
    ps("karg", "T"); jitter()
    vSk, vSkw, vFd = 216, 217, 218
    rows = [((vB, 896*i) if i < 4 else (vB2, 896*(i-4))) for i in range(8)]
    for i in range(3): a(f"buffer_load_dword v{K_+i}, v{vKA}, {srdK}, 0 offen offset:{896*i}{NT(1)}")
    for i, (b, off) in enumerate(rows): a(f"buffer_load_dword v{K_+3+i}, v{b}, {srdK}, 0 offen offset:{off}{NT(1)}")
    a(f"global_load_dwordx4 v[{SH}:{SH+3}], v8, {pSh}")
    for i, (b, off) in enumerate(rows): a(f"global_load_dword v{V_+i}, v{b}, {pV} offset:{off}{NT(1)}")
    for i, (b, off) in enumerate(rows): a(f"global_load_dword v{U_+i}, v{b}, {pU} offset:{off}{NT(2)}")
    SKT = 48
    def sk_loads(): a(f"global_load_dwordx4 {vr(SKT,4)}, v{vSk}, {pSk}{NT(4)}\nglobal_load_dwordx4 {vr(SKT+4,4)}, v{vSk+3}, {pSk}{NT(4)}")
    a(f"v_lshlrev_b32 v2, 4, v0\ns_lshl_b32 s9, {sP}, 13\nv_add_u32 v{vSk}, s9, v2\nv_add_u32 v{vSk+3}, 4096, v{vSk}\nv_add_u32 v{vSkw}, {K0 + 2*KSTR + 32}, v2\nv_lshrrev_b32 v2, 4, v1")
    X = 2 if o["skt"] == 0 else 0
    if o["skt"] == 0: sk_loads()
    a(f"s_lshl_b32 s14, {sP}, 2\ns_load_dword {sSd}, {pSd}, s14")
    if o["pf"] or o["fastflag"]:
        a(f"s_cmp_lg_u32 {sKq}, 3\ns_cbranch_scc1 L_nopf")
        if o["fastflag"]: a(f"s_lshl_b32 s9, {sG}, 13\ns_and_b32 s10, {sJ}, 3\ns_lshl_b32 s10, s10, 7\ns_add_u32 s9, s9, s10\ns_add_u32 s9, s9, {WS_FL}\ns_load_dword s92, {pWs}, s9")
        if o["pf"]:
            a(f"s_getpc_b64 s[12:13]\nL_pc2:\ns_lshl_b32 s8, {sJ}, 9\ns_min_u32 s8, s8, L_codeend-L_pc-512\ns_sub_u32 s8, s8, L_pc2-L_pc\ns_ashr_i32 s9, s8, 31\ns_add_u32 s12, s12, s8\ns_addc_u32 s13, s13, s9")
            for i in range(4): a(f"s_load_dword s{93+i}, s[12:13], {128*i}")
        a("L_nopf:")
    def sk_touch():
        a(f"s_lshl_b32 s8, {sP}, 13\ns_lshl_b32 s9, {sW}, 11\ns_add_u32 s8, s8, s9\ns_add_u32 s90, s42, s8\ns_addc_u32 s91, s43, 0")
        a.raw = True
        for i in range(14): a(f"s_load_dword s{92 + i % 8}, s[90:91], {128*i}")
        a.raw = False
    if o["spf"] == 1: sk_touch()
    if o["tprio"]: a(f"s_setprio {o['tprio']}")
    vFA, vFB, vF1 = 18+182, 19+182, 20+182
    vP0, vG0, vUw, vGw = 204, 208, 210, 211
    hY, hU, hG, hO = 212, 213, 214, 215
    a(f"""s_mov_b32 {sHI}, 0xffff0000
s_mov_b32 {sSel0}, 0x05040100
s_mov_b32 {sSel1}, 0x07060302
s_lshl_b32 s8, {sG}, 5
s_lshl_b32 s9, {sHf}, 4
s_add_u32 s8, s8, s9
s_lshl_b32 s8, s8, 14
s_lshl_b32 s9, {sJ}, 9
s_add_u32 s8, s8, s9
s_lshl_b32 s9, {sCh}, 6
s_add_u32 s8, s8, s9
v_lshlrev_b32 v{vSt}, 14, v3
v_lshl_add_u32 v{vSt}, v2, 4, v{vSt}
v_add_u32 v{vSt}, s8, v{vSt}
v_mov_b32 v{vZ}, 0""")
    sync_regs()
    a(f"""s_lshl_b32 s8, {sG}, 13
s_add_u32 s8, s8, {WS_FL}
s_lshr_b32 s9, {sJ}, 4
s_lshl_b32 s9, s9, 8
s_add_u32 s9, s9, s8
v_lshl_add_u32 v{vFA}, v1, 2, s9
v_add_u32 v{vFB}, 4096, v{vFA}
s_lshl_b32 s9, {sHf}, 8
s_add_u32 s8, s8, s9
s_lshl_b32 s9, {sJ}, 3
s_add_u32 s8, s8, s9
s_lshl_b32 s9, {sCh}, 2
s_add_u32 s8, s8, s9
v_mov_b32 v{vF1}, s8
v_add_u32 v{vF1+1}, 4096, v{vF1}
s_lshl_b32 s8, {sP}, 14
v_lshlrev_b32 v2, 4, v0
v_add_u32 v{vP0}, s8, v2
v_add_u32 v{vP0+1}, 4096, v{vP0}
v_add_u32 v{vP0+2}, 8192, v{vP0}
v_add_u32 v{vP0+3}, 12288, v{vP0}
v_lshrrev_b32 v2, 4, v1
v_lshlrev_b32 v2, 10, v2
v_and_b32 v3, 15, v1
v_lshl_add_u32 v2, v3, 4, v2
s_lshl_b32 s9, {sW}, 8
v_add_u32 v2, s9, v2
v_add_u32 v{vG0}, {WS_G}, v2
v_add_u32 v{vG0+1}, {WS_G + 4096}, v2
v_add_u32 v{vGw}, {G0}, v2
v_and_b32 v2, 3, v0
v_mul_u32_u24 v{vUw}, {USTR_PH}, v2
v_bfe_u32 v2, v0, 3, 2
v_mul_u32_u24 v3, {USTR}, v2
v_add_u32 v{vUw}, v{vUw}, v3
v_bfe_u32 v2, v0, 2, 1
v_lshlrev_b32 v2, 4, v2
v_lshrrev_b32 v3, 5, v0
v_lshl_add_u32 v2, v3, 5, v2
v_sub_u32 v{vUw}, v{vUw}, v2
v_add_u32 v{vUw}, {U0 + 1008 - 768}, v{vUw}
v_lshlrev_b32 v2, 2, v0
v_add_u32 v{hY}, {Y0}, v2
v_add_u32 v{hG}, {G0}, v2
v_mul_u32_u24 v{hO}, 896, v0
s_lshl_b32 s9, {sP}, 2
v_add_u32 v{hO}, s9, v{hO}
v_and_b32 v2, 3, v1
v_mul_u32_u24 v3, {USTR_PH}, v2
v_lshrrev_b32 v2, 2, v0
v_lshlrev_b32 v2, 1, v2
v_sub_u32 v3, v3, v2
v_add_u32 v{hU}, {U0 + 1022}, v3""")
    KU, WT, AC, VT, PC = 64, 86, 96, 112, 120
    a(f"s_waitcnt vmcnt({25+X})")
    a(".set AL_ON, 1")
    ps("k3", "T")
    for i in range(3): a(f"v_lshlrev_b32 v{KU+2*i}, 16, v{K_+i}\nv_and_b32 v{KU+2*i+1}, {sHI}, v{K_+i}")
    a(f"s_waitcnt vmcnt({16+X})")
    for i in range(3, 11): a(f"v_lshlrev_b32 v{KU+2*i}, 16, v{K_+i}\nv_and_b32 v{KU+2*i+1}, {sHI}, v{K_+i}")
    for ch in range(2):
        for t in range(4):
            src = SH + 2*ch + t//2
            a(f"v_lshlrev_b32 v{WT+2*t+ch}, 16, v{src}" if t % 2 == 0 else f"v_and_b32 v{WT+2*t+ch}, {sHI}, v{src}")
    ps("loaded", "T")
    for t in range(4):
        for r in range(8):
            k = KU + 2*(r + 3 - t)
            if t == 0: a(f"v_pk_mul_f32 {vr(AC+2*r,2)}, {vr(k,2)}, {vr(WT,2)}")
            else: a(f"v_pk_fma_f32 {vr(AC+2*r,2)}, {vr(k,2)}, {vr(WT+2*t,2)}, {vr(AC+2*r,2)}")
    ps("fma", "T")
    a(f"s_waitcnt vmcnt({8+X})")
    ps("vok", "T")
    for r in range(8):
        t = VT + 2*(r % 4)
        a(f"v_lshlrev_b32 v{t}, 16, v{V_+r}\nv_and_b32 v{t+1}, {sHI}, v{V_+r}")
        a(f"v_pk_mul_f32 {vr(AC+2*r,2)}, {vr(AC+2*r,2)}, {vr(t,2)}")
    def transpose2(b0, b1):
        for st, pr in (("32", ((0, 2), (1, 3))), ("16", ((0, 1), (2, 3)))):
            for base in (b0, b1):
                for x, y in pr: a(f"v_permlane{st}_swap_b32 v{base+3-x}, v{base+3-y}")
    for ch in range(2):
        for rho in range(4):
            a(f"v_cvt_pk_bf16_f32 v{PC+8+4*ch+3-rho}, v{AC+2*(rho+4)+ch}, v{AC+2*rho+ch}")
    transpose2(PC + 8, PC + 12)
    for ch in range(2): a(f"global_store_dwordx4 v{vSt}, {vr(PC+8+4*ch,4)}, {pWs} offset:{(2+ch)*128} sc1")
    ps("kvst", "T")
    a(f"s_waitcnt vmcnt({2+X})")
    ps("uok", "T")
    for ch in range(2):
        for rho in range(4):
            a(f"v_perm_b32 v{PC+4*ch+3-rho}, v{U_+rho}, v{U_+rho+4}, {sSel0 if ch == 0 else sSel1}")
    transpose2(PC, PC + 4)
    for ch in range(2): a(f"global_store_dwordx4 v{vSt}, {vr(PC+4*ch,4)}, {pWs} offset:{ch*128} sc1")
    a(f"global_load_dword v{NON}, v{vZ}, {pDbg} sc1")
    if o["skt"] == 1: sk_loads()
    a(".set AL_OFF, 1")
    ps("issued", "T"); jitter()
    if o["spf"] == 2:
        a("s_waitcnt lgkmcnt(0)"); sk_touch()
    a(f"v_cmp_eq_u32 vcc, 0, v0\n{'s_waitcnt lgkmcnt(0)' if o['spf'] != 2 else 's_nop 0'}\nv_mov_b32 v2, {sSd}\nv_cndmask_b32 v{vFd}, 0, v2, vcc")
    a(f"v_mov_b32 v30, 0\nv_mov_b32 v31, 0\nv_lshlrev_b32 v72, 16, v{vFd}\nv_and_b32 v73, {sHI}, v{vFd}\nv_mov_b32 v74, 0xffff")
    def sk_stage():
        for i in range(2):
            r = SKT + 4*i
            a(f"v_lshlrev_b32 v75, 16, v{r}\nv_add_f32 v75, v75, v{72+i}\nv_cvt_pk_bf16_f32 v75, v75, v75\nv_bfi_b32 v{r}, v74, v75, v{r}\nds_write_b128 v{vSkw}, {vr(r,4)} offset:{KSTR*i}")
        arrive(F_SK)
    if o["skt"] == 0:
        a("s_waitcnt vmcnt(5)"); sk_stage()
    a(f"s_waitcnt vmcnt({2 if o['skt'] == 1 else 0})")
    ps("acked", "T")
    nonce("a")
    a.raw = True
    if o["fastflag"]: a(f"s_mov_b64 exec, 1\nglobal_store_dword v{vF1}, v{NON}, {pWs}\ns_mov_b64 exec, -1")
    a(f"global_load_dword v19, v{vFA}, {pWs} sc1")
    def bstore(): a(f"s_mov_b64 exec, 1\nglobal_store_dword v{vF1+1}, v{NON}, {pWs} sc1\ns_mov_b64 exec, -1")
    if not o["blate"]: bstore()
    ps("sigout", "T"); jitter()
    PL, GL = 136, 152
    sDone = "s3"
    a(f"s_mov_b32 {sSpin}, 0\ns_mov_b32 {sDone}, 0\ns_lshl_b32 s13, {sW}, 2\ns_waitcnt vmcnt({0 if o['blate'] else 1})\nv_cmp_eq_u32 s[10:11], {sNon}, v19")
    if o["skt"] == 1: sk_stage()
    if o["skt"] == 2:
        sk_loads(); a("s_waitcnt vmcnt(0)"); sk_stage()
    def put(b, tag, wait):
        a(f"s_cmp_gt_u32 {sDone}, {b}\ns_cbranch_scc1 L_put{tag}\ns_waitcnt vmcnt({wait})")
        a(f"ds_write_b128 v{vUw}, {vr(PL+4*b,4)} offset:{256*(3-b)}\nds_write_b32 v{vMe}, v{vOne} offset:{F_U - FL0 + 32*b}\ns_mov_b32 {sDone}, {b+1}\nL_put{tag}:")
    a.raw = True
    for i in range(4):
        a(f"s_branch L_chk{i}\nL_poll{i}:" if i == 0 else f"s_branch L_chk{i}\nL_poll{i}:")
        for b in range(i): put(b, f"{i}_{b}", 0)
        a(f"s_add_u32 {sSpin}, {sSpin}, 1")
        if o["blate"]:
            a(f"s_cmp_lg_u32 {sSpin}, {o['bat']}\ns_cbranch_scc1 L_nob{i}"); bstore(); a(f"L_nob{i}:")
        if o["fastflag"]:
            a(f"s_and_b32 s8, {sSpin}, {o['bper']}\ns_cbranch_scc0 L_pollb{i}\nglobal_load_dword v19, v{vFA}, {pWs} sc1\ns_branch L_pollc{i}\nL_pollb{i}:")
        a(f"global_load_dword v19, v{vFB}, {pWs} sc1\nL_pollc{i}:\ns_waitcnt vmcnt(0)\nv_cmp_eq_u32 vcc, {sNon}, v19\ns_or_b64 s[10:11], s[10:11], vcc")
        a(f"s_bitcmp1_b32 {sSpin}, 17\ns_cbranch_scc1 L_iss{i}\nL_chk{i}:")
        a(f"s_lshr_b32 s8, s{10 + i//2}, s13")
        if i % 2: a("s_lshr_b32 s8, s8, 16")
        a(f"s_and_b32 s8, s8, 15\ns_cmp_eq_u32 s8, 15\ns_cbranch_scc0 L_poll{i}\nL_iss{i}:")
        if i == 0: ps("polled", "T")
        a(f"global_load_dwordx4 {vr(PL+4*i,4)}, v{vP0+i}, {pWs} sc1")
    for i in range(2): a(f"global_load_dwordx4 {vr(GL+4*i,4)}, v{vG0+i}, {pWs} sc1")
    if o["blate"]: bstore()
    for b in range(4):
        put(b, f"e_{b}", 5 - b + o["blate"])
        if b == 0: ps("payload", "T")
    a.raw = False
    a(f"s_setprio {o['hprio']}")
    a(f"s_mov_b32 {sSpin}, 0\ns_waitcnt vmcnt({o['blate']})\nL_gchk:")
    a(f"v_cmp_ne_u32 vcc, {sNon}, v{GL+1}\nv_cmp_ne_u32 s[8:9], {sNon}, v{GL+3}\nv_cmp_ne_u32 s[12:13], {sNon}, v{GL+5}\nv_cmp_ne_u32 s[14:15], {sNon}, v{GL+7}")
    a("s_or_b64 s[8:9], s[8:9], vcc\ns_or_b64 s[12:13], s[12:13], s[14:15]\ns_or_b64 s[8:9], s[8:9], s[12:13]\ns_cbranch_scc0 L_gok")
    a("s_sleep 4")
    for i in range(2): a(f"global_load_dwordx4 {vr(GL+4*i,4)}, v{vG0+i}, {pWs} sc1")
    a(f"s_waitcnt vmcnt(0)\ns_add_u32 {sSpin}, {sSpin}, 1\ns_bitcmp0_b32 {sSpin}, 16\ns_cbranch_scc1 L_gchk\nL_gok:")
    for i in range(2):
        g = GL + 4*i
        a(f"v_and_b32 v{g+3}, {sHI}, v{g+2}\nv_lshlrev_b32 v{g+2}, 16, v{g+2}\nv_and_b32 v{g+1}, {sHI}, v{g}\nv_lshlrev_b32 v{g}, 16, v{g}")
        a(f"ds_write_b128 v{vGw}, {vr(g,4)} offset:{4096*i}")
    ps("gok", "T"); jitter()
    if o["nohelp"]: a("s_branch L_hend")
    a(f"s_add_u32 s9, {sW}, 1\ns_mov_b32 s10, 0")
    a("L_help0:")
    jitter()
    a(f"L_help:\ns_mov_b32 {sSpin}, 0\nL_hwait:\nds_read_b32 v3, v{vL4} offset:{F_PR - FL0}\ns_waitcnt lgkmcnt(0)\nv_cmp_gt_u32 vcc, s9, v3\ns_cbranch_vccz L_hgo")
    if o["lsl"]: a(f"s_sleep {o['lsl']}")
    a(f"s_add_u32 {sSpin}, {sSpin}, 1\ns_bitcmp0_b32 {sSpin}, 19\ns_cbranch_scc1 L_hwait\nL_hgo:")
    a(f"""ds_read_b32 v28, v{hY} offset:{2*YSTR}
ds_read_b32 v29, v{hY} offset:{3*YSTR}
ds_read_u16_d16_hi v30, v{hU}
ds_read_u16_d16_hi v31, v{hU} offset:{USTR}
ds_read_b32 v26, v{hY}
ds_read_b32 v27, v{hY} offset:{YSTR}
ds_read_b32 v25, v{hG}
v_add_u32 v{hY}, 1024, v{hY}
v_add_u32 v{hG}, 1024, v{hG}
v_subrev_u32 v{hU}, 128, v{hU}
s_add_u32 s9, s9, 4
s_add_u32 s10, s10, 1
s_waitcnt lgkmcnt(0)
v_mul_f32 v28, v28, v30
v_mul_f32 v29, v29, v31
v_sub_f32 v26, v26, v28
v_sub_f32 v27, v27, v29
v_fmac_f32 v28, v25, v26
v_fmac_f32 v29, v25, v27
v_cvt_pk_bf16_f32 v32, v28, v29
{"s_cmp_le_u32 s10, %d" % o["skipst"] if o["skipst"] else ""}
{"s_cbranch_scc1 L_nost" if o["skipst"] else ""}
global_store_dword v{hO}, v32, {pOut}{["", " nt", " sc0", " sc0 nt"][o["ost"]]}
L_nost:
v_add_u32 v{hO}, {256*896}, v{hO}
s_cmp_lt_u32 s10, {7 if o["spec"] & 2 else 8}
s_cbranch_scc1 L_help0""")
    if o["spec"] & 2:
        a.raw = True
        a(f"""ds_read_u16_d16_hi v30, v{hU}
ds_read_u16_d16_hi v31, v{hU} offset:{USTR}
ds_read_b32 v25, v{hG}
s_mov_b32 {sSpin}, 0
L_lw:
ds_read_b32 v3, v{vL4} offset:{F_PR - FL0}
ds_read_b32 v28, v{hY} offset:{2*YSTR}
ds_read_b32 v29, v{hY} offset:{3*YSTR}
ds_read_b32 v26, v{hY}
ds_read_b32 v27, v{hY} offset:{YSTR}
s_waitcnt lgkmcnt(4)
v_cmp_gt_u32 vcc, s9, v3
s_cbranch_vccz L_lgo
s_waitcnt lgkmcnt(0)
s_add_u32 {sSpin}, {sSpin}, 1
s_bitcmp0_b32 {sSpin}, 19
s_cbranch_scc1 L_lw
L_lgo:
s_waitcnt lgkmcnt(2)
v_mul_f32 v28, v28, v30
v_mul_f32 v29, v29, v31
s_waitcnt lgkmcnt(0)
v_sub_f32 v26, v26, v28
v_sub_f32 v27, v27, v29
v_fmac_f32 v28, v25, v26
v_fmac_f32 v29, v25, v27
v_cvt_pk_bf16_f32 v32, v28, v29
global_store_dword v{hO}, v32, {pOut}{["", " nt", " sc0", " sc0 nt"][o["ost"]]}""")
        a.raw = False
    a("L_hend:")
    ps("last", "T")
    if o["stamps"]:
        a("s_waitcnt vmcnt(0)"); ps("end", "T")
    dump_stamps("T")
    a("s_endpgm")

    RAW, vPa, vSw, vRa, vRb, vPar = 200, 214, 218, 219, 220, 224
    if not o["kin"]: kpre()
    a(f"""L_kmain:
s_barrier
L_kmain2:
s_mov_b32 {sHI}, 0xffff0000
s_mul_i32 s11, {sKq}, {SSTR}
s_add_u32 s11, s11, {SC0}
s_mov_b32 m0, s11
v_and_b32 v13, 31, v1
v_lshrrev_b32 v14, 5, v1
v_lshl_add_u32 v{vSw}, v1, 2, s11
v_mul_u32_u24 v15, {SROW}, v13
v_lshl_add_u32 v15, v14, 4, v15
v_add_u32 v{vRa}, s11, v15
v_add_u32 v{vRb}, {21*SROW}, v{vRa}
s_mov_b32 {sI2P}, {hx(f2u(I2Ph))}
s_mov_b32 {sRnd}, 0""")
    D = 176
    a(f"""v_mov_b32 v12, 0x3f80
s_lshl_b32 s14, {sCh}, 4
s_sub_u32 s14, 16, s14
v_mov_b32 v11, {hx(f2u(L2Eh))}
ds_write_b32 v{vSw}, v12 offset:{21*SROW}
""")
    if o["parlate"] == 1: par_loads()
    a(f"""s_waitcnt lgkmcnt(0)
s_lshl_b32 {sDt}, {sDt}, s14
s_and_b32 {sDt}, {sDt}, {sHI}
v_mov_b32 v13, {sDt}
v_mul_f32 v14, {hx(f2u(L2Eh))}, v13
v_fma_f32 v15, v13, v11, -v14
v_fmac_f32 v15, {hx(f2u(L2El))}, v13
v_exp_f32 v14, v14
v_mul_f32 v15, {hx(f2u(math.log(2.0)))}, v15
s_lshl_b32 {sDs}, {sDs}, s14
v_fma_f32 v14, v14, v15, v14
s_and_b32 {sDs}, {sDs}, {sHI}
v_cvt_pk_bf16_f32 v14, 0, v14
s_cmp_eq_u32 {sHf}, 0
s_cselect_b32 {sDs}, {sDs}, 0
v_readfirstlane_b32 {sDt}, v14""")
    if o["parlate"] == 2: par_loads()
    a("s_waitcnt vmcnt(0)")
    a(".set AL_ON, 1")
    ps("params", "K"); jitter()
    for i in range(6): a(f"v_lshlrev_b32 v{8+i}, 16, v{RAW+i}")
    SK = 24
    vSkW = 240
    A2, TH, TL = 140, 141, 142
    Z1, Z2, Z4, Z8, Z256, W, X, Yc, Fc = 146, 148, 150, 152, 154, 156, 158, 160, 162
    PK = 166; OA = 64; OB = 80
    def cm(d, x, z):
        t = d if d != x else 14
        return (f"v_pk_mul_f32 {vr(t,2)}, {vr(x,2)}, {vr(z,2)} op_sel_hi:[0,1]",
                f"v_pk_fma_f32 {vr(d,2)}, {vr(x,2)}, {vr(z,2)}, {vr(t,2)} op_sel:[1,1,0] op_sel_hi:[1,0,1] neg_lo:[1,0,0]")
    def cmul(d, x, z):
        for t in cm(d, x, z): a(t)
    def swr(r, row): return f"ds_write_addtid_b32 v{r} offset:{row*SROW}" if o["addtid"] else f"ds_write_b32 v{vSw}, v{r} offset:{row*SROW}"
    anchors = ((1, Z1, 136), (8, Z8, 138), (256, Z256, 144))
    def anchor_scalar():
        L = [f"v_mul_f32 v8, {sDt}, v8", f"v_mul_f32 v9, {sDt}, v9", f"v_mul_f32 v{A2}, {hx(f2u(L2Eh))}, v8", f"v_mul_f32 v{TH}, {sI2P}, v9",
             f"v_fma_f32 v{TL}, v9, {sI2P}, -v{TH}", f"v_fmac_f32 v{TL}, {hx(f2u(I2Pl))}, v9"]
        for e, Z, Mx in anchors:
            if e == 1: L += [f"v_exp_f32 v{Mx}, v{A2}", f"v_fract_f32 v{Mx+1}, v{TH}"]
            else:
                c = hx(f2u(float(e)))
                L += [f"v_mul_f32 v{Mx}, {c}, v{A2}", f"v_mul_f32 v{Mx+1}, {c}, v{TH}", f"v_exp_f32 v{Mx}, v{Mx}", f"v_fract_f32 v{Mx+1}, v{Mx+1}"]
        for e, Z, Mx in anchors:
            L += [f"v_add_f32 v{Mx+1}, v{Mx+1}, v{TL}" if e == 1 else f"v_fmac_f32 v{Mx+1}, {hx(f2u(float(e)))}, v{TL}"]
        for e, Z, Mx in anchors: L += [f"v_cos_f32 v{Z}, v{Mx+1}", f"v_sin_f32 v{Z+1}, v{Mx+1}"]
        return L
    for t in anchor_scalar(): a(t)
    a("L_round:")
    cmul(W, 12, 10)
    for e, Z, Mx in anchors: a(f"v_pk_mul_f32 {vr(Z,2)}, {vr(Z,2)}, {vr(Mx,2)} op_sel_hi:[1,0]")
    a(f"v_mul_f32 v{W}, {sDt}, v{W}\nv_mul_f32 v{W+1}, {sDt}, v{W+1}")
    cmul(Z2, Z1, Z1)
    cmul(Z4, Z2, Z2)
    ps("anch", "K")
    pk = [0]
    def cvt(row, src, neg):
        r = PK + (pk[0] % 8); pk[0] += 1
        return f"v_cvt_pk_bf16_f32 v{r}, v{src}, {'-' if neg else ''}v{src+1}", swr(r, row)
    steps = [(None, W, None, 0)]; prev = W
    for r in range(1, 8):
        d = X if prev != X else Yc
        steps.append((d, prev, Z1, r)); prev = d
    steps.append((W, W, Z256, 8)); prev = W
    for r in range(9, 12):
        d = X if prev != X else Yc
        steps.append((d, prev, Z2, r)); prev = d
    steps += [(W, W, Z256, 12), (X, W, Z4, 13), (W, W, Z256, 14), (X, W, Z4, 15)]
    steps += [(W, W, Z256, 16 + i) for i in range(5)]
    fsteps = [(None, Z8, None, 22)]; prev = Z8
    for jx in range(2, 22):
        d = Fc if prev != Fc else Fc + 2
        fsteps.append((d, prev, Z8, 21 + jx)); prev = d
    last21 = prev; last20 = Fc if prev != Fc else Fc + 2
    steps.append((Z2, Z8, Z8, None))
    pa, pb = last20, last21
    tail = []
    for jx in range(22, 32, 2):
        da = Z1 if pa != Z1 else X; db = Z4 if pb != Z4 else Yc
        tail.append(((da, pa, Z2, 21 + jx), (db, pb, Z2, 22 + jx))); pa, pb = da, db
    seq = []
    for n in range(max(len(steps), len(fsteps))):
        seq.append([(lst[n], neg) for lst, neg in ((fsteps, False), (steps, True)) if n < len(lst)])
    seq += [[(x, False), (y, False)] for x, y in tail]
    late = []
    for n, grp in enumerate(seq):
        m0, m1, cv, wr = [], [], [], []
        for (d, x, z, row), neg in grp:
            if d is not None:
                p, q = cm(d, x, z); m0.append(p); m1.append(q); x = d
            if row is not None:
                c_, w_ = cvt(row, x, neg); cv.append(c_); wr.append(w_)
        for t in m0 + late[:1] + m1 + late[1:] + cv: a(t)
        late = wr
    for t in late: a(t)
    ps("chain", "K")
    first = [True]
    def kmf(q): a(f"v_mfma_f32_32x32x16_bf16 {vr(D,16)}, {vr(OA+4*(q%4),4)}, {vr(OB+4*(q%4),4)}, {0 if (q == 0 and first[0]) else vr(D,16)}")
    def mphase(fill, head=6, mid=3, tail=4):
        fill = list(fill)
        def some(n):
            for _ in range(n):
                if fill: a(fill.pop(0))
        for q in range(8):
            a(f"ds_read_b128 {vr(OA+4*(q%4),4)}, v{vRa} offset:{32*q}\nds_read_b128 {vr(OB+4*(q%4),4)}, v{vRb} offset:{32*q}")
            if q == 2: some(head)
            if q >= 3: kmf(q - 3); some(mid)
        for q in (5, 6, 7): kmf(q); some(tail)
        some(99)
    a(f"s_cmp_lg_u32 {sRnd}, 0\ns_cbranch_scc1 L_last\ns_mov_b32 {sRnd}, 1")
    mphase([f"v_and_b32 v{8+i}, {sHI}, v{RAW+i}" for i in range(6)] + anchor_scalar())
    a("s_branch L_round\nL_last:")
    first[0] = False
    keep = a.lines; a.lines = []
    vKa, vUa, vYa, vPr = 2, 3, 4, 5
    vE8, vE16, vW8, vW16, vW32, vFold = 234, 235, 236, 237, 238, 239
    a(f"""s_mul_i32 s11, {sKq}, {SSTR}
s_add_u32 s11, s11, {SC0}
v_and_b32 v13, 31, v1
v_lshrrev_b32 v14, 5, v1
v_lshlrev_b32 v15, 5, v13
v_lshl_add_u32 v15, v14, 4, v15
v_add_u32 v{vPa}, s11, v15
v_cmp_eq_u32 vcc, 0, v14
v_lshlrev_b32 v15, 4, v13
v_add_u32 v15, {4*256}, v15
v_lshlrev_b32 v12, 3, v13
v_add_u32 v12, {4*384}, v12
v_cndmask_b32 v11, v12, v15, vcc
v_add_u32 v{vPa+1}, s11, v11
v_add_u32 v15, 8, v15
v_add_u32 v12, 256, v12
v_cndmask_b32 v11, v12, v15, vcc
v_add_u32 v{vPa+2}, s11, v11
v_lshlrev_b32 v15, 2, v13
v_lshl_add_u32 v15, v14, 9, v15
v_add_u32 v15, {4*512}, v15
v_add_u32 v{vPa+3}, s11, v15""")
    sync_regs(13)
    a(f"""s_mul_i32 s13, {sKq}, {KSTR}
s_add_u32 s13, s13, {K0 + 32}
v_lshl_add_u32 v{vW8}, v1, 3, s13
v_lshl_add_u32 v{vW16}, v1, 4, s13
v_lshl_add_u32 v{vW32}, v1, 5, s13
v_mov_b32 v8, 0
v_mov_b32 v9, 0
v_mov_b32 v10, 0
v_mov_b32 v11, 0
s_sub_u32 s14, s13, 32
v_and_b32 v6, 1, v1
v_lshl_add_u32 v6, v6, 4, s14
ds_write_b128 v6, v[8:11]
s_mul_i32 s14, {sHf}, {2*SSTR}
s_add_u32 s14, s14, {SC0}
v_lshl_add_u32 v{vE8}, v1, 3, s14
v_lshl_add_u32 v{vE16}, v1, 4, s14
v_and_b32 v6, 3, v1
v_bfe_u32 v7, v1, 2, 2
v_lshrrev_b32 v12, 4, v1
v_add_u32 v13, v6, v7
v_lshlrev_b32 v13, 3, v13
v_lshl_add_u32 v13, v12, 6, v13
s_sub_u32 s14, s13, 24
v_add_u32 v{vKa}, s14, v13
v_mul_u32_u24 v14, {USTR_PH}, v6
v_lshl_add_u32 v14, v12, 4, v14
v_lshlrev_b32 v13, 3, v7
v_sub_u32 v14, v14, v13
s_mul_i32 s15, {sKq}, {USTR}
s_add_u32 s14, s15, {U0 + 1016 - 32*31}
v_add_u32 v{vUa}, s14, v14
v_mul_u32_u24 v14, {USTR_PH}, v7
v_lshl_add_u32 v14, v6, 4, v14
s_add_u32 s14, s15, {U0 + 1024}
v_add_u32 v14, s14, v14
ds_write_b128 v14, v[8:11]
s_lshl_b32 s14, {sKq}, 13
s_add_u32 s14, s14, {Y0}
v_lshl_add_u32 v{vYa}, v1, 2, s14
s_lshl_b32 s14, {sKq}, 2
s_add_u32 s14, s14, {F_PR}
v_mov_b32 v{vPr}, s14""")
    a(f"v_cmp_eq_u32 vcc, 0, v1\nv_mov_b32 v7, {sDs}\ns_nop 0\nv_cndmask_b32 v{vFold}, 0, v7, vcc")
    moved = a.lines; a.lines = keep
    mphase(moved, head=14, mid=6, tail=8)
    ps("rend", "K"); jitter()
    a(f"v_add_f32 v{D}, v{D}, v{vFold}")
    a(f"ds_write_b128 v{vPa}, {vr(D,4)}\nds_write_b64 v{vPa+1}, {vr(D+4,2)}\nds_write_b64 v{vPa+2}, {vr(D+6,2)}")
    for r in range(4): a(f"ds_write_b32 v{vPa+3}, v{D+8+r} offset:{128*r}")
    arrive(F_P)
    a(f"s_cmp_lt_u32 {sKq}, 2\ns_cbranch_scc1 L_aunit")
    wait_set(F_SK, vL4, 7)
    a("s_branch L_kop\nL_aunit:")
    def gather(dst, n, vaddr, off):
        for q in range(2):
            r = dst + 4*q
            if n == 4: a(f"ds_read_b128 {vr(r,4)}, v{vaddr} offset:{off + q*SSTR}")
            else: a(f"ds_read_b64 {vr(r,2)}, v{vaddr} offset:{off + q*SSTR}\nds_read_b32 v{r+2}, v{vaddr} offset:{off + q*SSTR + 8}")
    def total(dst, n):
        for i in range(n): a(f"v_add_f32 v{dst+i}, v{dst+i}, v{dst+4+i}")
    def pack(dst, src, pat):
        for i, (x, y) in enumerate(pat): a(f"v_cvt_pk_bf16_f32 v{dst+i}, v{src+x}, v{src+y}")
    ps("pwait", "K")
    wait_set(F_P, vL4, 7)
    ps("pdone", "K"); jitter()
    gather(64, 4, vE16, 0); gather(72, 3, vE8, 4*256); gather(80, 3, vE8, 4*384); gather(88, 3, vE8, 4*512)
    total(64, 4); pack(128, 64, ((0, 1), (2, 3)))
    a(f"ds_write_b64 v{vW8}, v[128:129]")
    total(72, 3); pack(130, 72, ((0, 0), (1, 2)))
    a(f"ds_write_b64 v{vW8}, v[130:131] offset:{2*256}")
    total(80, 3); pack(132, 80, ((0, 0), (0, 1), (1, 1), (2, 2)))
    a(f"ds_write_b128 v{vW16}, v[132:135] offset:{2*512}")
    total(88, 3); pack(136, 88, ((0, 0), (0, 0), (0, 1), (1, 1), (1, 1), (1, 1), (2, 2), (2, 2)))
    a(f"ds_write_b128 v{vW32}, v[136:139] offset:{2*1024}\nds_write_b128 v{vW32}, v[140:143] offset:{2*1024+16}")
    a("L_kop:")
    ps("kready", "K"); jitter()
    KOP, UOP, ACC, TR, ZR = 192, 64, 24, 8, 58
    a(f"v_mov_b32 v6, v{vL4}")
    def kload(mu): return [f"ds_read_b64_tr_b16 {vr(KOP+4*mu,2)}, v{vKa} offset:{256*mu}", f"ds_read_b64_tr_b16 {vr(KOP+4*mu+2,2)}, v{vKa} offset:{256*mu+32}"]
    KPRE = o["kpre"]
    for mu in range(KPRE):
        for t in kload(mu): a(t)
    for i in range(3): a(f"v_mov_b32 v{ZR+i}, 0")
    ps("kop", "K")
    def uload(nu):
        off = 32 * (31 - nu)
        return [f"ds_read_b64 {vr(UOP+4*nu,2)}, v{vUa} offset:{off}", f"ds_read_b64 {vr(UOP+4*nu+2,2)}, v{vUa} offset:{off+8}"]
    SPEC_U = o["spec"] & 1
    if SPEC_U:
        a.raw = True
        a(f"s_mov_b32 {sSpin}, 0\nL_u0:\nds_read_b32 v7, v6 offset:{F_U - FL0}")
        for nu in range(o["u0n"]):
            for t in uload(nu): a(t)
        a(f"s_waitcnt lgkmcnt({min(15, 2*o['u0n'])})\nv_cmp_ne_u32 vcc, 1, v7\ns_cbranch_vccz L_u0_ok\ns_waitcnt lgkmcnt(0)\ns_add_u32 {sSpin}, {sSpin}, 1\ns_bitcmp0_b32 {sSpin}, 19\ns_cbranch_scc1 L_u0\nL_u0_ok:\ns_waitcnt lgkmcnt({min(15, 2*o['u0n'] - 2)})")
        a.raw = False
    else:
        wait_set(F_U, 6, 7)
    if o["mprio"]: a(f"s_setprio {o['mprio']}")
    ps("uready", "K"); jitter()
    NACC = o["nacc"]; NTR = 4; UP = o["upre"]
    dp = "row_mask:0xf bank_mask:0xf"
    pos = [0]
    lds_since = [0]
    def em(t):
        a(t); pos[0] += 1
        if t.startswith("ds_"): lds_since[0] += 1
    done_at = {}
    lastflag = [None]
    def epi(c):
        A = ACC + 4 * (c % NACC)
        cur = TR + 4 * (c % NTR); prv = TR + 4 * ((c - 1) % NTR)
        pT3 = (ACC + 4 * ((c - 1) % NACC) + 3) if c > 0 else ZR
        pT2 = prv if c > 0 else ZR + 1
        pT1 = prv + 1 if c > 0 else ZR + 2
        L = [((c, 0), f"v_add_f32_dpp v{cur}, v{pT3}, v{A+2} wave_ror:1 {dp}", 1, [(("m", c), 9), ((c - NTR + 1, 1), 1), ((c - NTR + 1, 3), 1), ((c - NTR, 6), 1)]),
             ((c, 2), f"v_add_f32_dpp v{cur}, v{A+3}, v{A+2} wave_shr:1 {dp}", 1, [((c, 0), 1)]),
             ((c, 1), f"v_add_f32_dpp v{cur+1}, v{pT2}, v{A+1} wave_ror:1 {dp}", 1, [((c, 2), 1), ((c - 1, 2), 3)]),
             ((c, 4), f"v_add_f32_dpp v{cur+1}, v{cur}, v{A+1} wave_shr:1 {dp}", 1, [((c, 1), 1), ((c, 2), 3)]),
             ((c, 3), f"v_add_f32_dpp v{cur+2}, v{pT1}, v{A} wave_ror:1 {dp}", 1, [((c, 4), 1), ((c - 1, 4), 3)]),
             ((c, 5), f"v_add_f32_dpp v{cur+2}, v{cur+1}, v{A} wave_shr:1 {dp}", 1, [((c, 3), 1), ((c, 4), 3)]),
             ((c, 6), f"ds_write_b32 v{vYa}, v{cur+2} offset:{256*c}", 2, [((c, 5), 2), ((c - 1, 6), 1)])]
        if (c % 2 == 1 and c >= o['fl0']) or c >= 28:
            dep = [((c, 5), 1)] + ([(lastflag[0], 1)] if lastflag[0] else [])
            L += [((c, 7), f"v_mov_b32_e64 v61, {c+1}", 1, dep), ((c, 8), f"ds_write_b32 v{vPr}, v61", 2, [((c, 7), 2), ((c, 6), 1)])]
            lastflag[0] = (c, 8)
        return L
    def ready(item):
        for key, dist in item[3]:
            if key[0] != "m" and key[0] < 0: continue
            if key not in done_at or pos[0] - done_at[key] < dist: return False
        return True
    queue = []
    def fill(slots):
        while slots > 0:
            pick = None
            for n, it in enumerate(queue[:24]):
                if it[2] <= slots and ready(it): pick = n; break
            if pick is None: return
            it = queue.pop(pick); done_at[it[0]] = pos[0]; em(it[1]); slots -= it[2]
    def drain(pred):
        while any(pred(it) for it in queue):
            n0 = len(queue); fill(2)
            if len(queue) == n0: em("s_nop 0")
    STEP = 2 if o["pair"] else 1
    if o["pair"]: UP = 2
    U0N = o["u0n"]
    for nu in range(U0N):
        if not SPEC_U:
            for t in uload(nu): em(t)
    for c in range(0, 32, STEP):
        nm = c // 2 + 1
        blocks = list(range(c, c + STEP))
        if c in (4, 8, 12, 16, 24): ps(f"c{c}", "K")
        if c in (3, 6, 14, 22, 29): jitter()
        if c == o["mdrop"]: em("s_setprio 0")
        if (c + UP) % 8 == 0 and c + UP < 32:
            bi = (c + UP) // 8
            drain(lambda it: it[0][0] == "f")
            em(f"v_cmp_ne_u32 vcc, 1, v7"); em(f"s_cbranch_vccnz L_us{bi}"); a(f"L_ub{bi}:")
        new = []
        for x in blocks:
            if U0N <= x + UP < 32:
                tl = uload(x + UP)
                new += [(("u", x, 0), tl[0], 1, []), (("u", x, 1), tl[1], 1, [])]
        mu_next = (c + 4) // 2
        if c % 2 == 0 and KPRE <= mu_next < 16:
            tl = kload(mu_next)
            new += [(("k", mu_next, 0), tl[0], 1, []), (("k", mu_next, 1), tl[1], 1, [])]
        if (c + UP + 2) % 8 == 0 and c + UP + 2 < 32:
            bi = (c + UP + 2) // 8
            new = [(("f", c), f"ds_read_b32 v7, v6 offset:{F_U - FL0 + 32*bi}", 1, [])] + new
        queue[0:0] = new
        if c % 2 == 0: drain(lambda it: it[0][0] == "k" and it[0][1] <= c // 2 + 1)
        for x in blocks:
            old = x - NACC
            if old >= 0: drain(lambda it: it[0][0] == old or it[0] == (old + 1, 0))
        drain(lambda it: it[0][0] == "u" and it[0][1] + UP <= blocks[-1] + 2)
        if SPEC_U and 1 <= c < U0N:
            younger = 2 * (U0N - 1 - c) + lds_since[0]
            em(f"s_waitcnt lgkmcnt({min(15, younger)})")
        for n, mu in enumerate(range(nm - 1, -1, -1)):
            for x in blocks:
                A = ACC + 4 * (x % NACC)
                em(f"v_mfma_f32_16x16x32_bf16 {vr(A,4)}, {vr(UOP+4*(x-2*mu),4)}, {vr(KOP+4*mu,4)}, {'0' if n == 0 else vr(A,4)}")
                if n == nm - 1:
                    done_at[("m", x)] = pos[0] - 1
                    if not o["noepi"]: queue.extend(epi(x))
                fill(2)
    drain(lambda it: True)
    a(".set AL_OFF, 1")
    ps("convend", "K")
    dump_stamps("K")
    a("s_endpgm")
    for bi in range(1, 4):
        a(f"L_us{bi}:")
        wait_set(F_U + 32*bi, 6, 7)
        a(f"s_branch L_ub{bi}")

    a(f"""L_mknon:
s_memrealtime s[12:13]
s_mov_b64 exec, 1
v_mov_b32 v3, 0
v_mov_b32 v4, 0
s_waitcnt lgkmcnt(0)
s_or_b32 s12, s12, 1
v_mov_b32 v2, s12
global_atomic_cmpswap v4, v[2:3], {pDbg} sc1
s_mov_b64 exec, -1
s_branch L_nonon""")
    GU, GW = 8, 40
    a(f"""L_g7:
s_lshl_b32 s8, {sJ}, 3
s_add_u32 s8, s8, {sW}
s_lshl_b32 s9, s8, 3
v_lshrrev_b32 v7, 3, v1
v_add_u32 v7, s9, v7
v_and_b32 v6, 7, v1
v_mul_u32_u24 v6, 112, v6
v_mul_u32_u24 v7, 896, v7
v_add_u32 v7, v7, v6
s_lshl_b32 s9, s8, 5
s_add_u32 s9, s9, {WS_G}
v_lshrrev_b32 v5, 4, v1
v_lshl_add_u32 v5, v5, 3, s9
v_mov_b32 v{vZ}, 0
s_waitcnt lgkmcnt(0)""")
    if o["gsk"]:
        a(f"s_mul_i32 s9, s8, {56*128}\nv_min_u32 v3, 55, v1\nv_lshl_add_u32 v3, v3, 7, s9\nglobal_load_dword v71, v3, {pSk}")
    for i in range(7): a(f"global_load_dwordx4 {vr(GW+4*i,4)}, v6, {pGw} offset:{16*i}")
    if not o["gearly"]:
        a(f"global_load_dword v70, v{vZ}, {pDbg} sc1\ns_waitcnt vmcnt(0)")
        nonce("g", 70)
    if o["gdelay"]: a(f"s_sleep {o['gdelay']}")
    jitter()
    for i in range(7): a(f"global_load_dwordx4 {vr(GU+4*i,4)}, v7, {pU} offset:{16*i}")
    if o["gearly"]: a(f"global_load_dword v70, v{vZ}, {pDbg} sc1")
    a("v_mov_b32 v2, 0\nv_mov_b32 v3, 0")
    for i in range(0, 28, 2): a(f"v_dot2_f32_bf16 v2, v{GU+i}, v{GW+i}, v2\nv_dot2_f32_bf16 v3, v{GU+i+1}, v{GW+i+1}, v3")
    a("v_add_f32 v2, v2, v3")
    for sh in (1, 2, 4): a(f"v_add_f32_dpp v2, v2, v2 row_shr:{sh} row_mask:0xf bank_mask:0xf bound_ctrl:0")
    a(f"v_cvt_pk_bf16_f32 v2, 0, v2\nv_mul_f32 v2, {hx(f2u(-L2E))}, v2\nv_exp_f32 v2, v2\nv_add_f32 v2, 1.0, v2\nv_rcp_f32 v2, v2")
    a("v_mov_b32_dpp v3, v2 row_shr:8 row_mask:0xf bank_mask:0xf bound_ctrl:0\nv_cvt_pk_bf16_f32 v2, v3, v2")
    if o["gearly"]:
        a("s_waitcnt vmcnt(0)")
        nonce("g", 70)
    a(f"v_mov_b32 v3, {sNon}\ns_mov_b32 exec_lo, 0x80008000\ns_mov_b32 exec_hi, 0x80008000\nglobal_store_dwordx2 v5, v[2:3], {pWs} sc1")
    a("L_end:\ns_endpgm\nL_codeend:")
    body = a.finish()
    if o["al"]:
        body, nn, nw = align(body, lambda b: f'.amdgcn_target "amdgcn-amd-amdhsa--gfx950"\n.text\n{NAME}_kernel:\n{b}', o["al"])
        print("alignment: padded", nn, "widened", nw)
    hdr = open("cdna_kernels/" + NAME + ".s.ref").read().split("; Override launch")[0]
    txt = hdr + f"""; One launch: 7 groups of 32 workgroups exchange transposed tiles through d_ws, each workgroup then
; owns two channels (S4 kernel table, two Toeplitz convolutions on MFMA, gated mix); an eighth group computes the gate.
; @launch grid=(256,1,1) block=(512,1,1) lds={LDS_BYTES}
.amdgcn_target "amdgcn-amd-amdhsa--gfx950"
.text
.globl {NAME}_kernel
.p2align 8
.type {NAME}_kernel,@function
{NAME}_kernel:
{body}.section .rodata,"a"
.p2align 6
.amdhsa_kernel {NAME}_kernel
  .amdhsa_next_free_vgpr 256
  .amdhsa_next_free_sgpr 102
  .amdhsa_accum_offset 256
  .amdhsa_group_segment_fixed_size 0
  .amdhsa_kernarg_size 152
  .amdhsa_user_sgpr_count 2
  .amdhsa_user_sgpr_kernarg_segment_ptr 1
  .amdhsa_system_sgpr_workgroup_id_x 1
.end_amdhsa_kernel
"""
    return txt, a.nops

if __name__ == "__main__":
    out = sys.argv[1]
    kw = {k: int(v, 0) for k, v in (x.split("=") for x in sys.argv[2:])}
    txt, nops = gen(**kw)
    open(out, "w").write(txt)
    print("wrote", out, "lines", txt.count("\n"), "nops", nops, "lds", LDS_BYTES)
```

```python
import sys, struct, math
from asmlib import Asm
from alignpass import align

NAME = "gated_mix__ssm_conv_s4__ssm_conv_h3__prompt"
DEFAULT = dict(stamps=0, sleep=1, tprio=1, hprio=0, mprio=0, mdrop=99, nacc=8, lsl=1, fastflag=1, probe=0, pwg=0,
               bper=63, prof=0, upre=3, pf=0, upos=1, nt=0, gmap=0x65743210, allpoll=1, addtid=1, skpos=1, gdelay=0, fsh=13, bsep=1, skt=1, kpre=8, ovl=1, spf=0, blate=1, bat=16, nohelp=0, noepi=0, pair=0, skipst=0, gearly=0, spec=3, al=2, pfv=1, kin=1, gsk=0, jit=0, parlate=0, u0n=3, fl0=0, ost=0)

FL0 = 0
F_U, F_P, F_PR, F_SK = FL0, FL0 + 128, FL0 + 160, FL0 + 192
SC0 = 256; SROW = 272; SSTR = 53 * SROW
KSTR = 4160; K0 = SC0 + 4 * SSTR
USTR_PH = 1088; USTR = 4 * USTR_PH; U0 = K0 + 4 * KSTR
G0 = U0 + 4 * USTR
Y0 = G0 + 8192; YSTR = 8192
LDS_BYTES = Y0 + 4 * YSTR
WS_G = 224 * 16384
WS_FL = WS_G + 8192
WS_STAMP = 64 << 20

def f2u(x): return struct.unpack("<I", struct.pack("<f", x))[0]
def f32(x): return struct.unpack("<f", struct.pack("<f", x))[0]
def hx(x): return "0x%08x" % (x & 0xffffffff)
def vr(a, n=1): return f"v{a}" if n == 1 else f"v[{a}:{a+n-1}]"

sG, sJ, sW, sP = "s4", "s5", "s6", "s7"
pU, pAre, pAim, pBre, pBim, pCre, pCim, pLdt = (f"s[{16+2*i}:{17+2*i}]" for i in range(8))
pDs, pQ, pK, pV, pSh, pSk, pSd, pGw = (f"s[{32+2*i}:{33+2*i}]" for i in range(8))
pOut, pDbg, pWs = "s[48:49]", "s[50:51]", "s[52:53]"
srdK = "s[56:59]"
sKq, sCh, sHf, sRnd = "s54", "s55", "s60", "s61"
sHI, sSel0, sSel1, sSpin = "s62", "s63", "s64", "s65"
sDt, sDs, sSd, sI2P, sNon = "s66", "s67", "s68", "s69", "s70"

PROF = {1: dict(T={"start": 0, "karg": 1, "k3": 2, "loaded": 3, "issued": 4, "acked": 5, "sigout": 6, "polled": 7},
                K={"start": 0, "params": 1, "anch": 2, "chain": 3, "rend": 4, "pwait": 5, "pdone": 6, "kready": 7}),
        3: dict(T={"start": 0, "loaded": 1, "fma": 2, "vok": 3, "kvst": 4, "uok": 5, "issued": 6, "acked": 7},
                K={"start": 0, "params": 1, "anch": 2, "chain": 3, "rend": 4, "pwait": 5, "pdone": 6, "kready": 7}),
        4: dict(T={"start": 0, "issued": 1, "acked": 2, "polled": 3, "payload": 4, "gok": 5, "last": 6, "end": 7},
                K={"start": 0, "uready": 1, "c4": 2, "c8": 3, "c12": 4, "c16": 5, "c24": 6, "convend": 7}),
        9: dict(T={"start": 0, "end": 7}, K={"start": 0}),
        2: dict(T={"start": 0, "issued": 1, "acked": 2, "polled": 3, "payload": 4, "gok": 5, "last": 6, "end": 7},
                K={"start": 0, "params": 1, "rend": 2, "kop": 3, "uready": 4, "c8": 5, "c16": 6, "convend": 7})}

def gen(**kw):
    o = dict(DEFAULT); o.update(kw)
    if o["stamps"] and not o["prof"]: o["prof"] = 2
    a = Asm()
    NT = lambda bit: " nt" if o["nt"] & bit else ""
    lab = [0]
    sop = "s_memtime" if o["stamps"] == 3 else "s_memrealtime"
    def ps(name, role):
        if not o["stamps"]: return
        tab = PROF[o["prof"]]
        if name in tab[role]: a(f"{sop} s[{72+2*tab[role][name]}:{73+2*tab[role][name]}]")
    def dump_stamps(role):
        if not o["stamps"]: return
        a("s_waitcnt lgkmcnt(0)")
        if o["stamps"] == 5:
            i = o["probe"]
            if (role == "T") == (i < 100):
                i %= 100
                a(f"s_cmp_lg_u32 s2, {o['pwg']}\ns_cbranch_scc1 L_end\ns_sub_u32 s8, s{72+2*i}, s72\ns_mul_i32 s8, s8, 20\ns_min_u32 s8, s8, 100000\ns_memrealtime s[10:11]\ns_waitcnt lgkmcnt(0)\ns_add_u32 s8, s8, s10")
                a(f"L_pr{role}:\ns_sleep 4\ns_memrealtime s[10:11]\ns_waitcnt lgkmcnt(0)\ns_sub_u32 s9, s8, s10\ns_cmp_gt_i32 s9, 0\ns_cbranch_scc1 L_pr{role}")
            return
        a(f"s_lshl_b32 s8, s2, 3\ns_add_u32 s8, s8, {sW}\ns_lshl_b32 s8, s8, 6\ns_add_u32 s8, s8, {WS_STAMP}")
        a("s_mov_b64 exec, 1\nv_mov_b32 v2, s8")
        for i in range(8):
            a(f"v_mov_b32 v3, s{72+2*i}\nglobal_store_dword v2, v3, {pWs} offset:{4*i}")
        a("s_waitcnt vmcnt(0)")

    vMe, vL4, vOne, vDummy = 226, 228, 229, 57
    def sync_regs(t=2):
        a(f"s_lshl_b32 s14, {sKq}, 2\ns_add_u32 s14, s14, {FL0}\nv_mov_b32 v{vMe}, s14\nv_and_b32 v{t}, 3, v1\nv_lshlrev_b32 v{t}, 2, v{t}\nv_add_u32 v{vL4}, {FL0}, v{t}\nv_mov_b32 v{vOne}, 1")
    site = [0]
    def jitter():
        if not o["jit"]: return
        site[0] += 1; lab[0] += 1; L = f"L_j{lab[0]}"
        a(f"s_mul_i32 s98, s2, {0x9E37 + 2*site[0]}\ns_mul_i32 s99, {sW}, {0x2F1B + 6*site[0]}\ns_add_u32 s98, s98, s99\ns_add_u32 s98, s98, {o['jit'] * 7919 + site[0] * 131}\ns_lshr_b32 s98, s98, 5\ns_and_b32 s98, s98, 31\ns_cmp_gt_u32 s98, 7\ns_cbranch_scc1 {L}e\n{L}:\ns_sleep 20\ns_sub_u32 s98, s98, 1\ns_cmp_gt_i32 s98, 0\ns_cbranch_scc1 {L}\n{L}e:")
    def arrive(ev): a(f"ds_write_b32 v{vMe}, v{vOne} offset:{ev - FL0}")
    def wait_set(ev, vidx, vt, slp=0):
        lab[0] += 1; L = f"L_w{lab[0]}"
        a(f"s_mov_b32 {sSpin}, 0\n{L}:\nds_read_b32 v{vt}, v{vidx} offset:{ev - FL0}")
        a(f"s_waitcnt lgkmcnt(0)\nv_cmp_ne_u32 vcc, 1, v{vt}\ns_cbranch_vccz {L}_ok")
        if slp: a(f"s_sleep {slp}")
        a(f"s_add_u32 {sSpin}, {sSpin}, 1\ns_bitcmp0_b32 {sSpin}, 19\ns_cbranch_scc1 {L}\n{L}_ok:")
    L2E = math.log2(math.e); L2Eh = f32(L2E); L2El = L2E - L2Eh
    I2P = 1.0 / (2.0 * math.pi); I2Ph = f32(I2P); I2Pl = I2P - I2Ph
    NON, vZ = 63, 4
    def nonce(tag, NON=63):
        a(f"s_mov_b32 {sSpin}, 0\nL_non{tag}:\nv_readfirstlane_b32 {sNon}, v{NON}\ns_cmp_lg_u32 {sNon}, 0\ns_cbranch_scc1 L_non{tag}_ok")
        a(f"s_sleep 4\nglobal_load_dword v{NON}, v{vZ}, {pDbg} sc1\ns_waitcnt vmcnt(0)\ns_add_u32 {sSpin}, {sSpin}, 1\ns_bitcmp0_b32 {sSpin}, 16\ns_cbranch_scc1 L_non{tag}\nL_non{tag}_ok:")

    a("s_cmp_ge_u32 s2, 256\ns_cbranch_scc1 L_end")
    ps("start", "T")
    a("L_pc:")
    if o["pfv"]:
        a(f"""s_getpc_b64 s[12:13]
L_pc3:
s_lshr_b32 {sJ}, s2, 3
v_bfe_u32 v3, v0, 6, 2
s_lshl_b32 s8, {sJ}, 9
s_load_dwordx16 s[32:47], s[0:1], 64
v_lshl_add_u32 v3, v3, 7, s8
v_min_u32 v3, L_codeend-L_pc3-4, v3
global_load_dword v{vDummy}, v3, s[12:13]""")
    else:
        a("s_load_dwordx16 s[32:47], s[0:1], 64")
    a(f"""s_load_dwordx16 s[16:31], s[0:1], 0
v_lshrrev_b32 v2, 6, v0
s_load_dwordx4 s[48:51], s[0:1], 128
s_load_dwordx2 s[52:53], s[0:1], 144
v_readfirstlane_b32 {sW}, v2
v_and_b32 v1, 63, v0
s_and_b32 s8, s2, 7
s_lshl_b32 s8, s8, 2
s_lshr_b32 {sG}, {hx(o["gmap"])}, s8
s_and_b32 {sG}, {sG}, 7
{"" if o["pfv"] else "s_lshr_b32 s5, s2, 3"}
s_cmp_eq_u32 {sG}, 7
s_cbranch_scc1 L_g7
v_lshlrev_b32 v5, 2, v1
v_mov_b32 v8, 0
ds_write_b32 v5, v8 offset:{FL0}
s_lshl_b32 {sP}, {sG}, 5
s_add_u32 {sP}, {sP}, {sJ}
s_and_b32 {sKq}, {sW}, 3
s_lshr_b32 {sCh}, {sKq}, 1
s_and_b32 {sHf}, {sW}, 1
s_cmp_ge_u32 {sW}, 4""")
    RAW, vPa, vSw, vRa, vRb, vPar = 200, 214, 218, 219, 220, 224
    def par_loads():
        for i, p in enumerate((pAre, pAim, pBre, pBim, pCre, pCim)): a(f"global_load_dword v{RAW+i}, v{vPar}, {p}")
    def kpre():
        a(f"""L_kpre:
s_lshl_b32 s11, {sP}, 1
s_add_u32 s11, s11, {sCh}
s_lshl_b32 s14, s11, 9
s_lshl_b32 s15, {sHf}, 8
s_add_u32 s14, s14, s15
v_lshl_add_u32 v{vPar}, v1, 2, s14
s_lshl_b32 s14, {sP}, 2
s_waitcnt lgkmcnt(0)""")
        a(f"s_add_u32 s8, s2, {sKq}\ns_cmp_eq_u32 s8, 0\ns_cbranch_scc1 L_mknon\nL_nonon:")
        if not o["parlate"]: par_loads()
        a(f"s_load_dword {sDt}, {pLdt}, s14\ns_load_dword {sDs}, {pDs}, s14")
    if o["kin"]:
        a("s_cbranch_scc0 L_tpre")
        kpre()
        a("s_barrier\ns_branch L_kmain2\nL_tpre:")
    else:
        a("s_cbranch_scc1 L_kpre")

    vB, vB2, vKA, vSt = 10, 11, 12, 9
    U_, V_, K_, SH = 16, 24, 32, 44
    a(f"""s_lshl_b32 s8, {sCh}, 5
s_lshl_b32 s9, {sJ}, 6
s_add_u32 s8, s8, s9
s_mul_i32 s8, s8, 896
s_lshl_b32 s10, {sHf}, 6
s_lshl_b32 s11, {sG}, 7
s_add_u32 s10, s10, s11
s_add_u32 s8, s8, s10
v_lshrrev_b32 v2, 4, v1
v_and_b32 v3, 15, v1
v_mul_u32_u24 v4, {8*896}, v2
v_lshl_add_u32 v4, v3, 2, v4
v_add_u32 v{vB}, s8, v4
v_add_u32 v{vB2}, {4*896}, v{vB}
v_subrev_u32 v{vKA}, {3*896}, v{vB}
s_lshl_b32 s10, s10, 2
v_lshl_add_u32 v8, v3, 4, s10
s_mov_b32 s58, 1835008
s_mov_b32 s59, 0x20000
s_waitcnt lgkmcnt(0)
s_mov_b32 s56, s36
s_mov_b32 s57, s37
s_barrier""")
    ps("karg", "T"); jitter()
    vSk, vSkw, vFd = 216, 217, 218
    rows = [((vB, 896*i) if i < 4 else (vB2, 896*(i-4))) for i in range(8)]
    for i in range(3): a(f"buffer_load_dword v{K_+i}, v{vKA}, {srdK}, 0 offen offset:{896*i}{NT(1)}")
    for i, (b, off) in enumerate(rows): a(f"buffer_load_dword v{K_+3+i}, v{b}, {srdK}, 0 offen offset:{off}{NT(1)}")
    a(f"global_load_dwordx4 v[{SH}:{SH+3}], v8, {pSh}")
    for i, (b, off) in enumerate(rows): a(f"global_load_dword v{V_+i}, v{b}, {pV} offset:{off}{NT(1)}")
    for i, (b, off) in enumerate(rows): a(f"global_load_dword v{U_+i}, v{b}, {pU} offset:{off}{NT(2)}")
    SKT = 48
    def sk_loads(): a(f"global_load_dwordx4 {vr(SKT,4)}, v{vSk}, {pSk}{NT(4)}\nglobal_load_dwordx4 {vr(SKT+4,4)}, v{vSk+3}, {pSk}{NT(4)}")
    a(f"v_lshlrev_b32 v2, 4, v0\ns_lshl_b32 s9, {sP}, 13\nv_add_u32 v{vSk}, s9, v2\nv_add_u32 v{vSk+3}, 4096, v{vSk}\nv_add_u32 v{vSkw}, {K0 + 2*KSTR + 32}, v2\nv_lshrrev_b32 v2, 4, v1")
    X = 2 if o["skt"] == 0 else 0
    if o["skt"] == 0: sk_loads()
    a(f"s_lshl_b32 s14, {sP}, 2\ns_load_dword {sSd}, {pSd}, s14")
    if o["pf"] or o["fastflag"]:
        a(f"s_cmp_lg_u32 {sKq}, 3\ns_cbranch_scc1 L_nopf")
        if o["fastflag"]: a(f"s_lshl_b32 s9, {sG}, 13\ns_and_b32 s10, {sJ}, 3\ns_lshl_b32 s10, s10, 7\ns_add_u32 s9, s9, s10\ns_add_u32 s9, s9, {WS_FL}\ns_load_dword s92, {pWs}, s9")
        if o["pf"]:
            a(f"s_getpc_b64 s[12:13]\nL_pc2:\ns_lshl_b32 s8, {sJ}, 9\ns_min_u32 s8, s8, L_codeend-L_pc-512\ns_sub_u32 s8, s8, L_pc2-L_pc\ns_ashr_i32 s9, s8, 31\ns_add_u32 s12, s12, s8\ns_addc_u32 s13, s13, s9")
            for i in range(4): a(f"s_load_dword s{93+i}, s[12:13], {128*i}")
        a("L_nopf:")
    def sk_touch():
        a(f"s_lshl_b32 s8, {sP}, 13\ns_lshl_b32 s9, {sW}, 11\ns_add_u32 s8, s8, s9\ns_add_u32 s90, s42, s8\ns_addc_u32 s91, s43, 0")
        a.raw = True
        for i in range(14): a(f"s_load_dword s{92 + i % 8}, s[90:91], {128*i}")
        a.raw = False
    if o["spf"] == 1: sk_touch()
    if o["tprio"]: a(f"s_setprio {o['tprio']}")
    vFA, vFB, vF1 = 18+182, 19+182, 20+182
    vP0, vG0, vUw, vGw = 204, 208, 210, 211
    hY, hU, hG, hO = 212, 213, 214, 215
    a(f"""s_mov_b32 {sHI}, 0xffff0000
s_mov_b32 {sSel0}, 0x05040100
s_mov_b32 {sSel1}, 0x07060302
s_lshl_b32 s8, {sG}, 5
s_lshl_b32 s9, {sHf}, 4
s_add_u32 s8, s8, s9
s_lshl_b32 s8, s8, 14
s_lshl_b32 s9, {sJ}, 9
s_add_u32 s8, s8, s9
s_lshl_b32 s9, {sCh}, 6
s_add_u32 s8, s8, s9
v_lshlrev_b32 v{vSt}, 14, v3
v_lshl_add_u32 v{vSt}, v2, 4, v{vSt}
v_add_u32 v{vSt}, s8, v{vSt}
v_mov_b32 v{vZ}, 0""")
    sync_regs()
    a(f"""s_lshl_b32 s8, {sG}, 13
s_add_u32 s8, s8, {WS_FL}
s_lshr_b32 s9, {sJ}, 4
s_lshl_b32 s9, s9, 8
s_add_u32 s9, s9, s8
v_lshl_add_u32 v{vFA}, v1, 2, s9
v_add_u32 v{vFB}, 4096, v{vFA}
s_lshl_b32 s9, {sHf}, 8
s_add_u32 s8, s8, s9
s_lshl_b32 s9, {sJ}, 3
s_add_u32 s8, s8, s9
s_lshl_b32 s9, {sCh}, 2
s_add_u32 s8, s8, s9
v_mov_b32 v{vF1}, s8
v_add_u32 v{vF1+1}, 4096, v{vF1}
s_lshl_b32 s8, {sP}, 14
v_lshlrev_b32 v2, 4, v0
v_add_u32 v{vP0}, s8, v2
v_add_u32 v{vP0+1}, 4096, v{vP0}
v_add_u32 v{vP0+2}, 8192, v{vP0}
v_add_u32 v{vP0+3}, 12288, v{vP0}
v_lshrrev_b32 v2, 4, v1
v_lshlrev_b32 v2, 10, v2
v_and_b32 v3, 15, v1
v_lshl_add_u32 v2, v3, 4, v2
s_lshl_b32 s9, {sW}, 8
v_add_u32 v2, s9, v2
v_add_u32 v{vG0}, {WS_G}, v2
v_add_u32 v{vG0+1}, {WS_G + 4096}, v2
v_add_u32 v{vGw}, {G0}, v2
v_and_b32 v2, 3, v0
v_mul_u32_u24 v{vUw}, {USTR_PH}, v2
v_bfe_u32 v2, v0, 3, 2
v_mul_u32_u24 v3, {USTR}, v2
v_add_u32 v{vUw}, v{vUw}, v3
v_bfe_u32 v2, v0, 2, 1
v_lshlrev_b32 v2, 4, v2
v_lshrrev_b32 v3, 5, v0
v_lshl_add_u32 v2, v3, 5, v2
v_sub_u32 v{vUw}, v{vUw}, v2
v_add_u32 v{vUw}, {U0 + 1008 - 768}, v{vUw}
v_lshlrev_b32 v2, 2, v0
v_add_u32 v{hY}, {Y0}, v2
v_add_u32 v{hG}, {G0}, v2
v_mul_u32_u24 v{hO}, 896, v0
s_lshl_b32 s9, {sP}, 2
v_add_u32 v{hO}, s9, v{hO}
v_and_b32 v2, 3, v1
v_mul_u32_u24 v3, {USTR_PH}, v2
v_lshrrev_b32 v2, 2, v0
v_lshlrev_b32 v2, 1, v2
v_sub_u32 v3, v3, v2
v_add_u32 v{hU}, {U0 + 1022}, v3""")
    KU, WT, AC, VT, PC = 64, 86, 96, 112, 120
    a(f"s_waitcnt vmcnt({25+X})")
    a(".set AL_ON, 1")
    ps("k3", "T")
    for i in range(3): a(f"v_lshlrev_b32 v{KU+2*i}, 16, v{K_+i}\nv_and_b32 v{KU+2*i+1}, {sHI}, v{K_+i}")
    a(f"s_waitcnt vmcnt({16+X})")
    for i in range(3, 11): a(f"v_lshlrev_b32 v{KU+2*i}, 16, v{K_+i}\nv_and_b32 v{KU+2*i+1}, {sHI}, v{K_+i}")
    for ch in range(2):
        for t in range(4):
            src = SH + 2*ch + t//2
            a(f"v_lshlrev_b32 v{WT+2*t+ch}, 16, v{src}" if t % 2 == 0 else f"v_and_b32 v{WT+2*t+ch}, {sHI}, v{src}")
    ps("loaded", "T")
    for t in range(4):
        for r in range(8):
            k = KU + 2*(r + 3 - t)
            if t == 0: a(f"v_pk_mul_f32 {vr(AC+2*r,2)}, {vr(k,2)}, {vr(WT,2)}")
            else: a(f"v_pk_fma_f32 {vr(AC+2*r,2)}, {vr(k,2)}, {vr(WT+2*t,2)}, {vr(AC+2*r,2)}")
    ps("fma", "T")
    a(f"s_waitcnt vmcnt({8+X})")
    ps("vok", "T")
    for r in range(8):
        t = VT + 2*(r % 4)
        a(f"v_lshlrev_b32 v{t}, 16, v{V_+r}\nv_and_b32 v{t+1}, {sHI}, v{V_+r}")
        a(f"v_pk_mul_f32 {vr(AC+2*r,2)}, {vr(AC+2*r,2)}, {vr(t,2)}")
    def transpose2(b0, b1):
        for st, pr in (("32", ((0, 2), (1, 3))), ("16", ((0, 1), (2, 3)))):
            for base in (b0, b1):
                for x, y in pr: a(f"v_permlane{st}_swap_b32 v{base+3-x}, v{base+3-y}")
    for ch in range(2):
        for rho in range(4):
            a(f"v_cvt_pk_bf16_f32 v{PC+8+4*ch+3-rho}, v{AC+2*(rho+4)+ch}, v{AC+2*rho+ch}")
    transpose2(PC + 8, PC + 12)
    for ch in range(2): a(f"global_store_dwordx4 v{vSt}, {vr(PC+8+4*ch,4)}, {pWs} offset:{(2+ch)*128} sc1")
    ps("kvst", "T")
    a(f"s_waitcnt vmcnt({2+X})")
    ps("uok", "T")
    for ch in range(2):
        for rho in range(4):
            a(f"v_perm_b32 v{PC+4*ch+3-rho}, v{U_+rho}, v{U_+rho+4}, {sSel0 if ch == 0 else sSel1}")
    transpose2(PC, PC + 4)
    for ch in range(2): a(f"global_store_dwordx4 v{vSt}, {vr(PC+4*ch,4)}, {pWs} offset:{ch*128} sc1")
    a(f"global_load_dword v{NON}, v{vZ}, {pDbg} sc1")
    if o["skt"] == 1: sk_loads()
    a(".set AL_OFF, 1")
    ps("issued", "T"); jitter()
    if o["spf"] == 2:
        a("s_waitcnt lgkmcnt(0)"); sk_touch()
    a(f"v_cmp_eq_u32 vcc, 0, v0\n{'s_waitcnt lgkmcnt(0)' if o['spf'] != 2 else 's_nop 0'}\nv_mov_b32 v2, {sSd}\nv_cndmask_b32 v{vFd}, 0, v2, vcc")
    a(f"v_mov_b32 v30, 0\nv_mov_b32 v31, 0\nv_lshlrev_b32 v72, 16, v{vFd}\nv_and_b32 v73, {sHI}, v{vFd}\nv_mov_b32 v74, 0xffff")
    def sk_stage():
        for i in range(2):
            r = SKT + 4*i
            a(f"v_lshlrev_b32 v75, 16, v{r}\nv_add_f32 v75, v75, v{72+i}\nv_cvt_pk_bf16_f32 v75, v75, v75\nv_bfi_b32 v{r}, v74, v75, v{r}\nds_write_b128 v{vSkw}, {vr(r,4)} offset:{KSTR*i}")
        arrive(F_SK)
    if o["skt"] == 0:
        a("s_waitcnt vmcnt(5)"); sk_stage()
    a(f"s_waitcnt vmcnt({2 if o['skt'] == 1 else 0})")
    ps("acked", "T")
    nonce("a")
    a.raw = True
    if o["fastflag"]: a(f"s_mov_b64 exec, 1\nglobal_store_dword v{vF1}, v{NON}, {pWs}\ns_mov_b64 exec, -1")
    a(f"global_load_dword v19, v{vFA}, {pWs} sc1")
    def bstore(): a(f"s_mov_b64 exec, 1\nglobal_store_dword v{vF1+1}, v{NON}, {pWs} sc1\ns_mov_b64 exec, -1")
    if not o["blate"]: bstore()
    ps("sigout", "T"); jitter()
    PL, GL = 136, 152
    sDone = "s3"
    a(f"s_mov_b32 {sSpin}, 0\ns_mov_b32 {sDone}, 0\ns_lshl_b32 s13, {sW}, 2\ns_waitcnt vmcnt({0 if o['blate'] else 1})\nv_cmp_eq_u32 s[10:11], {sNon}, v19")
    if o["skt"] == 1: sk_stage()
    if o["skt"] == 2:
        sk_loads(); a("s_waitcnt vmcnt(0)"); sk_stage()
    def put(b, tag, wait):
        a(f"s_cmp_gt_u32 {sDone}, {b}\ns_cbranch_scc1 L_put{tag}\ns_waitcnt vmcnt({wait})")
        a(f"ds_write_b128 v{vUw}, {vr(PL+4*b,4)} offset:{256*(3-b)}\nds_write_b32 v{vMe}, v{vOne} offset:{F_U - FL0 + 32*b}\ns_mov_b32 {sDone}, {b+1}\nL_put{tag}:")
    a.raw = True
    for i in range(4):
        a(f"s_branch L_chk{i}\nL_poll{i}:" if i == 0 else f"s_branch L_chk{i}\nL_poll{i}:")
        for b in range(i): put(b, f"{i}_{b}", 0)
        a(f"s_add_u32 {sSpin}, {sSpin}, 1")
        if o["blate"]:
            a(f"s_cmp_lg_u32 {sSpin}, {o['bat']}\ns_cbranch_scc1 L_nob{i}"); bstore(); a(f"L_nob{i}:")
        if o["fastflag"]:
            a(f"s_and_b32 s8, {sSpin}, {o['bper']}\ns_cbranch_scc0 L_pollb{i}\nglobal_load_dword v19, v{vFA}, {pWs} sc1\ns_branch L_pollc{i}\nL_pollb{i}:")
        a(f"global_load_dword v19, v{vFB}, {pWs} sc1\nL_pollc{i}:\ns_waitcnt vmcnt(0)\nv_cmp_eq_u32 vcc, {sNon}, v19\ns_or_b64 s[10:11], s[10:11], vcc")
        a(f"s_bitcmp1_b32 {sSpin}, 17\ns_cbranch_scc1 L_iss{i}\nL_chk{i}:")
        a(f"s_lshr_b32 s8, s{10 + i//2}, s13")
        if i % 2: a("s_lshr_b32 s8, s8, 16")
        a(f"s_and_b32 s8, s8, 15\ns_cmp_eq_u32 s8, 15\ns_cbranch_scc0 L_poll{i}\nL_iss{i}:")
        if i == 0: ps("polled", "T")
        a(f"global_load_dwordx4 {vr(PL+4*i,4)}, v{vP0+i}, {pWs} sc1")
    for i in range(2): a(f"global_load_dwordx4 {vr(GL+4*i,4)}, v{vG0+i}, {pWs} sc1")
    if o["blate"]: bstore()
    for b in range(4):
        put(b, f"e_{b}", 5 - b + o["blate"])
        if b == 0: ps("payload", "T")
    a.raw = False
    a(f"s_setprio {o['hprio']}")
    a(f"s_mov_b32 {sSpin}, 0\ns_waitcnt vmcnt({o['blate']})\nL_gchk:")
    a(f"v_cmp_ne_u32 vcc, {sNon}, v{GL+1}\nv_cmp_ne_u32 s[8:9], {sNon}, v{GL+3}\nv_cmp_ne_u32 s[12:13], {sNon}, v{GL+5}\nv_cmp_ne_u32 s[14:15], {sNon}, v{GL+7}")
    a("s_or_b64 s[8:9], s[8:9], vcc\ns_or_b64 s[12:13], s[12:13], s[14:15]\ns_or_b64 s[8:9], s[8:9], s[12:13]\ns_cbranch_scc0 L_gok")
    a("s_sleep 4")
    for i in range(2): a(f"global_load_dwordx4 {vr(GL+4*i,4)}, v{vG0+i}, {pWs} sc1")
    a(f"s_waitcnt vmcnt(0)\ns_add_u32 {sSpin}, {sSpin}, 1\ns_bitcmp0_b32 {sSpin}, 16\ns_cbranch_scc1 L_gchk\nL_gok:")
    for i in range(2):
        g = GL + 4*i
        a(f"v_and_b32 v{g+3}, {sHI}, v{g+2}\nv_lshlrev_b32 v{g+2}, 16, v{g+2}\nv_and_b32 v{g+1}, {sHI}, v{g}\nv_lshlrev_b32 v{g}, 16, v{g}")
        a(f"ds_write_b128 v{vGw}, {vr(g,4)} offset:{4096*i}")
    ps("gok", "T"); jitter()
    if o["nohelp"]: a("s_branch L_hend")
    a(f"s_add_u32 s9, {sW}, 1\ns_mov_b32 s10, 0")
    a("L_help0:")
    jitter()
    a(f"L_help:\ns_mov_b32 {sSpin}, 0\nL_hwait:\nds_read_b32 v3, v{vL4} offset:{F_PR - FL0}\ns_waitcnt lgkmcnt(0)\nv_cmp_gt_u32 vcc, s9, v3\ns_cbranch_vccz L_hgo")
    if o["lsl"]: a(f"s_sleep {o['lsl']}")
    a(f"s_add_u32 {sSpin}, {sSpin}, 1\ns_bitcmp0_b32 {sSpin}, 19\ns_cbranch_scc1 L_hwait\nL_hgo:")
    a(f"""ds_read_b32 v28, v{hY} offset:{2*YSTR}
ds_read_b32 v29, v{hY} offset:{3*YSTR}
ds_read_u16_d16_hi v30, v{hU}
ds_read_u16_d16_hi v31, v{hU} offset:{USTR}
ds_read_b32 v26, v{hY}
ds_read_b32 v27, v{hY} offset:{YSTR}
ds_read_b32 v25, v{hG}
v_add_u32 v{hY}, 1024, v{hY}
v_add_u32 v{hG}, 1024, v{hG}
v_subrev_u32 v{hU}, 128, v{hU}
s_add_u32 s9, s9, 4
s_add_u32 s10, s10, 1
s_waitcnt lgkmcnt(0)
v_mul_f32 v28, v28, v30
v_mul_f32 v29, v29, v31
v_sub_f32 v26, v26, v28
v_sub_f32 v27, v27, v29
v_fmac_f32 v28, v25, v26
v_fmac_f32 v29, v25, v27
v_cvt_pk_bf16_f32 v32, v28, v29
{"s_cmp_le_u32 s10, %d" % o["skipst"] if o["skipst"] else ""}
{"s_cbranch_scc1 L_nost" if o["skipst"] else ""}
global_store_dword v{hO}, v32, {pOut}{["", " nt", " sc0", " sc0 nt"][o["ost"]]}
L_nost:
v_add_u32 v{hO}, {256*896}, v{hO}
s_cmp_lt_u32 s10, {7 if o["spec"] & 2 else 8}
s_cbranch_scc1 L_help0""")
    if o["spec"] & 2:
        a.raw = True
        a(f"""ds_read_u16_d16_hi v30, v{hU}
ds_read_u16_d16_hi v31, v{hU} offset:{USTR}
ds_read_b32 v25, v{hG}
s_mov_b32 {sSpin}, 0
L_lw:
ds_read_b32 v3, v{vL4} offset:{F_PR - FL0}
ds_read_b32 v28, v{hY} offset:{2*YSTR}
ds_read_b32 v29, v{hY} offset:{3*YSTR}
ds_read_b32 v26, v{hY}
ds_read_b32 v27, v{hY} offset:{YSTR}
s_waitcnt lgkmcnt(4)
v_cmp_gt_u32 vcc, s9, v3
s_cbranch_vccz L_lgo
s_waitcnt lgkmcnt(0)
s_add_u32 {sSpin}, {sSpin}, 1
s_bitcmp0_b32 {sSpin}, 19
s_cbranch_scc1 L_lw
L_lgo:
s_waitcnt lgkmcnt(2)
v_mul_f32 v28, v28, v30
v_mul_f32 v29, v29, v31
s_waitcnt lgkmcnt(0)
v_sub_f32 v26, v26, v28
v_sub_f32 v27, v27, v29
v_fmac_f32 v28, v25, v26
v_fmac_f32 v29, v25, v27
v_cvt_pk_bf16_f32 v32, v28, v29
global_store_dword v{hO}, v32, {pOut}{["", " nt", " sc0", " sc0 nt"][o["ost"]]}""")
        a.raw = False
    a("L_hend:")
    ps("last", "T")
    if o["stamps"]:
        a("s_waitcnt vmcnt(0)"); ps("end", "T")
    dump_stamps("T")
    a("s_endpgm")

    RAW, vPa, vSw, vRa, vRb, vPar = 200, 214, 218, 219, 220, 224
    if not o["kin"]: kpre()
    a(f"""L_kmain:
s_barrier
L_kmain2:
s_mov_b32 {sHI}, 0xffff0000
s_mul_i32 s11, {sKq}, {SSTR}
s_add_u32 s11, s11, {SC0}
s_mov_b32 m0, s11
v_and_b32 v13, 31, v1
v_lshrrev_b32 v14, 5, v1
v_lshl_add_u32 v{vSw}, v1, 2, s11
v_mul_u32_u24 v15, {SROW}, v13
v_lshl_add_u32 v15, v14, 4, v15
v_add_u32 v{vRa}, s11, v15
v_add_u32 v{vRb}, {21*SROW}, v{vRa}
s_mov_b32 {sI2P}, {hx(f2u(I2Ph))}
s_mov_b32 {sRnd}, 0""")
    D = 176
    a(f"""v_mov_b32 v12, 0x3f80
s_lshl_b32 s14, {sCh}, 4
s_sub_u32 s14, 16, s14
v_mov_b32 v11, {hx(f2u(L2Eh))}
ds_write_b32 v{vSw}, v12 offset:{21*SROW}
""")
    if o["parlate"] == 1: par_loads()
    a(f"""s_waitcnt lgkmcnt(0)
s_lshl_b32 {sDt}, {sDt}, s14
s_and_b32 {sDt}, {sDt}, {sHI}
v_mov_b32 v13, {sDt}
v_mul_f32 v14, {hx(f2u(L2Eh))}, v13
v_fma_f32 v15, v13, v11, -v14
v_fmac_f32 v15, {hx(f2u(L2El))}, v13
v_exp_f32 v14, v14
v_mul_f32 v15, {hx(f2u(math.log(2.0)))}, v15
s_lshl_b32 {sDs}, {sDs}, s14
v_fma_f32 v14, v14, v15, v14
s_and_b32 {sDs}, {sDs}, {sHI}
v_cvt_pk_bf16_f32 v14, 0, v14
s_cmp_eq_u32 {sHf}, 0
s_cselect_b32 {sDs}, {sDs}, 0
v_readfirstlane_b32 {sDt}, v14""")
    if o["parlate"] == 2: par_loads()
    a("s_waitcnt vmcnt(0)")
    a(".set AL_ON, 1")
    ps("params", "K"); jitter()
    for i in range(6): a(f"v_lshlrev_b32 v{8+i}, 16, v{RAW+i}")
    SK = 24
    vSkW = 240
    A2, TH, TL = 140, 141, 142
    Z1, Z2, Z4, Z8, Z256, W, X, Yc, Fc = 146, 148, 150, 152, 154, 156, 158, 160, 162
    PK = 166; OA = 64; OB = 80
    def cm(d, x, z):
        t = d if d != x else 14
        return (f"v_pk_mul_f32 {vr(t,2)}, {vr(x,2)}, {vr(z,2)} op_sel_hi:[0,1]",
                f"v_pk_fma_f32 {vr(d,2)}, {vr(x,2)}, {vr(z,2)}, {vr(t,2)} op_sel:[1,1,0] op_sel_hi:[1,0,1] neg_lo:[1,0,0]")
    def cmul(d, x, z):
        for t in cm(d, x, z): a(t)
    def swr(r, row): return f"ds_write_addtid_b32 v{r} offset:{row*SROW}" if o["addtid"] else f"ds_write_b32 v{vSw}, v{r} offset:{row*SROW}"
    anchors = ((1, Z1, 136), (8, Z8, 138), (256, Z256, 144))
    def anchor_scalar():
        L = [f"v_mul_f32 v8, {sDt}, v8", f"v_mul_f32 v9, {sDt}, v9", f"v_mul_f32 v{A2}, {hx(f2u(L2Eh))}, v8", f"v_mul_f32 v{TH}, {sI2P}, v9",
             f"v_fma_f32 v{TL}, v9, {sI2P}, -v{TH}", f"v_fmac_f32 v{TL}, {hx(f2u(I2Pl))}, v9"]
        for e, Z, Mx in anchors:
            if e == 1: L += [f"v_exp_f32 v{Mx}, v{A2}", f"v_fract_f32 v{Mx+1}, v{TH}"]
            else:
                c = hx(f2u(float(e)))
                L += [f"v_mul_f32 v{Mx}, {c}, v{A2}", f"v_mul_f32 v{Mx+1}, {c}, v{TH}", f"v_exp_f32 v{Mx}, v{Mx}", f"v_fract_f32 v{Mx+1}, v{Mx+1}"]
        for e, Z, Mx in anchors:
            L += [f"v_add_f32 v{Mx+1}, v{Mx+1}, v{TL}" if e == 1 else f"v_fmac_f32 v{Mx+1}, {hx(f2u(float(e)))}, v{TL}"]
        for e, Z, Mx in anchors: L += [f"v_cos_f32 v{Z}, v{Mx+1}", f"v_sin_f32 v{Z+1}, v{Mx+1}"]
        return L
    for t in anchor_scalar(): a(t)
    a("L_round:")
    cmul(W, 12, 10)
    for e, Z, Mx in anchors: a(f"v_pk_mul_f32 {vr(Z,2)}, {vr(Z,2)}, {vr(Mx,2)} op_sel_hi:[1,0]")
    a(f"v_mul_f32 v{W}, {sDt}, v{W}\nv_mul_f32 v{W+1}, {sDt}, v{W+1}")
    cmul(Z2, Z1, Z1)
    cmul(Z4, Z2, Z2)
    ps("anch", "K")
    pk = [0]
    def cvt(row, src, neg):
        r = PK + (pk[0] % 8); pk[0] += 1
        return f"v_cvt_pk_bf16_f32 v{r}, v{src}, {'-' if neg else ''}v{src+1}", swr(r, row)
    steps = [(None, W, None, 0)]; prev = W
    for r in range(1, 8):
        d = X if prev != X else Yc
        steps.append((d, prev, Z1, r)); prev = d
    steps.append((W, W, Z256, 8)); prev = W
    for r in range(9, 12):
        d = X if prev != X else Yc
        steps.append((d, prev, Z2, r)); prev = d
    steps += [(W, W, Z256, 12), (X, W, Z4, 13), (W, W, Z256, 14), (X, W, Z4, 15)]
    steps += [(W, W, Z256, 16 + i) for i in range(5)]
    fsteps = [(None, Z8, None, 22)]; prev = Z8
    for jx in range(2, 22):
        d = Fc if prev != Fc else Fc + 2
        fsteps.append((d, prev, Z8, 21 + jx)); prev = d
    last21 = prev; last20 = Fc if prev != Fc else Fc + 2
    steps.append((Z2, Z8, Z8, None))
    pa, pb = last20, last21
    tail = []
    for jx in range(22, 32, 2):
        da = Z1 if pa != Z1 else X; db = Z4 if pb != Z4 else Yc
        tail.append(((da, pa, Z2, 21 + jx), (db, pb, Z2, 22 + jx))); pa, pb = da, db
    seq = []
    for n in range(max(len(steps), len(fsteps))):
        seq.append([(lst[n], neg) for lst, neg in ((fsteps, False), (steps, True)) if n < len(lst)])
    seq += [[(x, False), (y, False)] for x, y in tail]
    late = []
    for n, grp in enumerate(seq):
        m0, m1, cv, wr = [], [], [], []
        for (d, x, z, row), neg in grp:
            if d is not None:
                p, q = cm(d, x, z); m0.append(p); m1.append(q); x = d
            if row is not None:
                c_, w_ = cvt(row, x, neg); cv.append(c_); wr.append(w_)
        for t in m0 + late[:1] + m1 + late[1:] + cv: a(t)
        late = wr
    for t in late: a(t)
    ps("chain", "K")
    first = [True]
    def kmf(q): a(f"v_mfma_f32_32x32x16_bf16 {vr(D,16)}, {vr(OA+4*(q%4),4)}, {vr(OB+4*(q%4),4)}, {0 if (q == 0 and first[0]) else vr(D,16)}")
    def mphase(fill, head=6, mid=3, tail=4):
        fill = list(fill)
        def some(n):
            for _ in range(n):
                if fill: a(fill.pop(0))
        for q in range(8):
            a(f"ds_read_b128 {vr(OA+4*(q%4),4)}, v{vRa} offset:{32*q}\nds_read_b128 {vr(OB+4*(q%4),4)}, v{vRb} offset:{32*q}")
            if q == 2: some(head)
            if q >= 3: kmf(q - 3); some(mid)
        for q in (5, 6, 7): kmf(q); some(tail)
        some(99)
    a(f"s_cmp_lg_u32 {sRnd}, 0\ns_cbranch_scc1 L_last\ns_mov_b32 {sRnd}, 1")
    mphase([f"v_and_b32 v{8+i}, {sHI}, v{RAW+i}" for i in range(6)] + anchor_scalar())
    a("s_branch L_round\nL_last:")
    first[0] = False
    keep = a.lines; a.lines = []
    vKa, vUa, vYa, vPr = 2, 3, 4, 5
    vE8, vE16, vW8, vW16, vW32, vFold = 234, 235, 236, 237, 238, 239
    a(f"""s_mul_i32 s11, {sKq}, {SSTR}
s_add_u32 s11, s11, {SC0}
v_and_b32 v13, 31, v1
v_lshrrev_b32 v14, 5, v1
v_lshlrev_b32 v15, 5, v13
v_lshl_add_u32 v15, v14, 4, v15
v_add_u32 v{vPa}, s11, v15
v_cmp_eq_u32 vcc, 0, v14
v_lshlrev_b32 v15, 4, v13
v_add_u32 v15, {4*256}, v15
v_lshlrev_b32 v12, 3, v13
v_add_u32 v12, {4*384}, v12
v_cndmask_b32 v11, v12, v15, vcc
v_add_u32 v{vPa+1}, s11, v11
v_add_u32 v15, 8, v15
v_add_u32 v12, 256, v12
v_cndmask_b32 v11, v12, v15, vcc
v_add_u32 v{vPa+2}, s11, v11
v_lshlrev_b32 v15, 2, v13
v_lshl_add_u32 v15, v14, 9, v15
v_add_u32 v15, {4*512}, v15
v_add_u32 v{vPa+3}, s11, v15""")
    sync_regs(13)
    a(f"""s_mul_i32 s13, {sKq}, {KSTR}
s_add_u32 s13, s13, {K0 + 32}
v_lshl_add_u32 v{vW8}, v1, 3, s13
v_lshl_add_u32 v{vW16}, v1, 4, s13
v_lshl_add_u32 v{vW32}, v1, 5, s13
v_mov_b32 v8, 0
v_mov_b32 v9, 0
v_mov_b32 v10, 0
v_mov_b32 v11, 0
s_sub_u32 s14, s13, 32
v_and_b32 v6, 1, v1
v_lshl_add_u32 v6, v6, 4, s14
ds_write_b128 v6, v[8:11]
s_mul_i32 s14, {sHf}, {2*SSTR}
s_add_u32 s14, s14, {SC0}
v_lshl_add_u32 v{vE8}, v1, 3, s14
v_lshl_add_u32 v{vE16}, v1, 4, s14
v_and_b32 v6, 3, v1
v_bfe_u32 v7, v1, 2, 2
v_lshrrev_b32 v12, 4, v1
v_add_u32 v13, v6, v7
v_lshlrev_b32 v13, 3, v13
v_lshl_add_u32 v13, v12, 6, v13
s_sub_u32 s14, s13, 24
v_add_u32 v{vKa}, s14, v13
v_mul_u32_u24 v14, {USTR_PH}, v6
v_lshl_add_u32 v14, v12, 4, v14
v_lshlrev_b32 v13, 3, v7
v_sub_u32 v14, v14, v13
s_mul_i32 s15, {sKq}, {USTR}
s_add_u32 s14, s15, {U0 + 1016 - 32*31}
v_add_u32 v{vUa}, s14, v14
v_mul_u32_u24 v14, {USTR_PH}, v7
v_lshl_add_u32 v14, v6, 4, v14
s_add_u32 s14, s15, {U0 + 1024}
v_add_u32 v14, s14, v14
ds_write_b128 v14, v[8:11]
s_lshl_b32 s14, {sKq}, 13
s_add_u32 s14, s14, {Y0}
v_lshl_add_u32 v{vYa}, v1, 2, s14
s_lshl_b32 s14, {sKq}, 2
s_add_u32 s14, s14, {F_PR}
v_mov_b32 v{vPr}, s14""")
    a(f"v_cmp_eq_u32 vcc, 0, v1\nv_mov_b32 v7, {sDs}\ns_nop 0\nv_cndmask_b32 v{vFold}, 0, v7, vcc")
    moved = a.lines; a.lines = keep
    mphase(moved, head=14, mid=6, tail=8)
    ps("rend", "K"); jitter()
    a(f"v_add_f32 v{D}, v{D}, v{vFold}")
    a(f"ds_write_b128 v{vPa}, {vr(D,4)}\nds_write_b64 v{vPa+1}, {vr(D+4,2)}\nds_write_b64 v{vPa+2}, {vr(D+6,2)}")
    for r in range(4): a(f"ds_write_b32 v{vPa+3}, v{D+8+r} offset:{128*r}")
    arrive(F_P)
    a(f"s_cmp_lt_u32 {sKq}, 2\ns_cbranch_scc1 L_aunit")
    wait_set(F_SK, vL4, 7)
    a("s_branch L_kop\nL_aunit:")
    def gather(dst, n, vaddr, off):
        for q in range(2):
            r = dst + 4*q
            if n == 4: a(f"ds_read_b128 {vr(r,4)}, v{vaddr} offset:{off + q*SSTR}")
            else: a(f"ds_read_b64 {vr(r,2)}, v{vaddr} offset:{off + q*SSTR}\nds_read_b32 v{r+2}, v{vaddr} offset:{off + q*SSTR + 8}")
    def total(dst, n):
        for i in range(n): a(f"v_add_f32 v{dst+i}, v{dst+i}, v{dst+4+i}")
    def pack(dst, src, pat):
        for i, (x, y) in enumerate(pat): a(f"v_cvt_pk_bf16_f32 v{dst+i}, v{src+x}, v{src+y}")
    ps("pwait", "K")
    wait_set(F_P, vL4, 7)
    ps("pdone", "K"); jitter()
    gather(64, 4, vE16, 0); gather(72, 3, vE8, 4*256); gather(80, 3, vE8, 4*384); gather(88, 3, vE8, 4*512)
    total(64, 4); pack(128, 64, ((0, 1), (2, 3)))
    a(f"ds_write_b64 v{vW8}, v[128:129]")
    total(72, 3); pack(130, 72, ((0, 0), (1, 2)))
    a(f"ds_write_b64 v{vW8}, v[130:131] offset:{2*256}")
    total(80, 3); pack(132, 80, ((0, 0), (0, 1), (1, 1), (2, 2)))
    a(f"ds_write_b128 v{vW16}, v[132:135] offset:{2*512}")
    total(88, 3); pack(136, 88, ((0, 0), (0, 0), (0, 1), (1, 1), (1, 1), (1, 1), (2, 2), (2, 2)))
    a(f"ds_write_b128 v{vW32}, v[136:139] offset:{2*1024}\nds_write_b128 v{vW32}, v[140:143] offset:{2*1024+16}")
    a("L_kop:")
    ps("kready", "K"); jitter()
    KOP, UOP, ACC, TR, ZR = 192, 64, 24, 8, 58
    a(f"v_mov_b32 v6, v{vL4}")
    def kload(mu): return [f"ds_read_b64_tr_b16 {vr(KOP+4*mu,2)}, v{vKa} offset:{256*mu}", f"ds_read_b64_tr_b16 {vr(KOP+4*mu+2,2)}, v{vKa} offset:{256*mu+32}"]
    KPRE = o["kpre"]
    for mu in range(KPRE):
        for t in kload(mu): a(t)
    for i in range(3): a(f"v_mov_b32 v{ZR+i}, 0")
    ps("kop", "K")
    def uload(nu):
        off = 32 * (31 - nu)
        return [f"ds_read_b64 {vr(UOP+4*nu,2)}, v{vUa} offset:{off}", f"ds_read_b64 {vr(UOP+4*nu+2,2)}, v{vUa} offset:{off+8}"]
    SPEC_U = o["spec"] & 1
    if SPEC_U:
        a.raw = True
        a(f"s_mov_b32 {sSpin}, 0\nL_u0:\nds_read_b32 v7, v6 offset:{F_U - FL0}")
        for nu in range(o["u0n"]):
            for t in uload(nu): a(t)
        a(f"s_waitcnt lgkmcnt({min(15, 2*o['u0n'])})\nv_cmp_ne_u32 vcc, 1, v7\ns_cbranch_vccz L_u0_ok\ns_waitcnt lgkmcnt(0)\ns_add_u32 {sSpin}, {sSpin}, 1\ns_bitcmp0_b32 {sSpin}, 19\ns_cbranch_scc1 L_u0\nL_u0_ok:\ns_waitcnt lgkmcnt({min(15, 2*o['u0n'] - 2)})")
        a.raw = False
    else:
        wait_set(F_U, 6, 7)
    if o["mprio"]: a(f"s_setprio {o['mprio']}")
    ps("uready", "K"); jitter()
    NACC = o["nacc"]; NTR = 4; UP = o["upre"]
    dp = "row_mask:0xf bank_mask:0xf"
    pos = [0]
    lds_since = [0]
    def em(t):
        a(t); pos[0] += 1
        if t.startswith("ds_"): lds_since[0] += 1
    done_at = {}
    lastflag = [None]
    def epi(c):
        A = ACC + 4 * (c % NACC)
        cur = TR + 4 * (c % NTR); prv = TR + 4 * ((c - 1) % NTR)
        pT3 = (ACC + 4 * ((c - 1) % NACC) + 3) if c > 0 else ZR
        pT2 = prv if c > 0 else ZR + 1
        pT1 = prv + 1 if c > 0 else ZR + 2
        L = [((c, 0), f"v_add_f32_dpp v{cur}, v{pT3}, v{A+2} wave_ror:1 {dp}", 1, [(("m", c), 9), ((c - NTR + 1, 1), 1), ((c - NTR + 1, 3), 1), ((c - NTR, 6), 1)]),
             ((c, 2), f"v_add_f32_dpp v{cur}, v{A+3}, v{A+2} wave_shr:1 {dp}", 1, [((c, 0), 1)]),
             ((c, 1), f"v_add_f32_dpp v{cur+1}, v{pT2}, v{A+1} wave_ror:1 {dp}", 1, [((c, 2), 1), ((c - 1, 2), 3)]),
             ((c, 4), f"v_add_f32_dpp v{cur+1}, v{cur}, v{A+1} wave_shr:1 {dp}", 1, [((c, 1), 1), ((c, 2), 3)]),
             ((c, 3), f"v_add_f32_dpp v{cur+2}, v{pT1}, v{A} wave_ror:1 {dp}", 1, [((c, 4), 1), ((c - 1, 4), 3)]),
             ((c, 5), f"v_add_f32_dpp v{cur+2}, v{cur+1}, v{A} wave_shr:1 {dp}", 1, [((c, 3), 1), ((c, 4), 3)]),
             ((c, 6), f"ds_write_b32 v{vYa}, v{cur+2} offset:{256*c}", 2, [((c, 5), 2), ((c - 1, 6), 1)])]
        if (c % 2 == 1 and c >= o['fl0']) or c >= 28:
            dep = [((c, 5), 1)] + ([(lastflag[0], 1)] if lastflag[0] else [])
            L += [((c, 7), f"v_mov_b32_e64 v61, {c+1}", 1, dep), ((c, 8), f"ds_write_b32 v{vPr}, v61", 2, [((c, 7), 2), ((c, 6), 1)])]
            lastflag[0] = (c, 8)
        return L
    def ready(item):
        for key, dist in item[3]:
            if key[0] != "m" and key[0] < 0: continue
            if key not in done_at or pos[0] - done_at[key] < dist: return False
        return True
    queue = []
    def fill(slots):
        while slots > 0:
            pick = None
            for n, it in enumerate(queue[:24]):
                if it[2] <= slots and ready(it): pick = n; break
            if pick is None: return
            it = queue.pop(pick); done_at[it[0]] = pos[0]; em(it[1]); slots -= it[2]
    def drain(pred):
        while any(pred(it) for it in queue):
            n0 = len(queue); fill(2)
            if len(queue) == n0: em("s_nop 0")
    STEP = 2 if o["pair"] else 1
    if o["pair"]: UP = 2
    U0N = o["u0n"]
    for nu in range(U0N):
        if not SPEC_U:
            for t in uload(nu): em(t)
    for c in range(0, 32, STEP):
        nm = c // 2 + 1
        blocks = list(range(c, c + STEP))
        if c in (4, 8, 12, 16, 24): ps(f"c{c}", "K")
        if c in (3, 6, 14, 22, 29): jitter()
        if c == o["mdrop"]: em("s_setprio 0")
        if (c + UP) % 8 == 0 and c + UP < 32:
            bi = (c + UP) // 8
            drain(lambda it: it[0][0] == "f")
            em(f"v_cmp_ne_u32 vcc, 1, v7"); em(f"s_cbranch_vccnz L_us{bi}"); a(f"L_ub{bi}:")
        new = []
        for x in blocks:
            if U0N <= x + UP < 32:
                tl = uload(x + UP)
                new += [(("u", x, 0), tl[0], 1, []), (("u", x, 1), tl[1], 1, [])]
        mu_next = (c + 4) // 2
        if c % 2 == 0 and KPRE <= mu_next < 16:
            tl = kload(mu_next)
            new += [(("k", mu_next, 0), tl[0], 1, []), (("k", mu_next, 1), tl[1], 1, [])]
        if (c + UP + 2) % 8 == 0 and c + UP + 2 < 32:
            bi = (c + UP + 2) // 8
            new = [(("f", c), f"ds_read_b32 v7, v6 offset:{F_U - FL0 + 32*bi}", 1, [])] + new
        queue[0:0] = new
        if c % 2 == 0: drain(lambda it: it[0][0] == "k" and it[0][1] <= c // 2 + 1)
        for x in blocks:
            old = x - NACC
            if old >= 0: drain(lambda it: it[0][0] == old or it[0] == (old + 1, 0))
        drain(lambda it: it[0][0] == "u" and it[0][1] + UP <= blocks[-1] + 2)
        if SPEC_U and 1 <= c < U0N:
            younger = 2 * (U0N - 1 - c) + lds_since[0]
            em(f"s_waitcnt lgkmcnt({min(15, younger)})")
        for n, mu in enumerate(range(nm - 1, -1, -1)):
            for x in blocks:
                A = ACC + 4 * (x % NACC)
                em(f"v_mfma_f32_16x16x32_bf16 {vr(A,4)}, {vr(UOP+4*(x-2*mu),4)}, {vr(KOP+4*mu,4)}, {'0' if n == 0 else vr(A,4)}")
                if n == nm - 1:
                    done_at[("m", x)] = pos[0] - 1
                    if not o["noepi"]: queue.extend(epi(x))
                fill(2)
    drain(lambda it: True)
    a(".set AL_OFF, 1")
    ps("convend", "K")
    dump_stamps("K")
    a("s_endpgm")
    for bi in range(1, 4):
        a(f"L_us{bi}:")
        wait_set(F_U + 32*bi, 6, 7)
        a(f"s_branch L_ub{bi}")

    a(f"""L_mknon:
s_memrealtime s[12:13]
s_mov_b64 exec, 1
v_mov_b32 v3, 0
v_mov_b32 v4, 0
s_waitcnt lgkmcnt(0)
s_or_b32 s12, s12, 1
v_mov_b32 v2, s12
global_atomic_cmpswap v4, v[2:3], {pDbg} sc1
s_mov_b64 exec, -1
s_branch L_nonon""")
    GU, GW = 8, 40
    a(f"""L_g7:
s_lshl_b32 s8, {sJ}, 3
s_add_u32 s8, s8, {sW}
s_lshl_b32 s9, s8, 3
v_lshrrev_b32 v7, 3, v1
v_add_u32 v7, s9, v7
v_and_b32 v6, 7, v1
v_mul_u32_u24 v6, 112, v6
v_mul_u32_u24 v7, 896, v7
v_add_u32 v7, v7, v6
s_lshl_b32 s9, s8, 5
s_add_u32 s9, s9, {WS_G}
v_lshrrev_b32 v5, 4, v1
v_lshl_add_u32 v5, v5, 3, s9
v_mov_b32 v{vZ}, 0
s_waitcnt lgkmcnt(0)""")
    if o["gsk"]:
        a(f"s_mul_i32 s9, s8, {56*128}\nv_min_u32 v3, 55, v1\nv_lshl_add_u32 v3, v3, 7, s9\nglobal_load_dword v71, v3, {pSk}")
    for i in range(7): a(f"global_load_dwordx4 {vr(GW+4*i,4)}, v6, {pGw} offset:{16*i}")
    if not o["gearly"]:
        a(f"global_load_dword v70, v{vZ}, {pDbg} sc1\ns_waitcnt vmcnt(0)")
        nonce("g", 70)
    if o["gdelay"]: a(f"s_sleep {o['gdelay']}")
    jitter()
    for i in range(7): a(f"global_load_dwordx4 {vr(GU+4*i,4)}, v7, {pU} offset:{16*i}")
    if o["gearly"]: a(f"global_load_dword v70, v{vZ}, {pDbg} sc1")
    a("v_mov_b32 v2, 0\nv_mov_b32 v3, 0")
    for i in range(0, 28, 2): a(f"v_dot2_f32_bf16 v2, v{GU+i}, v{GW+i}, v2\nv_dot2_f32_bf16 v3, v{GU+i+1}, v{GW+i+1}, v3")
    a("v_add_f32 v2, v2, v3")
    for sh in (1, 2, 4): a(f"v_add_f32_dpp v2, v2, v2 row_shr:{sh} row_mask:0xf bank_mask:0xf bound_ctrl:0")
    a(f"v_cvt_pk_bf16_f32 v2, 0, v2\nv_mul_f32 v2, {hx(f2u(-L2E))}, v2\nv_exp_f32 v2, v2\nv_add_f32 v2, 1.0, v2\nv_rcp_f32 v2, v2")
    a("v_mov_b32_dpp v3, v2 row_shr:8 row_mask:0xf bank_mask:0xf bound_ctrl:0\nv_cvt_pk_bf16_f32 v2, v3, v2")
    if o["gearly"]:
        a("s_waitcnt vmcnt(0)")
        nonce("g", 70)
    a(f"v_mov_b32 v3, {sNon}\ns_mov_b32 exec_lo, 0x80008000\ns_mov_b32 exec_hi, 0x80008000\nglobal_store_dwordx2 v5, v[2:3], {pWs} sc1")
    a("L_end:\ns_endpgm\nL_codeend:")
    body = a.finish()
    if o["al"]:
        body, nn, nw = align(body, lambda b: f'.amdgcn_target "amdgcn-amd-amdhsa--gfx950"\n.text\n{NAME}_kernel:\n{b}', o["al"])
        print("alignment: padded", nn, "widened", nw)
    hdr = open("cdna_kernels/" + NAME + ".s.ref").read().split("; Override launch")[0]
    txt = hdr + f"""; One launch: 7 groups of 32 workgroups exchange transposed tiles through d_ws, each workgroup then
; owns two channels (S4 kernel table, two Toeplitz convolutions on MFMA, gated mix); an eighth group computes the gate.
; @launch grid=(256,1,1) block=(512,1,1) lds={LDS_BYTES}
.amdgcn_target "amdgcn-amd-amdhsa--gfx950"
.text
.globl {NAME}_kernel
.p2align 8
.type {NAME}_kernel,@function
{NAME}_kernel:
{body}.section .rodata,"a"
.p2align 6
.amdhsa_kernel {NAME}_kernel
  .amdhsa_next_free_vgpr 256
  .amdhsa_next_free_sgpr 102
  .amdhsa_accum_offset 256
  .amdhsa_group_segment_fixed_size 0
  .amdhsa_kernarg_size 152
  .amdhsa_user_sgpr_count 2
  .amdhsa_user_sgpr_kernarg_segment_ptr 1
  .amdhsa_system_sgpr_workgroup_id_x 1
.end_amdhsa_kernel
"""
    return txt, a.nops

if __name__ == "__main__":
    out = sys.argv[1]
    kw = {k: int(v, 0) for k, v in (x.split("=") for x in sys.argv[2:])}
    txt, nops = gen(**kw)
    open(out, "w").write(txt)
    print("wrote", out, "lines", txt.count("\n"), "nops", nops, "lds", LDS_BYTES)
```
